```python
import torch

def _softmax(x, axis=-1):
    return torch.softmax(x, dim=axis)
def _gelu(x):
    return torch.nn.functional.gelu(x, approximate="tanh")
def _silu(x):
    return torch.nn.functional.silu(x)
def _sigmoid(x):
    return torch.sigmoid(x)
def _layernorm(x, axis=-1, eps=1e-5):
    m = x.mean(dim=axis, keepdim=True)
    v = x.var(dim=axis, keepdim=True, unbiased=False)
    return (x - m) / torch.sqrt(v + eps)
def _scatter_add(tgt, idx, src, axis=0):
    return tgt.clone().index_add_(axis, idx, src)
def _segment_sum(src, seg, n):
    out = torch.zeros((n,) + src.shape[1:], dtype=src.dtype)
    return out.index_add_(0, seg, src)
def _pad(x, pw):
    flat = tuple(v for pair in reversed(pw) for v in pair)
    return torch.nn.functional.pad(x, flat)

kernel_name = 'sequential_preLN__sliding_local_dilated__glu_gated_geglu__prompt'

def setup_inputs():

    _w = (lambda a: (lambda t: t.to(torch.bfloat16) if t.is_floating_point() else t)(torch.as_tensor(a)))
    def _A_setup():
        B, S, D = 1, 2048, 640
        return {
            "x": _w((lambda *s: torch.randn(*s, dtype=torch.bfloat16) * 0.05)(B, S, D)),
            "wqkv": _w((lambda *s: torch.randn(*s, dtype=torch.bfloat16) * 0.05)(D, 3 * D)),
            "wo": _w((lambda *s: torch.randn(*s, dtype=torch.bfloat16) * 0.05)(D, D)),
        }
    _A_in = _A_setup()

    def _B_setup():
        B, S, Dm, Df = 1, 2048, 640, 1536
        return {
            "x": _w((lambda *s: torch.randn(*s, dtype=torch.bfloat16) * 0.05)(B, S, Dm)),
            "w_gate": _w((lambda *s: torch.randn(*s, dtype=torch.bfloat16) * 0.8)(Dm, Df) * (Dm ** -0.5)),
            "w_up": _w((lambda *s: torch.randn(*s, dtype=torch.bfloat16) * 0.8)(Dm, Df) * (Dm ** -0.5)),
            "w_down": _w((lambda *s: torch.randn(*s, dtype=torch.bfloat16) * 0.8)(Df, Dm) * (Df ** -0.5)),
        }
    _B_in = _B_setup()

    return {
        "A_x": _A_in["x"],
        "A_wqkv": _A_in["wqkv"],
        "A_wo": _A_in["wo"],
        "B_x": _B_in["x"],
        "B_w_gate": _B_in["w_gate"],
        "B_w_up": _B_in["w_up"],
        "B_w_down": _B_in["w_down"],
    }

def reference(A_x, A_wqkv, A_wo, B_x, B_w_gate, B_w_up, B_w_down):
    def _A_ref(x, wqkv, wo):
        B, S, D = x.shape
        H = 32; Dh = D // H
        W, dil = 8, 2
        qkv = (lambda x, *d: x.permute(*d))((x @ wqkv).reshape(B, S, 3, H, Dh), 2, 0, 3, 1, 4)
        q, k, v = qkv[0], qkv[1], qkv[2]
        scale = Dh ** -0.5
        pos = torch.arange(S)
        off = torch.arange(W) * dil
        idx = pos[:, None] - off[None, :]
        mask = idx >= 0
        idx_c = torch.where(mask, idx, 0).reshape(-1)
        kg = k[:, :, idx_c, :].reshape(B, H, S, W, Dh)
        vg = v[:, :, idx_c, :].reshape(B, H, S, W, Dh)
        logits = torch.einsum("bhsd,bhswd->bhsw", q, kg) * scale
        logits = torch.where(mask[None, None, :, :], logits, -1e9)
        attn = _softmax(logits, axis=-1)
        o = torch.einsum("bhsw,bhswd->bhsd", attn, vg)
        return (lambda x, *d: x.permute(*d))(o, 0, 2, 1, 3).reshape(B, S, D) @ wo

    def _B_ref(x, w_gate, w_up, w_down):
        g = torch.einsum("bsd,df->bsf", x, w_gate)
        u = torch.einsum("bsd,df->bsf", x, w_up)
        h = _gelu(g) * u
        return torch.einsum("bsf,fd->bsd", h, w_down)

    x = A_x
    h = x + _A_ref(_layernorm(x, axis=-1), A_wqkv, A_wo)
    h2 = h + _B_ref(_layernorm(h, axis=-1), B_w_gate, B_w_up, B_w_down)
    return h2
```

```python
from dsl import *
import struct

S, D, DF = 2048, 640, 1536
X_BYTES = S * D * 2
WQKV_BYTES = D * 3 * D * 2
WO_BYTES = D * D * 2
WG_BYTES = D * DF * 2
WD_BYTES = DF * D * 2
OUT_BYTES = S * D * 2

WS_WGU = 0x000000
WS_WD = 0x3C0000
WS_CS = 0x5A0000
WS_AO = 0x600000
WS_AH = 0x880000
WS_HS = 0xB00000
WS_AHH = 0xC00000
WS_FLAGS = 0x1200000
WS_BYTES = 0x1300000

S_X, S_WQ, S_WO, S_G, S_U, S_DN, S_OUT, S_DBG, S_WS = 4, 6, 8, 12, 14, 16, 18, 20, 22
R_X, R_WQ, R_WO, R_G, R_U, R_DN, R_OUT, R_WS = 24, 28, 32, 36, 40, 44, 48, 52
S_WAVE = 56
S_MT = 57
S_NT = 58
S_T0 = 60


def f32(x):
    return '0x%08x' % struct.unpack('<I', struct.pack('<f', x))[0]


def srd(a, r, p, nbytes):
    a(f's_mov_b32 s{r}, s{p}')
    a(f's_and_b32 s{r+1}, s{p+1}, 0xffff')
    a(f's_mov_b32 s{r+2}, {nbytes}')
    a(f's_mov_b32 s{r+3}, 0x20000')


def kernel_head(a, name, end_label, srds):
    a.raw(f'.globl {name}\n.p2align 8\n.type {name},@function\n{name}:')
    a('s_load_dwordx16 s[4:19], s[0:1], 0')
    a('s_load_dwordx4 s[20:23], s[0:1], 64')
    a('s_cmp_ge_u32 s2, 256')
    a(f's_cbranch_scc1 {end_label}')
    a('v_lshrrev_b32 v1, 6, v0')
    a('v_and_b32 v0, 63, v0')
    a(f'v_readfirstlane_b32 s{S_WAVE}, v1')


def kernel_srds(a, srds):
    table = {'x': (R_X, S_X, X_BYTES), 'wq': (R_WQ, S_WQ, WQKV_BYTES), 'wo': (R_WO, S_WO, WO_BYTES),
             'g': (R_G, S_G, WG_BYTES), 'u': (R_U, S_U, WG_BYTES), 'dn': (R_DN, S_DN, WD_BYTES),
             'out': (R_OUT, S_OUT, OUT_BYTES), 'ws': (R_WS, S_WS, WS_BYTES)}
    a('s_waitcnt lgkmcnt(0)')
    for k in srds:
        srd(a, *table[k])


def map_32x8(a, mode):
    t = S_T0
    a(f's_and_b32 s{t}, s2, 7')
    a(f's_lshr_b32 s{t+1}, s2, 3')
    if mode == '4x2':
        a(f's_lshr_b32 s{S_MT}, s{t}, 1')
        a(f's_lshl_b32 s{S_MT}, s{S_MT}, 3')
        a(f's_lshr_b32 s{t+2}, s{t+1}, 2')
        a(f's_add_u32 s{S_MT}, s{S_MT}, s{t+2}')
        a(f's_and_b32 s{S_NT}, s{t}, 1')
        a(f's_lshl_b32 s{S_NT}, s{S_NT}, 2')
        a(f's_and_b32 s{t+2}, s{t+1}, 3')
        a(f's_add_u32 s{S_NT}, s{S_NT}, s{t+2}')
    elif mode == '8x1':
        a(f's_lshl_b32 s{S_MT}, s{t}, 2')
        a(f's_lshr_b32 s{t+2}, s{t+1}, 3')
        a(f's_add_u32 s{S_MT}, s{S_MT}, s{t+2}')
        a(f's_and_b32 s{S_NT}, s{t+1}, 7')
    elif mode == '2x4':
        a(f's_lshr_b32 s{S_MT}, s{t}, 2')
        a(f's_lshl_b32 s{S_MT}, s{S_MT}, 4')
        a(f's_lshr_b32 s{t+2}, s{t+1}, 1')
        a(f's_add_u32 s{S_MT}, s{S_MT}, s{t+2}')
        a(f's_and_b32 s{S_NT}, s{t}, 3')
        a(f's_lshl_b32 s{S_NT}, s{S_NT}, 1')
        a(f's_and_b32 s{t+2}, s{t+1}, 1')
        a(f's_add_u32 s{S_NT}, s{S_NT}, s{t+2}')
    else:
        raise ValueError(mode)


def descriptor(name, nvgpr, accum, nsgpr=100):
    return (f'.p2align 6\n.amdhsa_kernel {name}\n  .amdhsa_next_free_vgpr {nvgpr}\n  .amdhsa_next_free_sgpr {nsgpr}\n'
            f'  .amdhsa_accum_offset {accum}\n  .amdhsa_group_segment_fixed_size 0\n  .amdhsa_kernarg_size 80\n'
            f'  .amdhsa_user_sgpr_count 2\n  .amdhsa_user_sgpr_kernarg_segment_ptr 1\n'
            f'  .amdhsa_system_sgpr_workgroup_id_x 1\n  .amdhsa_float_denorm_mode_32 3\n.end_amdhsa_kernel\n')


class Alloc:
    def __init__(self, start, limit=256):
        self.n = start; self.limit = limit
    def __call__(self, n=1, align=1):
        if n > 1 and align == 1: align = 2
        self.n = (self.n + align - 1) // align * align
        r = self.n; self.n += n
        assert self.n <= self.limit, f'out of registers: {self.n}'
        return r
```

```python
import re

_REG = re.compile(r'\b([vas])(?:\[(\d+):(\d+)\]|(\d+))\b|\b([vas])\[(\d+):(\d+)\]')

def regs_of(tok):
    tok = tok.strip()
    out = set()
    m = re.fullmatch(r'-?(?:abs\()?\|?([vas])\[(\d+):(\d+)\]\|?\)?', tok)
    if m:
        for i in range(int(m.group(2)), int(m.group(3)) + 1):
            out.add((m.group(1), i))
        return out
    m = re.fullmatch(r'-?(?:abs\()?\|?([vas])(\d+)\|?\)?', tok)
    if m:
        out.add((m.group(1), int(m.group(2))))
        return out
    if tok in ('vcc', 'vcc_lo', 'vcc_hi'):
        out.add(('vcc', 0))
    elif tok in ('exec', 'exec_lo', 'exec_hi'):
        out.add(('exec', 0))
    elif tok == 'm0':
        out.add(('m0', 0))
    return out

TRANS = ('v_exp_f32', 'v_log_f32', 'v_rcp_f32', 'v_rsq_f32', 'v_sqrt_f32', 'v_sin_f32', 'v_cos_f32')

class Ins:
    __slots__ = ('text', 'op', 'cls', 'w', 'r', 'slots', 'passes', 'srcc', 'dpp', 'perm', 'rdlane', 'trans', 'widestore', 'lds_dma', 'sdwa', 'ab')

def parse(text):
    t = text.split(';')[0].strip()
    op = t.split()[0]
    rest = t[len(op):].strip()
    ops, depth, cur = [], 0, ''
    for ch in rest:
        if ch == '[': depth += 1
        if ch == ']': depth -= 1
        if ch == ',' and depth == 0:
            ops.append(cur.strip()); cur = ''
        else:
            cur += ch
    if cur.strip(): ops.append(cur.strip())
    mods = ''
    if ops:
        parts = ops[-1].split(None, 1)
        if len(parts) == 2:
            ops[-1], mods = parts
    i = Ins(); i.text = text; i.op = op; i.w = set(); i.r = set(); i.slots = 1; i.passes = 0; i.srcc = set(); i.ab = set()
    i.dpp = ('_dpp' in op) or ('row_' in mods) or ('quad_perm' in mods); i.perm = op.startswith('v_permlane')
    i.rdlane = op.startswith('v_readlane') or op.startswith('v_readfirstlane')
    i.trans = op.replace('_e32', '').replace('_e64', '') in TRANS
    i.widestore = False; i.lds_dma = False; i.sdwa = ('_sdwa' in op) or ('op_sel:' in mods and not op.startswith('v_pk'))
    R = [regs_of(o) for o in ops]
    if op == 's_nop':
        i.cls = 'salu'; i.slots = int(ops[0], 0) + 1
    elif op.startswith('v_mfma'):
        i.cls = 'mfma'; i.w = R[0]; i.ab = R[1] | R[2]; i.srcc = R[3]; i.r = i.ab | i.srcc
        i.passes = 8 if '32x32x16' in op else 4
    elif op.startswith('v_cmp'):
        i.cls = 'valu'; i.w = R[0]; i.r = set().union(*R[1:])
    elif op.startswith('v_permlane') and 'swap' in op:
        i.cls = 'valu'; i.w = R[0] | R[1]; i.r = R[0] | R[1]
    elif op.startswith('v_'):
        i.cls = 'valu'; i.w = R[0]; i.r = set().union(*R[1:]) if len(R) > 1 else set()
        if op.startswith(('v_fmac', 'v_dot2c', 'v_pk_fmac', 'v_writelane')) or i.dpp: i.r |= R[0]
        if op.startswith(('v_add_co', 'v_sub_co', 'v_addc_co', 'v_subb_co', 'v_mad_u64')): i.w |= R[1]
        if op.startswith('v_cndmask') and len(ops) == 3: i.r.add(('vcc', 0))
    elif op.startswith(('buffer_', 'global_', 'flat_')):
        i.cls = 'vmem'
        if op in ('buffer_wbl2', 'buffer_inv'):
            pass
        elif 'store' in op:
            i.r = set().union(*R)
            i.widestore = ('x3' in op or 'x4' in op)
            i.srcc = R[0] if op.startswith('buffer_') else R[1]
        elif 'atomic' in op:
            ret = 'sc0' in mods.split()
            if op.startswith('global_') and ret: i.w = R[0]; i.r = set().union(*R[1:])
            else:
                i.r = set().union(*R)
                if ret: i.w = R[0]
        elif 'lds' in mods.split() or '_lds_' in op:
            i.lds_dma = True; i.r = set().union(*R) | {('m0', 0)}
        else:
            i.w = R[0]; i.r = set().union(*R[1:])
    elif op.startswith('ds_'):
        i.cls = 'ds'
        if op.startswith(('ds_read', 'ds_bpermute', 'ds_permute', 'ds_swizzle')):
            i.w = R[0]; i.r = set().union(*R[1:])
        else:
            i.r = set().union(*R)
    elif op.startswith('s_'):
        i.cls = 'salu'
        if op.startswith(('s_cmp', 's_cbranch', 's_branch', 's_waitcnt', 's_barrier', 's_endpgm', 's_sleep', 's_setprio', 's_bitcmp')):
            i.r = set().union(*R) if R else set()
        else:
            i.w = R[0] if R else set(); i.r = set().union(*R[1:]) if len(R) > 1 else set()
            if 'saveexec' in op: i.w |= {('exec', 0)}
    else:
        raise ValueError('unknown op ' + text)
    return i

def vec(s): return {x for x in s if x[0] in 'va' and x[0] != 'vcc' and len(x[0]) == 1}
def sca(s): return {x for x in s if x[0] in ('s', 'vcc')}

def need(p, c):
    n = 0
    if p.cls == 'valu':
        pw = vec(p.w)
        if c.cls == 'mfma' and pw & c.r: n = max(n, 2)
        if c.cls == 'valu':
            if c.dpp and pw & c.r: n = max(n, 2)
            if c.perm and pw & c.r: n = max(n, 2)
            if c.rdlane and pw & c.r: n = max(n, 1)
            if p.trans and not c.trans and pw & c.r: n = max(n, 1)
            if p.trans and c.trans and pw & c.r: n = max(n, 1)
            if p.sdwa and pw & (c.r | c.w): n = max(n, 1)
        if p.trans and c.cls in ('vmem', 'ds') and pw & c.r: n = max(n, 1)
        if p.op.startswith('v_dot'):
            if c.op == p.op:
                if pw & (c.r - c.w): n = max(n, 3)
            elif pw & (c.r | c.w): n = max(n, 3)
        ps = sca(p.w)
        if ps:
            if c.cls == 'valu' and ps & c.r: n = max(n, 4 if (c.rdlane or c.op.startswith('v_writelane')) else 2)
            if c.cls == 'vmem' and ps & c.r: n = max(n, 5)
            if c.cls == 'salu' and ps & c.r: n = max(n, 1)
        if ('exec', 0) in p.w: n = max(n, 5)
    if p.cls == 'mfma':
        big = p.passes == 8
        if c.cls == 'mfma':
            if p.w & c.ab: n = max(n, 12 if big else 8)
            if p.w & c.srcc and not (p.w == c.srcc and p.passes == c.passes): n = max(n, 10 if big else 6)
            if p.w & c.w and not (p.w == c.srcc and p.passes == c.passes): n = max(n, 10 if big else 6)
        elif c.cls in ('valu', 'vmem', 'ds'):
            if p.w & (c.r | c.w): n = max(n, 12 if big else 8)
            if c.cls == 'valu' and p.srcc & c.w: n = max(n, 7 if big else 3)
    if p.cls == 'vmem' and p.widestore and c.cls in ('valu', 'mfma', 'ds', 'vmem') and p.srcc & c.w:
        n = max(n, 2)
    if p.cls == 'salu' and ('m0', 0) in p.w and c.lds_dma: n = max(n, 1)
    return n

class Asm:
    def __init__(self):
        self.lines = []
        self.hist = []
        self.vm = []
        self.lg = []
        self.marks = {}
        self.nbytes_guess = 0
    def raw(self, s):
        self.lines.append(s)
    def comment(self, s):
        self.lines.append('    ; ' + s)
    def label(self, name):
        self.lines.append(name + ':')
        self.marks[name] = len(self.hist_all) if hasattr(self, 'hist_all') else 0
    def _deficit(self, hist, c):
        d = 0; dist = 0
        for p in reversed(hist):
            n = need(p, c)
            if n > dist: d = max(d, n - dist)
            dist += p.slots
            if dist >= 24: break
        return d
    def __call__(self, text, tag=None):
        for t in text.split('\n'):
            t = t.strip()
            if not t: continue
            if t.startswith(';'):
                self.lines.append('    ' + t); continue
            if t.endswith(':'):
                self.label(t[:-1]); continue
            c = parse(t)
            d = self._deficit(self.hist, c)
            while d > 0:
                k = min(d, 16)
                nop = parse(f's_nop {k-1}')
                self._push(nop); d -= k
            self._push(c)
            if c.cls == 'vmem': self.vm.append(tag)
            if c.cls == 'ds': self.lg.append(tag)
    def _push(self, c):
        self.lines.append('    ' + c.text)
        self.hist.append(c)
        if not hasattr(self, 'hist_all'): self.hist_all = []
        self.hist_all.append(c)
        if len(self.hist) > 40: self.hist.pop(0)
    def check_backedge(self, name):
        start = self.marks[name]
        hist = list(self.hist)
        for c in self.hist_all[start:start + 30]:
            d = self._deficit(hist, c)
            if d > 0:
                raise RuntimeError(f'back-edge hazard at {name}: {c.text} needs {d} more states')
            hist.append(c)
    def vm_reset(self, tags=()): self.vm = list(tags)
    def lg_reset(self): self.lg = []
    def vm_count_after(self, tag):
        idx = max(i for i, t in enumerate(self.vm) if t == tag)
        return len(self.vm) - 1 - idx
    def vm_wait(self, tag, extra=''):
        if tag not in self.vm: return
        n = self.vm_count_after(tag)
        n = min(n, 63)
        self(f's_waitcnt vmcnt({n}){extra}')
        idx = len(self.vm) - n
        self.vm = [None] * 0 + self.vm[idx:] if n else []
    def vm_pending(self, tag): return tag in self.vm
    def lg_pending(self, tag): return tag in self.lg
    def lg_wait(self, tag):
        if tag not in self.lg: return
        idx = max(i for i, t in enumerate(self.lg) if t == tag)
        n = min(len(self.lg) - 1 - idx, 15)
        self(f's_waitcnt lgkmcnt({n})')
        self.lg = self.lg[len(self.lg) - n:] if n else []
    def lg_wait_all(self):
        self('s_waitcnt lgkmcnt(0)'); self.lg = []
    def vm_wait_all(self):
        self('s_waitcnt vmcnt(0)'); self.vm = []
    def text(self):
        return '\n'.join(self.lines) + '\n'

def vr(base, n=1, k='v'):
    return f'{k}{base}' if n == 1 else f'{k}[{base}:{base+n-1}]'
def ar(base, n=1): return vr(base, n, 'a')
def sr(base, n=1): return vr(base, n, 's')
```

```python
from common import *
import math

SLOT = 40960
NSLOT = 3
WIMG = 10240
L_STG = 3 * SLOT
L_ONES = L_STG + 3 * 10240
L_VS = 2 * SLOT
LDS_P1 = L_ONES + 64


def bs23(k):
    return (k & ~12) | ((k & 4) << 1) | ((k & 8) >> 1)


def emit_p1(a, cfg):
    st = cfg.get('store_flags', '')
    V = Alloc(1)
    vM, vQ, vT0, vT1, vT2, vT3 = V(), V(), V(), V(), V(), V()
    vXo0, vXo1, vWo = V(), V(), V()
    vXb0, vXb1, vWb, vWrB, vWrK, vHb0, vHb1, vHK = V(), V(), V(), V(), V(), V(), V(), V()
    vXa0, vXa1, vWa, vRa, vHa = V(), V(), V(), V(2), V()
    vSS = V(5)
    ACC = V(80, 4)
    FX = [V(20, 4), V(20, 4)]
    FW = [V(16, 4), V(16, 4)]
    vR = V(5)
    acc = lambda sub, T: ACC + (sub * 4 + T) * 4

    sI, sSlotR, sSlotW, sStage, sXoff, sWoff, sT, sT2, sHasR, sU, sM0b = range(S_T0 + 4, S_T0 + 15)
    sRb, sRs0, sRs1, sMul, sMuls = range(S_T0 + 15, S_T0 + 20)
    sQ3 = 82

    map_32x8(a, cfg.get('map1', '4x2'))
    a(f'v_and_b32 v{vM}, 15, v0')
    a(f'v_lshrrev_b32 v{vQ}, 4, v0')
    a(f's_and_b32 s{sT}, s{S_WAVE}, 1')
    a(f's_lshl_b32 s{sT}, s{sT}, 2')
    a(f'v_add_u32 v{vT0}, s{sT}, v{vQ}')
    a(f'v_and_b32 v{vT1}, 7, v0')
    a(f'v_xor_b32 v{vT0}, v{vT0}, v{vT1}')
    a(f'v_lshlrev_b32 v{vT0}, 4, v{vT0}')
    a(f's_lshl_b32 s{sT}, s{S_MT}, 6')
    a(f's_lshl_b32 s{sT2}, s{S_WAVE}, 3')
    a(f's_add_u32 s{sT}, s{sT}, s{sT2}')
    a(f's_sub_u32 s{sT}, s{sT}, 16')
    a(f'v_lshrrev_b32 v{vT1}, 3, v0')
    a(f'v_add_u32 v{vT1}, s{sT}, v{vT1}')
    a(f'v_add_u32 v{vT2}, 32, v{vT1}')
    a(f'v_max_i32 v{vT1}, 0, v{vT1}')
    a(f's_movk_i32 s{sT}, 1280')
    a(f'v_mad_u32_u24 v{vXo0}, v{vT1}, s{sT}, v{vT0}')
    a(f'v_mad_u32_u24 v{vXo1}, v{vT2}, s{sT}, v{vT0}')
    a(f'v_cmp_le_u32 vcc, 30, v0')
    a(f'v_subrev_u32 v{vT1}, 30, v0')
    a(f'v_cndmask_b32 v{vT1}, v0, v{vT1}, vcc')
    a(f'v_mov_b32 v{vT3}, 3840')
    a(f'v_cndmask_b32 v{vT2}, 0, v{vT3}, vcc')
    a(f'v_mul_u32_u24 v{vT3}, 26, v{vT1}')
    a(f'v_lshrrev_b32 v{vT3}, 8, v{vT3}')
    a(f's_movk_i32 s{sT}, 1120')
    a(f'v_mad_u32_u24 v{vT2}, v{vT3}, s{sT}, v{vT2}')
    a(f'v_lshl_add_u32 v{vT2}, v{vT1}, 4, v{vT2}')
    a(f's_mul_i32 s{sT}, s{S_NT}, 160')
    a(f's_mul_i32 s{sT2}, s{S_WAVE}, {16 * 3840}')
    a(f's_add_u32 s{sT}, s{sT}, s{sT2}')
    a(f'v_add_u32 v{vWo}, s{sT}, v{vT2}')
    a(f's_lshr_b32 s{sT}, s2, 3')
    a(f's_mul_i32 s{sStage}, s{sT}, 3')
    a(f's_mul_i32 s{sT}, s{sStage}, 6554')
    a(f's_lshr_b32 s{sT}, s{sT}, 16')
    a(f's_mul_i32 s{sT}, s{sT}, 10')
    a(f's_sub_u32 s{sStage}, s{sStage}, s{sT}')
    if not cfg.get('rotate', True):
        a(f's_mov_b32 s{sStage}, 0')
    a(f's_mul_i32 s{sM0b}, s{S_WAVE}, {8 * 960}')
    kernel_srds(a, ['x', 'wq', 'g', 'u', 'dn', 'ws'])

    uid = [0]

    def issue_stage(slot_reg_or_const):
        uid[0] += 1
        slot = slot_reg_or_const
        a(f's_lshl_b32 s{sXoff}, s{sStage}, 7')
        a(f's_mul_i32 s{sWoff}, s{sStage}, {64 * 3840}')
        a(f's_lshl_b32 s{sT}, s{S_WAVE}, 10')
        a(f's_add_u32 s{sT}, s{sT}, {slot}')
        a(f's_mov_b32 m0, s{sT}')
        a(f's_add_u32 s{sT2}, s{sXoff}, {32 * 1280}')
        a(f'buffer_load_dwordx4 v{vXo0}, s[{R_X}:{R_X+3}], s{sXoff} offen lds')
        a(f's_add_u32 m0, s{sT}, 4096')
        a(f's_cmp_ge_u32 s{S_WAVE}, 2')
        a(f'buffer_load_dwordx4 v{vXo1}, s[{R_X}:{R_X+3}], s{sXoff} offen lds')
        a(f's_cbranch_scc1 L_p1_x2_{uid[0]}')
        a(f's_add_u32 m0, s{sT}, 8192')
        a('s_nop 0')
        a(f'buffer_load_dwordx4 v{vXo1}, s[{R_X}:{R_X+3}], s{sT2} offen lds')
        a(f'L_p1_x2_{uid[0]}:')
        a(f's_add_u32 s{sT}, s{sM0b}, {slot}')
        a('s_mov_b32 exec_hi, 0x0fffffff')
        for j in range(8):
            a(f's_add_u32 m0, s{sT}, {WIMG + 960 * j}')
            a(f's_add_u32 s{sT2}, s{sWoff}, {bs23(2 * j) * 3840}')
            a(f'buffer_load_dwordx4 v{vWo}, s[{R_WQ}:{R_WQ+3}], s{sT2} offen lds')
        a('s_mov_b32 exec_hi, -1')
        a(f's_add_u32 s{sStage}, s{sStage}, 1')
        a(f's_cmp_eq_u32 s{sStage}, 10')
        a(f's_cselect_b32 s{sStage}, 0, s{sStage}')

    issue_stage(0)
    issue_stage(SLOT)

    a(f'v_lshrrev_b32 v{vT0}, 1, v{vM}')
    a(f'v_xor_b32 v{vT0}, v{vT0}, v{vQ}')
    a(f'v_lshlrev_b32 v{vT0}, 4, v{vT0}')
    a(f'v_lshl_add_u32 v{vXb0}, v{vM}, 7, v{vT0}')
    a(f'v_xor_b32 v{vXb1}, 64, v{vXb0}')
    a(f'v_cmp_eq_u32 vcc, 0, v{vM}')
    a(f'v_mov_b32 v{vT0}, {L_ONES}')
    a(f'v_cndmask_b32 v{vHb0}, v{vXb0}, v{vT0}, vcc')
    a(f'v_cndmask_b32 v{vHb1}, v{vXb1}, v{vT0}, vcc')
    a(f'v_cndmask_b32 v{vHK}, 1, 0, vcc')
    a(f'v_lshrrev_b32 v{vT0}, 1, v{vQ}')
    a(f'v_lshlrev_b32 v{vT0}, 4, v{vT0}')
    a(f'v_and_b32 v{vT1}, 1, v{vQ}')
    a(f'v_lshl_add_u32 v{vT0}, v{vT1}, 2, v{vT0}')
    a(f'v_lshrrev_b32 v{vT1}, 2, v{vM}')
    a(f'v_add_u32 v{vT0}, v{vT0}, v{vT1}')
    a(f'v_mul_u32_u24 v{vT0}, 480, v{vT0}')
    a(f's_mul_i32 s{sT}, s{S_WAVE}, 40')
    a(f's_add_u32 s{sT}, s{sT}, {WIMG}')
    a(f'v_add_u32 v{vT0}, s{sT}, v{vT0}')
    a(f'v_and_b32 v{vT1}, 3, v0')
    a(f'v_lshl_add_u32 v{vWb}, v{vT1}, 3, v{vT0}')
    a(f'v_add_u32 v{vWrB}, {160 + 32}, v{vT0}')
    a(f'v_add_u32 v{vT2}, 32, v{vT0}')
    a(f'v_cmp_eq_u32 vcc, 1, v{vT1}')
    a(f'v_cndmask_b32 v{vWrB}, v{vWrB}, v{vT2}, vcc')
    a(f'v_add_u32 v{vT2}, {320 + 32}, v{vT0}')
    a(f'v_cmp_eq_u32 vcc, 2, v{vT1}')
    a(f'v_cndmask_b32 v{vWrB}, v{vWrB}, v{vT2}, vcc')
    a(f'v_mov_b32 v{vT2}, {L_ONES}')
    a(f'v_cmp_eq_u32 vcc, 3, v{vT1}')
    a(f'v_cndmask_b32 v{vWrB}, v{vWrB}, v{vT2}, vcc')
    a(f'v_cndmask_b32 v{vWrK}, 1, 0, vcc')
    a(f'v_mov_b32 v{vT0}, 0x3f803f80')
    a(f'v_lshlrev_b32 v{vT1}, 2, v{vM}')
    a(f'v_add_u32 v{vT1}, {L_ONES}, v{vT1}')
    a(f'ds_write_b32 v{vT1}, v{vT0}')
    for i in range(80):
        a(f'v_mov_b32 v{ACC + i}, 0')
    for i in range(5):
        a(f'v_mov_b32 v{vSS + i}, 0')
    a(f's_lshl_b32 s{sU}, s2, 1')
    a(f's_add_u32 s{sU}, s{sU}, s{S_WAVE}')
    a(f's_add_u32 s{sT}, s2, 512')
    a(f's_cmp_lt_u32 s{S_WAVE}, 2')
    a(f's_cselect_b32 s{sU}, s{sU}, s{sT}')
    a(f's_cmp_eq_u32 s{S_WAVE}, 3')
    a(f's_cselect_b32 s{sU}, 1000, s{sU}')
    a(f's_mov_b32 s{sI}, 0')
    a(f's_mov_b32 s{sSlotR}, 0')
    a(f's_mov_b32 s{sSlotW}, {2 * SLOT}')
    a(f's_mov_b32 s{sQ3}, 0')
    a(f's_mov_b32 s{sQ3+1}, 0xffff0000')
    a('s_waitcnt vmcnt(10) lgkmcnt(0)')

    def reads(h):
        xa = vXa0 if h == 0 else vXa1
        a(f'v_mad_u32_u24 v{vHa}, v{vHK}, s{sSlotR}, v{vHb0 if h == 0 else vHb1}')
        a(f's_add_u32 s{sT}, s{sSlotR}, {h * 15360}')
        a(f'v_mad_u32_u24 v{vRa}, v{vWrK}, s{sT}, v{vWrB}')
        a(f's_add_u32 s{sT}, s{sSlotR}, {h * 15360 + 3840}')
        a(f'v_mad_u32_u24 v{vRa+1}, v{vWrK}, s{sT}, v{vWrB}')
        out = []
        for T in range(3):
            for hh in range(2):
                out.append(f'ds_read_b64_tr_b16 {vr(FW[h] + 4 * T + 2 * hh, 2)}, v{vWa} offset:{h * 15360 + hh * 3840 + T * 160}')
            if T == 0:
                out.append(f'ds_read_b128 {vr(FX[h], 4)}, v{vHa}')
                out.append(f'ds_read_b128 {vr(FX[h] + 4, 4)}, v{xa} offset:2048')
        for hh in range(2):
            out.append(f'ds_read_b64_tr_b16 {vr(FW[h] + 12 + 2 * hh, 2)}, v{vRa + hh}')
        for sub in range(2, 5):
            out.append(f'ds_read_b128 {vr(FX[h] + 4 * sub, 4)}, v{xa} offset:{sub * 2048}')
        return out

    def mfmas(h, fill):
        fill = list(fill)
        dots = [f'v_dot2c_f32_bf16 v{vSS + sub}, v{FX[h] + 4 * sub + i}, v{FX[h] + 4 * sub + i}'
                for sub in range(5) for i in range(4)]
        n = 0
        for sub in range(5):
            for T in range(4):
                a(f'v_mfma_f32_16x16x32_bf16 {vr(acc(sub, T), 4)}, {vr(FW[h] + 4 * T, 4)}, {vr(FX[h] + 4 * sub, 4)}, {vr(acc(sub, T), 4)}')
                a(dots[n])
                if fill: a(fill.pop(0))
                n += 1
        for f in fill: a(f)

    a('L_p1_loop:')
    a('s_barrier')
    a(f'v_add_u32 v{vXa0}, s{sSlotR}, v{vXb0}')
    a(f'v_add_u32 v{vXa1}, s{sSlotR}, v{vXb1}')
    a(f'v_add_u32 v{vWa}, s{sSlotR}, v{vWb}')
    for r in reads(0): a(r)
    a(f's_cmp_lt_u32 s{sI}, 8')
    a('s_cbranch_scc0 L_p1_noissue')
    issue_stage(f's{sSlotW}')
    a('s_branch L_p1_compute')
    a('L_p1_noissue:')
    a(f's_cmp_eq_u32 s{sI}, 8')
    a('s_cbranch_scc0 L_p1_compute')
    a(f's_cmp_ge_u32 s{sU}, 576')
    a('s_cbranch_scc1 L_p1_compute')
    a(f's_mul_i32 s{sRb}, s{S_WAVE}, 10240')
    a(f's_add_u32 s{sRb}, s{sRb}, {L_STG}')
    a(f's_cmp_ge_u32 s{sU}, 384')
    a('s_cbranch_scc1 L_p1_rd_issue')
    a(f's_mul_i32 s{sRs0}, s{sU}, 1366')
    a(f's_lshr_b32 s{sRs0}, s{sRs0}, 16')
    a(f's_mul_i32 s{sT}, s{sRs0}, 48')
    a(f's_sub_u32 s{sRs1}, s{sU}, s{sT}')
    a(f'v_lshrrev_b32 v{vT0}, 2, v0')
    a(f'v_mul_u32_u24 v{vT0}, 3072, v{vT0}')
    a(f'v_and_b32 v{vT1}, 3, v0')
    a(f'v_lshl_add_u32 v{vR}, v{vT1}, 4, v{vT0}')
    a(f's_mul_i32 s{sT}, s{sRs0}, {80 * 3072}')
    a(f's_lshl_b32 s{sT2}, s{sRs1}, 6')
    a(f's_add_u32 s{sT}, s{sT}, s{sT2}')
    for i in range(5):
        for mtx, R in enumerate((R_G, R_U)):
            a(f's_add_u32 m0, s{sRb}, {mtx * 5120 + i * 1024}')
            a(f's_add_u32 s{sT2}, s{sT}, {i * 16 * 3072}')
            a(f'buffer_load_dwordx4 v{vR}, s[{R}:{R+3}], s{sT2} offen lds')
    a('s_branch L_p1_compute')
    a('L_p1_rd_issue:')
    a(f's_sub_u32 s{sT}, s{sU}, 384')
    a(f's_lshr_b32 s{sRs0}, s{sT}, 3')
    a(f's_and_b32 s{sRs1}, s{sT}, 7')
    a(f's_movk_i32 s{sT}, 6554')
    a(f's_movk_i32 s{sT2}, 1120')
    for i in range(5):
        a(f'v_add_u32 v{vT0}, {64 * i}, v0')
        a(f'v_mul_u32_u24 v{vT1}, s{sT}, v{vT0}')
        a(f'v_lshrrev_b32 v{vT1}, 16, v{vT1}')
        a(f'v_lshlrev_b32 v{vT0}, 4, v{vT0}')
        a(f'v_mad_u32_u24 v{vR + i}, v{vT1}, s{sT2}, v{vT0}')
    a(f's_mul_i32 s{sT}, s{sRs0}, {64 * 1280}')
    a(f's_mul_i32 s{sT2}, s{sRs1}, 160')
    a(f's_add_u32 s{sT}, s{sT}, s{sT2}')
    a(f's_add_u32 s{sT2}, s{sT}, {32 * 1280}')
    for i in range(10):
        a(f's_add_u32 m0, s{sRb}, {i * 1024}')
        a('s_nop 0')
        a(f'buffer_load_dwordx4 v{vR + i % 5}, s[{R_DN}:{R_DN+3}], s{sT if i < 5 else sT2} offen lds')
    a('L_p1_compute:')
    r1 = reads(1)
    a('s_waitcnt lgkmcnt(0)')
    mfmas(0, r1)
    a('s_waitcnt lgkmcnt(0)')
    mfmas(1, [])
    a(f's_mov_b32 s{sSlotW}, s{sSlotR}')
    a(f's_add_u32 s{sSlotR}, s{sSlotR}, {SLOT}')
    a(f's_cmp_eq_u32 s{sSlotR}, {NSLOT * SLOT}')
    a(f's_cselect_b32 s{sSlotR}, 0, s{sSlotR}')
    a(f's_add_u32 s{sI}, s{sI}, 1')
    a(f's_cmp_eq_u32 s{sI}, 10')
    a('s_cbranch_scc1 L_p1_done')
    a(f's_cmp_lt_u32 s{sI}, 9')
    a('s_cbranch_scc1 L_p1_w10')
    a(f's_cmp_lt_u32 s{sU}, 576')
    a('s_cbranch_scc1 L_p1_w10')
    a('s_waitcnt vmcnt(0)')
    a('L_p1_w10:')
    a('s_waitcnt vmcnt(10)')
    a('s_branch L_p1_loop')
    a.check_backedge('L_p1_loop')
    a('L_p1_done:')

    E = Alloc(FX[0])
    vCS = E(16, 2)
    vRS, vNM, vRstd, vRstdR, vTm = E(5), E(6, 2), E(6, 2), E(6, 2), E(5)
    E2 = Alloc(vR + 5)
    KF = [E2(4, 2) for _ in range(5)]
    QF = [None] + [E2(4, 2) for _ in range(4)]
    VP = [E2(2, 2) for _ in range(5)]
    a.lg_reset()
    a(f'v_lshlrev_b32 v{vT0}, 2, v{vM}')
    a(f'v_add_u32 v{vT0}, {48 * 4}, v{vT0}')
    for sub in range(5):
        a(f'ds_bpermute_b32 v{vRS + sub}, v{vT0}, v{acc(sub, 3)}', tag='rs')
    for T in range(4):
        for r in range(4):
            a(f'v_mov_b32_dpp v{vCS + 4 * T + r}, v{acc(0, T) + r} row_newbcast:0 row_mask:0xf bank_mask:0xf')
    for sw in ('v_permlane16_swap_b32', 'v_permlane32_swap_b32'):
        for sub in range(5): a(f'v_mov_b32 v{vTm + sub}, v{vSS + sub}')
        for sub in range(5): a(f'{sw} v{vSS + sub}, v{vTm + sub}')
        for sub in range(5): a(f'v_add_f32 v{vSS + sub}, v{vSS + sub}, v{vTm + sub}')
    a.lg_wait('rs')
    a(f's_mov_b32 s{sT}, {f32(-1.0 / 640)}')
    a(f's_mov_b32 s{sT2}, {f32(1.0 / 640)}')
    for sub in range(5): a(f'v_mul_f32 v{vNM + sub}, s{sT}, v{vRS + sub}')
    for sub in range(5): a(f'v_mul_f32 v{vTm + sub}, v{vNM + sub}, v{vNM + sub}')
    for sub in range(5): a(f'v_fma_f32 v{vTm + sub}, v{vSS + sub}, s{sT2}, -v{vTm + sub}')
    for sub in range(5): a(f'v_max_f32 v{vTm + sub}, 0, v{vTm + sub}')
    for sub in range(5): a(f'v_add_f32 v{vTm + sub}, {f32(1e-5)}, v{vTm + sub}')
    for sub in range(5): a(f'v_rsq_f32 v{vRstd + sub}, v{vTm + sub}')
    for sub in range(5): a(f'v_cndmask_b32 v{vRstdR + sub}, v{vRstd + sub}, 0, s[{sQ3}:{sQ3+1}]')

    def bc(reg):
        return vr(reg & ~1, 2), reg & 1

    for sub in range(5):
        for T in range(4):
            if sub == 0 and T == 0: continue
            nm, nh = bc(vNM + sub)
            rs_, rh = bc((vRstdR if T == 3 else vRstd) + sub)
            for p in range(2):
                d = vr(acc(sub, T) + 2 * p, 2)
                a(f'v_pk_fma_f32 {d}, {vr(vCS + 4 * T + 2 * p, 2)}, {nm}, {d} op_sel:[0,{nh},0] op_sel_hi:[1,{nh},1]')
            for p in range(2):
                d = vr(acc(sub, T) + 2 * p, 2)
                a(f'v_pk_mul_f32 {d}, {d}, {rs_} op_sel:[0,{rh}] op_sel_hi:[1,{rh}]')
            dst = {0: QF[sub], 1: KF[sub], 2: VP[sub], 3: KF[sub] + 2}[T]
            for p in range(2):
                a(f'v_cvt_pk_bf16_f32 v{dst + p}, v{acc(sub, T) + 2 * p}, v{acc(sub, T) + 2 * p + 1}')
    vVw, vVr, vVr2 = vXa0, vXa1, vWa
    a(f's_mul_i32 s{sT}, s{S_WAVE}, 3328')
    a(f's_add_u32 s{sT}, s{sT}, {L_VS}')
    a(f'v_mul_u32_u24 v{vT0}, 40, v{vM}')
    a(f'v_add_u32 v{vT0}, s{sT}, v{vT0}')
    a(f'v_lshl_add_u32 v{vVw}, v{vQ}, 3, v{vT0}')
    for sub in range(5):
        a(f'ds_write_b64 v{vVw}, {vr(VP[sub], 2)} offset:{sub * 640}', tag='vw')
    a('s_mov_b32 exec_lo, 0')
    a('s_mov_b32 exec_hi, 0xffff')
    for sub in range(5):
        a(f'ds_write_b64 v{vT0}, {vr(KF[sub] + 2, 2)} offset:{sub * 640 + 32}', tag='vw')
    a('s_mov_b64 exec, -1')
    for sub in range(1, 5):
        for p in range(2): a(f'v_mov_b32 v{QF[sub] + 2 + p}, 0')
    for sub in range(1, 5):
        for p in range(2): a(f'v_permlane16_swap_b32 v{KF[sub] + 2 + p}, v{QF[sub] + 2 + p}')
    a(f'v_lshrrev_b32 v{vT1}, 2, v0')
    a(f'v_mul_u32_u24 v{vT1}, 40, v{vT1}')
    a(f'v_add_u32 v{vVr2}, s{sT}, v{vT1}')
    a(f'v_and_b32 v{vT1}, 3, v0')
    a(f'v_lshl_add_u32 v{vVr}, v{vT1}, 3, v{vVr2}')
    A2 = Alloc(ACC)
    VTM, VTR = A2(10, 2), A2(10, 2)
    SS_ = [None] + [A2(8, 4) for _ in range(4)]
    vB, vB0 = A2(8, 2), A2(4, 2)
    vMx, vSm, vTx = A2(4), A2(4), A2(4)
    a.lg_wait('vw')
    for sub in range(5):
        a(f'ds_read_b64_tr_b16 {vr(VTM + 2 * sub, 2)}, v{vVr} offset:{sub * 640}', tag='vt')
        a(f'ds_read_b64_tr_b16 {vr(VTR + 2 * sub, 2)}, v{vVr2} offset:{sub * 640 + 32}', tag='vt')
    for b in range(1, 5):
        a(f'v_mfma_f32_16x16x32_bf16 {vr(SS_[b], 4)}, {vr(KF[b - 1], 4)}, {vr(QF[b], 4)}, 0')
        a(f'v_mfma_f32_16x16x32_bf16 {vr(SS_[b] + 4, 4)}, {vr(KF[b], 4)}, {vr(QF[b], 4)}, 0')
    LOG2E = math.log2(math.e)
    csc = (20 ** -0.5) * LOG2E
    a(f'v_lshlrev_b32 v{vT0}, 2, v{vQ}')
    a(f'v_sub_u32 v{vT0}, v{vM}, v{vT0}')
    a(f'v_mov_b32 v{vT2}, {f32(-1e30)}')
    a(f's_cmp_eq_u32 s{S_MT}, 0')
    a(f's_cselect_b32 s{sT}, {f32(-1e9 * LOG2E)}, 0')
    a(f's_cselect_b32 s{sMul}, 0, {f32(csc)}')
    a(f'v_mov_b32 v{vT3}, s{sT}')
    for blk in range(2):
        for r in range(4):
            a(f'v_add_u32 v{vT1}, {16 - 16 * blk - r}, v{vT0}')
            a(f'v_and_b32 v{vT1}, 0xfffffff1, v{vT1}')
            a(f'v_cmp_eq_u32 vcc, 0, v{vT1}')
            a(f'v_cndmask_b32 v{vB + 4 * blk + r}, v{vT2}, 0, vcc')
            if blk == 0:
                a(f'v_cndmask_b32 v{vB0 + r}, v{vT2}, v{vT3}, vcc')
    a(f's_mov_b32 s{sT2}, {f32(csc)}')
    B4 = range(1, 5)
    for b in B4:
        for i in range(8):
            if b == 1 and i < 4:
                a(f'v_fma_f32 v{SS_[b] + i}, v{SS_[b] + i}, s{sMul}, v{vB0 + i}')
            else:
                a(f'v_fma_f32 v{SS_[b] + i}, v{SS_[b] + i}, s{sT2}, v{vB + i}')
    for b in B4: a(f'v_max3_f32 v{vMx + b - 1}, v{SS_[b]}, v{SS_[b] + 1}, v{SS_[b] + 2}')
    for b in B4: a(f'v_max3_f32 v{vMx + b - 1}, v{vMx + b - 1}, v{SS_[b] + 3}, v{SS_[b] + 4}')
    for b in B4: a(f'v_max3_f32 v{vMx + b - 1}, v{vMx + b - 1}, v{SS_[b] + 5}, v{SS_[b] + 6}')
    for b in B4: a(f'v_max_f32 v{vMx + b - 1}, v{vMx + b - 1}, v{SS_[b] + 7}')
    for sw in ('v_permlane16_swap_b32', 'v_permlane32_swap_b32'):
        for b in range(4): a(f'v_mov_b32 v{vTx + b}, v{vMx + b}')
        for b in range(4): a(f'{sw} v{vMx + b}, v{vTx + b}')
        for b in range(4): a(f'v_max_f32 v{vMx + b}, v{vMx + b}, v{vTx + b}')
    for b in B4:
        for i in range(8): a(f'v_sub_f32 v{SS_[b] + i}, v{SS_[b] + i}, v{vMx + b - 1}')
    for b in B4:
        for i in range(8): a(f'v_exp_f32 v{SS_[b] + i}, v{SS_[b] + i}')
    for b in B4: a(f'v_add_f32 v{vSm + b - 1}, v{SS_[b]}, v{SS_[b] + 1}')
    for i in range(2, 8):
        for b in B4: a(f'v_add_f32 v{vSm + b - 1}, v{vSm + b - 1}, v{SS_[b] + i}')
    for sw in ('v_permlane16_swap_b32', 'v_permlane32_swap_b32'):
        for b in range(4): a(f'v_mov_b32 v{vTx + b}, v{vSm + b}')
        for b in range(4): a(f'{sw} v{vSm + b}, v{vTx + b}')
        for b in range(4): a(f'v_add_f32 v{vSm + b}, v{vSm + b}, v{vTx + b}')
    for b in range(4): a(f'v_rcp_f32 v{vSm + b}, v{vSm + b}')
    for b in B4:
        for i in range(8): a(f'v_mul_f32 v{SS_[b] + i}, v{SS_[b] + i}, v{vSm + b - 1}')
    for b in B4:
        for p in range(4): a(f'v_cvt_pk_bf16_f32 v{QF[b] + p}, v{SS_[b] + 2 * p}, v{SS_[b] + 2 * p + 1}')
    a.lg_wait('vt')
    for b in B4:
        a(f'v_mfma_f32_16x16x32_bf16 {vr(SS_[b], 4)}, {vr(VTM + 2 * (b - 1), 4)}, {vr(QF[b], 4)}, 0')
        a(f'v_mfma_f32_16x16x32_bf16 {vr(SS_[b] + 4, 4)}, {vr(VTR + 2 * (b - 1), 4)}, {vr(QF[b], 4)}, 0')
    a(f's_lshr_b32 s{sT}, s{S_NT}, 1')
    a(f's_mul_i32 s{sT}, s{sT}, 20')
    a(f's_mul_i32 s{sT2}, s{S_MT}, {4 * 80}')
    a(f's_add_u32 s{sT}, s{sT}, s{sT2}')
    a(f's_and_b32 s{sT2}, s{S_NT}, 1')
    a(f's_lshl_b32 s{sMul}, s{sT2}, 3')
    a(f's_add_u32 s{sMul}, s{sMul}, s{sT}')
    a(f's_lshl_b32 s{sMuls}, s{S_WAVE}, 1')
    a(f's_add_u32 s{sMul}, s{sMul}, s{sMuls}')
    a(f's_lshl_b32 s{sMul}, s{sMul}, 8')
    a(f's_add_u32 s{sMul}, s{sMul}, {WS_AO}')
    a(f's_lshl_b32 s{sT2}, s{sT2}, 1')
    a(f's_add_u32 s{sT}, s{sT}, s{sT2}')
    a(f's_lshr_b32 s{sT2}, s{S_WAVE}, 1')
    a(f's_add_u32 s{sT}, s{sT}, s{sT2}')
    a(f's_lshl_b32 s{sT}, s{sT}, 8')
    a(f's_and_b32 s{sT2}, s{S_WAVE}, 1')
    a(f's_lshl_b32 s{sT2}, s{sT2}, 3')
    a(f's_add_u32 s{sT}, s{sT}, s{sT2}')
    a(f's_add_u32 s{sT}, s{sT}, {WS_AO + 16 * 256}')
    a(f'v_and_b32 v{vT0}, 1, v{vQ}')
    a(f'v_mul_u32_u24 v{vT0}, {80 * 256}, v{vT0}')
    a(f'v_lshrrev_b32 v{vT1}, 1, v{vQ}')
    a(f'v_lshl_add_u32 v{vT0}, v{vT1}, 8, v{vT0}')
    a(f'v_lshl_add_u32 v{vT0}, v{vM}, 4, v{vT0}')
    a(f'v_mul_u32_u24 v{vT1}, {80 * 256}, v{vQ}')
    a(f'v_lshl_add_u32 v{vT1}, v{vM}, 4, v{vT1}')
    OM = [KF[0], KF[1]]
    ORr = [None] + [VP[b] for b in B4]
    for pr in range(2):
        for k in range(2):
            b = 1 + 2 * pr + k
            for p in range(2):
                a(f'v_cvt_pk_bf16_f32 v{OM[pr] + 2 * k + p}, v{SS_[b] + 2 * p}, v{SS_[b] + 2 * p + 1}')
    for b in B4:
        for p in range(2):
            a(f'v_cvt_pk_bf16_f32 v{ORr[b] + p}, v{SS_[b] + 4 + 2 * p}, v{SS_[b] + 4 + 2 * p + 1}')
    for pr in range(2):
        for p in range(2): a(f'v_permlane16_swap_b32 v{OM[pr] + p}, v{OM[pr] + 2 + p}')
    a(f's_add_u32 s{sMuls}, s{sMul}, {2 * 80 * 256}')
    a(f'buffer_store_dwordx4 {vr(OM[0], 4)}, v{vT0}, s[{R_WS}:{R_WS+3}], s{sMul} offen {st}')
    a(f'buffer_store_dwordx4 {vr(OM[1], 4)}, v{vT0}, s[{R_WS}:{R_WS+3}], s{sMuls} offen {st}')
    for b in range(2, 5):
        a(f'v_cmp_eq_u32 vcc, {b - 1}, v{vQ}')
        for p in range(2): a(f'v_cndmask_b32 v{ORr[1] + p}, v{ORr[1] + p}, v{ORr[b] + p}, vcc')
    a(f'buffer_store_dwordx2 {vr(ORr[1], 2)}, v{vT1}, s[{R_WS}:{R_WS+3}], s{sT} offen {st}')

    a(f's_cmp_ge_u32 s{sU}, 576')
    a('s_cbranch_scc1 L_p1_end')
    RF = ACC
    vLo = vT3
    a(f'v_lshlrev_b32 v{vLo}, 4, v0')
    a('s_waitcnt vmcnt(3)')
    a(f's_cmp_ge_u32 s{sU}, 384')
    a('s_cbranch_scc1 L_p1_rd')
    vCa, vCb, vOne = vXa0, vXa1, vWa
    a(f'v_lshrrev_b32 v{vT0}, 1, v0')
    a(f'v_and_b32 v{vT0}, 1, v{vT0}')
    a(f'v_mul_u32_u24 v{vT0}, 5120, v{vT0}')
    a(f'v_and_b32 v{vT1}, 1, v0')
    a(f'v_lshl_add_u32 v{vT0}, v{vT1}, 3, v{vT0}')
    a(f'v_and_b32 v{vT1}, 1, v{vQ}')
    a(f'v_lshl_add_u32 v{vT0}, v{vT1}, 4, v{vT0}')
    a(f'v_lshrrev_b32 v{vT1}, 2, v{vM}')
    a(f'v_lshl_add_u32 v{vT0}, v{vT1}, 6, v{vT0}')
    a(f'v_add_u32 v{vT0}, s{sRb}, v{vT0}')
    a(f'v_lshrrev_b32 v{vT1}, 5, v0')
    a(f'v_lshl_add_u32 v{vT2}, v{vT1}, 9, v{vT0}')
    a(f'v_mul_u32_u24 v{vT1}, {40 * 64}, v{vT1}')
    a(f'v_add_u32 v{vT0}, v{vT1}, v{vT0}')
    a.lg_reset()
    for sl in range(2):
        for bp in range(5):
            f = RF + 4 * (sl * 5 + bp)
            for h in range(2):
                if bp < 4:
                    a(f'ds_read_b64_tr_b16 {vr(f + 2 * h, 2)}, v{vT2} offset:{bp * 1280 + h * 256 + 32 * sl}', tag=(sl, bp))
                else:
                    a(f'ds_read_b64_tr_b16 {vr(f + 2 * h, 2)}, v{vT0} offset:{16 * 64 + h * 1280 + 32 * sl}', tag=(sl, bp))
    a(f's_mul_i32 s{sT}, s{sRs1}, 21846')
    a(f's_lshr_b32 s{sT}, s{sT}, 16')
    a(f's_mul_i32 s{sT2}, s{sT}, 3')
    a(f's_sub_u32 s{sT2}, s{sRs1}, s{sT2}')
    a(f's_mul_i32 s{sT}, s{sT}, 240')
    a(f's_mul_i32 s{sMul}, s{sT2}, 80')
    a(f's_add_u32 s{sT}, s{sT}, s{sMul}')
    a(f's_cmp_eq_u32 s{sT2}, 0')
    a(f's_cselect_b32 s{sMul}, 2, 1')
    a(f's_cselect_b32 s{sMuls}, 1, 40')
    a(f's_lshl_b32 s{sMul}, s{sMul}, 10')
    a(f's_lshl_b32 s{sMuls}, s{sMuls}, 10')
    a(f's_lshl_b32 s{sT}, s{sT}, 10')
    a(f's_lshr_b32 s{sT2}, s{sRs0}, 1')
    a(f's_mul_i32 s{sT2}, s{sT2}, 10')
    a(f's_and_b32 s{sI}, s{sRs0}, 1')
    a(f's_add_u32 s{sXoff}, s{sT2}, s{sI}')
    a(f's_add_u32 s{sXoff}, s{sXoff}, 8')
    a(f's_lshl_b32 s{sI}, s{sI}, 2')
    a(f's_add_u32 s{sT2}, s{sT2}, s{sI}')
    a(f's_mul_i32 s{sT2}, s{sT2}, s{sMul}')
    a(f's_add_u32 s{sT2}, s{sT2}, s{sT}')
    a(f's_mul_i32 s{sXoff}, s{sXoff}, s{sMul}')
    a(f's_add_u32 s{sXoff}, s{sXoff}, s{sT}')
    a(f'v_mov_b32 v{vCa}, 0')
    a(f'v_mov_b32 v{vCb}, 0')
    a(f'v_mov_b32 v{vOne}, 0x3f803f80')
    for sl in range(2):
        if sl == 1:
            a(f's_add_u32 s{sT2}, s{sT2}, s{sMuls}')
            a(f's_add_u32 s{sXoff}, s{sXoff}, s{sMuls}')
        a(f's_mov_b32 s{sWoff}, s{sT2}')
        for bp in range(5):
            f = RF + 4 * (sl * 5 + bp)
            a.lg_wait((sl, bp))
            a(f'buffer_store_dwordx4 {vr(f, 4)}, v{vLo}, s[{R_WS}:{R_WS+3}], s{sWoff if bp < 4 else sXoff} offen {st}')
            if bp < 3: a(f's_add_u32 s{sWoff}, s{sWoff}, s{sMul}')
            for i in range(4): a(f'v_dot2c_f32_bf16 v{vCb if sl else vCa}, v{f + i}, v{vOne}')
    a(f'v_permlane32_swap_b32 v{vCa}, v{vCb}')
    a(f's_mul_i32 s{sT}, s{sRs0}, {3072 * 4}')
    a(f's_lshl_b32 s{sT2}, s{sRs1}, 8')
    a(f's_add_u32 s{sT}, s{sT}, s{sT2}')
    a(f's_add_u32 s{sT}, s{sT}, {WS_CS}')
    a(f'v_add_f32 v{vCa}, v{vCa}, v{vCb}')
    a(f'v_lshlrev_b32 v{vT0}, 2, v0')
    a(f'buffer_store_dword v{vCa}, v{vT0}, s[{R_WS}:{R_WS+3}], s{sT} offen {st}')
    a('s_branch L_p1_end')
    a('L_p1_rd:')
    a(f'v_lshrrev_b32 v{vT0}, 1, v{vQ}')
    a(f'v_lshlrev_b32 v{vT0}, 4, v{vT0}')
    a(f'v_and_b32 v{vT1}, 1, v{vQ}')
    a(f'v_lshl_add_u32 v{vT0}, v{vT1}, 2, v{vT0}')
    a(f'v_lshrrev_b32 v{vT1}, 2, v{vM}')
    a(f'v_add_u32 v{vT0}, v{vT0}, v{vT1}')
    a(f'v_mul_u32_u24 v{vT0}, 160, v{vT0}')
    a(f'v_and_b32 v{vT1}, 3, v0')
    a(f'v_mul_u32_u24 v{vT1}, 40, v{vT1}')
    a(f'v_add3_u32 v{vT0}, v{vT0}, v{vT1}, s{sRb}')
    a.lg_reset()
    for kb in range(2):
        for j in range(5):
            f = RF + 4 * (kb * 5 + j)
            for h in range(2):
                a(f'ds_read_b64_tr_b16 {vr(f + 2 * h, 2)}, v{vT0} offset:{kb * 5120 + h * 1280 + 8 * j}', tag=(kb, j))
    a(f's_mul_i32 s{sT}, s{sRs1}, 240')
    a(f's_mul_i32 s{sT2}, s{sRs0}, 10')
    a(f's_add_u32 s{sT}, s{sT}, s{sT2}')
    a(f's_lshl_b32 s{sT}, s{sT}, 10')
    a(f's_add_u32 s{sT}, s{sT}, {WS_WD}')
    for n in range(10):
        a.lg_wait((n // 5, n % 5))
        if n % 4 == 0 and n: a(f's_add_u32 s{sT}, s{sT}, 4096')
        a(f'buffer_store_dwordx4 {vr(RF + 4 * n, 4)}, v{vLo}, s[{R_WS}:{R_WS+3}], s{sT} offen offset:{(n % 4) * 1024} {st}')
    a('L_p1_end:')
    return max(V.n, E2.n)
```

```python
from common import *

P2_STG = 25600
P2_EX = 4 * P2_STG
LDS_P2 = P2_EX + 4 * 15360
LDS_P4 = 4 * 15360


def lane_ids(a, vM, vQ):
    a(f'v_and_b32 v{vM}, 15, v0')
    a(f'v_lshrrev_b32 v{vQ}, 4, v0')


def reduce_scatter(a, ACC, TMP, ex_base, vT0, vT1, sT, sT2):
    a(f'v_lshlrev_b32 v{vT0}, 4, v0')
    a.lg_reset()
    for i in range(1, 4):
        a(f's_add_u32 s{sT}, s{S_WAVE}, {i}')
        a(f's_and_b32 s{sT}, s{sT}, 3')
        a(f's_mul_i32 s{sT}, s{sT}, 15360')
        a(f's_add_u32 s{sT}, s{sT}, {ex_base + (i - 1) * 5120}')
        a(f'v_add_u32 v{vT1}, s{sT}, v{vT0}')
        for j in range(5):
            a(f'ds_write_b128 v{vT1}, {vr(ACC + (i * 5 + j) * 4, 4)} offset:{j * 1024}')
    a(f's_mul_i32 s{sT}, s{S_WAVE}, 15360')
    a(f's_add_u32 s{sT}, s{sT}, {ex_base}')
    a(f'v_add_u32 v{vT1}, s{sT}, v{vT0}')
    a.lg_wait_all()
    a('s_barrier')
    for n in range(15):
        a(f'ds_read_b128 {vr(TMP + 4 * n, 4)}, v{vT1} offset:{n * 1024}', tag=n)
    for n in range(15):
        a.lg_wait(n)
        j = n % 5
        for p in range(2):
            d = vr(ACC + j * 4 + 2 * p, 2)
            a(f'v_pk_add_f32 {d}, {d}, {vr(TMP + 4 * n + 2 * p, 2)}')


def add_residual(a, ACC, RES, H, TMP):
    for i in range(10):
        a(f'v_lshlrev_b32 v{TMP + 2 * i}, 16, v{RES + i}')
        a(f'v_and_b32 v{TMP + 2 * i + 1}, 0xffff0000, v{RES + i}')
    for i in range(10):
        d = vr(ACC + 2 * i, 2)
        a(f'v_pk_add_f32 {d}, {d}, {vr(TMP + 2 * i, 2)}')
    for i in range(10):
        a(f'v_cvt_pk_bf16_f32 v{H + i}, v{ACC + 2 * i}, v{ACC + 2 * i + 1}')


def act_addr(a, vMain, vRem, sMain, sRem, base, vM, vQ, vT, sT):
    a(f's_lshl_b32 s{sMain}, s{S_MT}, 2')
    a(f's_add_u32 s{sMain}, s{sMain}, s{S_WAVE}')
    a(f's_mul_i32 s{sMain}, s{sMain}, 80')
    a(f's_lshr_b32 s{sT}, s{S_NT}, 1')
    a(f's_mul_i32 s{sT}, s{sT}, 20')
    a(f's_add_u32 s{sMain}, s{sMain}, s{sT}')
    a(f's_and_b32 s{sT}, s{S_NT}, 1')
    a(f's_lshl_b32 s{sRem}, s{sT}, 1')
    a(f's_add_u32 s{sRem}, s{sRem}, s{sMain}')
    a(f's_lshl_b32 s{sRem}, s{sRem}, 8')
    a(f's_add_u32 s{sRem}, s{sRem}, {base + 16 * 256}')
    a(f's_lshl_b32 s{sT}, s{sT}, 3')
    a(f's_add_u32 s{sMain}, s{sMain}, s{sT}')
    a(f's_lshl_b32 s{sMain}, s{sMain}, 8')
    a(f's_add_u32 s{sMain}, s{sMain}, {base}')
    a(f'v_lshlrev_b32 v{vMain}, 4, v{vM}')
    a(f'v_lshrrev_b32 v{vT}, 1, v{vQ}')
    a(f'v_lshl_add_u32 v{vRem}, v{vT}, 8, v{vMain}')
    a(f'v_and_b32 v{vT}, 1, v{vQ}')
    a(f'v_lshl_add_u32 v{vRem}, v{vT}, 3, v{vRem}')
    a(f'v_lshl_add_u32 v{vMain}, v{vQ}, 9, v{vMain}')


def row_addr(a, vD, sD, vM, vQ, sT):
    a(f's_lshl_b32 s{sD}, s{S_MT}, 2')
    a(f's_add_u32 s{sD}, s{sD}, s{S_WAVE}')
    a(f's_mul_i32 s{sD}, s{sD}, {16 * 1280}')
    a(f's_mul_i32 s{sT}, s{S_NT}, 160')
    a(f's_add_u32 s{sD}, s{sD}, s{sT}')
    a(f'v_mul_u32_u24 v{vD}, 1280, v{vM}')
    a(f's_movk_i32 s{sT}, 40')
    a(f'v_mad_u32_u24 v{vD}, v{vQ}, s{sT}, v{vD}')


def emit_p2(a, cfg):
    st = cfg.get('store_flags', ''); ld = cfg.get('load_flags', '')
    V = Alloc(1)
    vM, vQ, vT0, vT1, vT2, vL16, vL16b, vBm, vBr, vXr, vMain, vRem = [V() for _ in range(12)]
    vR = V(5)
    RES = V(10, 2); H = V(10, 2); vSt = V(2, 2); vTs = V(2, 2)
    ACC = V(80, 4)
    AF = V(80, 4)
    sT, sT2, sStg, sMain, sRem, sXr = range(S_T0 + 4, S_T0 + 10)
    sA = S_T0 + 10
    map_32x8(a, cfg.get('map2', '4x2'))
    lane_ids(a, vM, vQ)
    a(f's_movk_i32 s{sT}, 6554')
    a(f's_movk_i32 s{sT2}, 1120')
    for i in range(5):
        a(f'v_add_u32 v{vT0}, {64 * i}, v0')
        a(f'v_mul_u32_u24 v{vT1}, s{sT}, v{vT0}')
        a(f'v_lshrrev_b32 v{vT1}, 16, v{vT1}')
        a(f'v_lshlrev_b32 v{vT0}, 4, v{vT0}')
        a(f'v_mad_u32_u24 v{vR + i}, v{vT1}, s{sT2}, v{vT0}')
    a(f'v_lshlrev_b32 v{vL16}, 4, v0')
    a(f'v_add_u32 v{vL16b}, 4096, v{vL16}')
    a(f's_mul_i32 s{sStg}, s{S_WAVE}, {P2_STG}')
    for i in range(4):
        a(f's_add_u32 s{sT}, s{S_WAVE}, {i}')
        a(f's_and_b32 s{sT}, s{sT}, 3')
        a(f's_lshl_b32 s{sT2}, s{S_MT}, 2')
        a(f's_add_u32 s{sT}, s{sT}, s{sT2}')
        a(f's_mul_i32 s{sT}, s{sT}, 80')
        a(f's_mul_i32 s{sT2}, s{S_WAVE}, 20')
        a(f's_add_u32 s{sT}, s{sT}, s{sT2}')
        a(f's_lshl_b32 s{sT}, s{sT}, 8')
        a(f's_add_u32 s{sA + i}, s{sT}, {WS_AO}')
    a(f's_mul_i32 s{sT}, s{S_WAVE}, {160 * 1280}')
    a(f's_mul_i32 s{sT2}, s{S_NT}, 160')
    a(f's_add_u32 s{sT}, s{sT}, s{sT2}')
    kernel_srds(a, ['x', 'wo', 'ws'])
    a.vm_reset()

    def a_load(i, kb):
        v, off = (vL16, kb * 1024) if kb < 4 else (vL16b, 0)
        a(f'buffer_load_dwordx4 {vr(AF + (i * 5 + kb) * 4, 4)}, v{v}, s[{R_WS}:{R_WS+3}], s{sA + i} offen offset:{off} {ld}', tag=('A', kb))
    for g5 in range(5):
        for i in range(5):
            a(f's_add_u32 m0, s{sStg}, {(g5 * 5 + i) * 1024}')
            a('s_nop 0')
            a(f'buffer_load_dwordx4 v{vR + i}, s[{R_WO}:{R_WO+3}], s{sT} offen lds', tag='W')
        if g5 < 4: a(f's_add_u32 s{sT}, s{sT}, {32 * 1280}')
    for kb in range(5):
        for i in range(4): a_load(i, kb)
    row_addr(a, vXr, sXr, vM, vQ, sT)
    a(f'buffer_load_dwordx4 {vr(RES, 4)}, v{vXr}, s[{R_X}:{R_X+3}], s{sXr} offen', tag='X')
    a(f'buffer_load_dwordx4 {vr(RES + 4, 4)}, v{vXr}, s[{R_X}:{R_X+3}], s{sXr} offen offset:16', tag='X')
    a(f'buffer_load_dwordx2 {vr(RES + 8, 2)}, v{vXr}, s[{R_X}:{R_X+3}], s{sXr} offen offset:32', tag='X')
    a(f'v_lshrrev_b32 v{vT0}, 1, v{vQ}')
    a(f'v_mul_u32_u24 v{vT0}, 20, v{vT0}')
    a(f'v_and_b32 v{vT1}, 1, v{vQ}')
    a(f'v_lshl_add_u32 v{vT0}, v{vT1}, 3, v{vT0}')
    a(f'v_lshrrev_b32 v{vT1}, 2, v{vM}')
    a(f'v_add_u32 v{vT0}, v{vT0}, v{vT1}')
    a(f'v_mul_u32_u24 v{vT0}, 160, v{vT0}')
    a(f'v_and_b32 v{vT2}, 3, v0')
    a(f'v_mul_u32_u24 v{vT2}, 40, v{vT2}')
    a(f'v_add3_u32 v{vBm}, v{vT0}, v{vT2}, s{sStg}')
    a(f'v_mul_u32_u24 v{vT0}, 40, v{vQ}')
    a(f'v_add_u32 v{vT0}, v{vT0}, v{vT1}')
    a(f'v_mul_u32_u24 v{vT0}, 160, v{vT0}')
    a(f'v_add3_u32 v{vBr}, v{vT0}, v{vT2}, s{sStg}')
    act_addr(a, vMain, vRem, sMain, sRem, WS_AH, vM, vQ, vT0, sT)
    a.vm_wait('W')
    a.lg_reset()
    for kb in range(5):
        for j in range(5):
            for h in range(2):
                d = ar((kb * 5 + j) * 4 + 2 * h, 2)
                if kb < 4:
                    a(f'ds_read_b64_tr_b16 {d}, v{vBm} offset:{kb * 6400 + h * 640 + 8 * j}', tag=(kb, j))
                else:
                    a(f'ds_read_b64_tr_b16 {d}, v{vBr} offset:{16 * 160 + h * 3200 + 8 * j}', tag=(kb, j))
        for kk in ([kb - 1] if kb else []) + ([4] if kb == 4 else []):
            a.vm_wait(('A', kk))
            for j in range(5):
                a.lg_wait((kk, j))
                for i in range(4):
                    c = vr(ACC + (i * 5 + j) * 4, 4)
                    a(f'v_mfma_f32_16x16x32_bf16 {c}, {ar((kk * 5 + j) * 4, 4)}, {vr(AF + (i * 5 + kk) * 4, 4)}, {c if kk else 0}')
    reduce_scatter(a, ACC, AF, P2_EX, vT0, vT1, sT, sT2)
    a.vm_wait('X')
    add_residual(a, ACC, RES, H, AF)
    a(f'buffer_store_dwordx4 {vr(H, 4)}, v{vMain}, s[{R_WS}:{R_WS+3}], s{sMain} offen {st}')
    a(f'buffer_store_dwordx4 {vr(H + 4, 4)}, v{vMain}, s[{R_WS}:{R_WS+3}], s{sMain} offen offset:256 {st}')
    a(f'buffer_store_dwordx2 {vr(H + 8, 2)}, v{vRem}, s[{R_WS}:{R_WS+3}], s{sRem} offen {st}')
    a(f'v_mov_b32 v{vSt}, 0')
    a(f'v_mov_b32 v{vSt + 1}, 0')
    a(f'v_mov_b32 v{vT0}, 0x3f803f80')
    for i in range(10):
        a(f'v_dot2c_f32_bf16 v{vSt}, v{H + i}, v{vT0}')
        a(f'v_dot2c_f32_bf16 v{vSt + 1}, v{H + i}, v{H + i}')
    a(f's_lshl_b32 s{sT}, s{S_MT}, 1')
    a(f's_lshr_b32 s{sT2}, s{S_WAVE}, 1')
    a(f's_add_u32 s{sT}, s{sT}, s{sT2}')
    a(f's_lshl_b32 s{sT}, s{sT}, 3')
    a(f's_add_u32 s{sT}, s{sT}, s{S_NT}')
    a(f's_lshl_b32 s{sT}, s{sT}, 8')
    a(f's_and_b32 s{sT2}, s{S_WAVE}, 1')
    a(f's_lshl_b32 s{sT2}, s{sT2}, 7')
    a(f's_add_u32 s{sT}, s{sT}, s{sT2}')
    a(f's_add_u32 s{sT}, s{sT}, {WS_HS}')
    a(f'v_lshlrev_b32 v{vT1}, 3, v{vM}')
    for sw in ('v_permlane16_swap_b32', 'v_permlane32_swap_b32'):
        for k in range(2): a(f'v_mov_b32 v{vTs + k}, v{vSt + k}')
        for k in range(2): a(f'{sw} v{vSt + k}, v{vTs + k}')
        for k in range(2): a(f'v_add_f32 v{vSt + k}, v{vSt + k}, v{vTs + k}')
    a('s_mov_b64 exec, 0xffff')
    a(f'buffer_store_dwordx2 {vr(vSt, 2)}, v{vT1}, s[{R_WS}:{R_WS+3}], s{sT} offen {st}')
    a('s_mov_b64 exec, -1')
    return V.n, 100


def emit_p4(a, cfg):
    ld = cfg.get('load_flags', '')
    V = Alloc(1)
    vM, vQ, vT0, vT1, vL16, vOut, vMain, vRem = [V() for _ in range(8)]
    RES = V(10, 2); H = V(10, 2)
    ACC = V(80, 4)
    NR = 8
    AF = V(NR * 16, 4)
    sT, sT2, sB, sMain, sRem, sOut = range(S_T0 + 4, S_T0 + 10)
    sA = S_T0 + 10
    map_32x8(a, cfg.get('map4', '4x2'))
    lane_ids(a, vM, vQ)
    a(f'v_lshlrev_b32 v{vL16}, 4, v0')
    for i in range(4):
        a(f's_add_u32 s{sT}, s{S_WAVE}, {i}')
        a(f's_and_b32 s{sT}, s{sT}, 3')
        a(f's_lshl_b32 s{sT2}, s{S_MT}, 2')
        a(f's_add_u32 s{sT}, s{sT}, s{sT2}')
        a(f's_mul_i32 s{sT}, s{sT}, 192')
        a(f's_mul_i32 s{sT2}, s{S_WAVE}, 48')
        a(f's_add_u32 s{sT}, s{sT}, s{sT2}')
        a(f's_lshl_b32 s{sT}, s{sT}, 8')
        a(f's_add_u32 s{sA + i}, s{sT}, {WS_AHH}')
    a(f's_mul_i32 s{sB}, s{S_NT}, 240')
    a(f's_mul_i32 s{sT}, s{S_WAVE}, 60')
    a(f's_add_u32 s{sB}, s{sB}, s{sT}')
    a(f's_lshl_b32 s{sB}, s{sB}, 10')
    a(f's_add_u32 s{sB}, s{sB}, {WS_WD}')
    kernel_srds(a, ['out', 'ws'])
    a.vm_reset()
    nb = [0]

    def b_loads(kb):
        for j in range(5):
            n = kb * 5 + j
            assert n == nb[0]
            if n and n % 4 == 0: a(f's_add_u32 s{sB}, s{sB}, 4096')
            a(f'buffer_load_dwordx4 {ar(n * 4, 4)}, v{vL16}, s[{R_WS}:{R_WS+3}], s{sB} offen offset:{(n % 4) * 1024} {ld}', tag=('B', kb))
            nb[0] += 1

    def a_loads(kb):
        for i in range(4):
            if kb and kb % 4 == 0: a(f's_add_u32 s{sA + i}, s{sA + i}, 4096')
            a(f'buffer_load_dwordx4 {vr(AF + ((kb % NR) * 4 + i) * 4, 4)}, v{vL16}, s[{R_WS}:{R_WS+3}], s{sA + i} offen offset:{(kb % 4) * 1024} {ld}', tag=('A', kb))
    PRE = 6
    for kb in range(PRE):
        b_loads(kb); a_loads(kb)
    act_addr(a, vMain, vRem, sMain, sRem, WS_AH, vM, vQ, vT0, sT)
    row_addr(a, vOut, sOut, vM, vQ, sT)
    for kb in range(12):
        a.vm_wait(('A', kb))
        for j in range(5):
            for i in range(4):
                c = vr(ACC + (i * 5 + j) * 4, 4)
                a(f'v_mfma_f32_16x16x32_bf16 {c}, {ar((kb * 5 + j) * 4, 4)}, {vr(AF + ((kb % NR) * 4 + i) * 4, 4)}, {c if kb else 0}')
            if j == 1 and kb + PRE < 12: b_loads(kb + PRE)
            if j == 3 and kb + PRE < 12: a_loads(kb + PRE)
            if j == 1 and kb == 6:
                a(f'buffer_load_dwordx4 {vr(RES, 4)}, v{vMain}, s[{R_WS}:{R_WS+3}], s{sMain} offen {ld}', tag='X')
                a(f'buffer_load_dwordx4 {vr(RES + 4, 4)}, v{vMain}, s[{R_WS}:{R_WS+3}], s{sMain} offen offset:256 {ld}', tag='X')
                a(f'buffer_load_dwordx2 {vr(RES + 8, 2)}, v{vRem}, s[{R_WS}:{R_WS+3}], s{sRem} offen {ld}', tag='X')
    reduce_scatter(a, ACC, AF, 0, vT0, vT1, sT, sT2)
    if a.vm_pending('X'): a.vm_wait('X')
    add_residual(a, ACC, RES, H, AF)
    a(f'buffer_store_dwordx4 {vr(H, 4)}, v{vOut}, s[{R_OUT}:{R_OUT+3}], s{sOut} offen')
    a(f'buffer_store_dwordx4 {vr(H + 4, 4)}, v{vOut}, s[{R_OUT}:{R_OUT+3}], s{sOut} offen offset:16')
    a(f'buffer_store_dwordx2 {vr(H + 8, 2)}, v{vOut}, s[{R_OUT}:{R_OUT+3}], s{sOut} offen offset:32')
    return V.n, 240
```

```python
from common import *
import math

STG = 24576
NSL = 6
L_CS = NSL * STG
LDS_P3 = L_CS + 1024
S_MT3, S_NF = S_MT, S_NT
NP1 = 2


def order():
    o = [(s, b) for b in range(40) for s in range(NP1)]
    o += [(s, b) for s in range(NP1, 6) for b in range(40)]
    return o


def map_16x16(a, mode):
    t = S_T0
    a(f's_and_b32 s{t}, s2, 7')
    a(f's_lshr_b32 s{t+1}, s2, 3')
    mg, ng = {'8x1': (8, 1), '4x2': (4, 2), '2x4': (2, 4), '1x8': (1, 8)}[mode]
    lm, ln = (16 // mg), (16 // ng)
    sh = ng.bit_length() - 1
    a(f's_lshr_b32 s{S_MT3}, s{t}, {sh}')
    a(f's_mul_i32 s{S_MT3}, s{S_MT3}, {lm}')
    a(f's_lshr_b32 s{t+2}, s{t+1}, {ln.bit_length() - 1}')
    a(f's_add_u32 s{S_MT3}, s{S_MT3}, s{t+2}')
    a(f's_and_b32 s{S_NF}, s{t}, {ng - 1}')
    a(f's_mul_i32 s{S_NF}, s{S_NF}, {ln}')
    a(f's_and_b32 s{t+2}, s{t+1}, {ln - 1}')
    a(f's_add_u32 s{S_NF}, s{S_NF}, s{t+2}')


def emit_p3(a, cfg):
    st = cfg.get('store_flags', ''); ld = cfg.get('load_flags', '')
    V = Alloc(1)
    vT0, vT1, vL16, vAo, vSo, vHo, vCsr = [V() for _ in range(7)]
    vLB = V(3)
    vNM, vRstd, vK1 = V(), V(), V()
    ST = V(8, 2)
    CSL = V(32, 4)
    ACC = V(64, 4)
    NF = 4
    WF = V(4 * NF, 4)
    EC = V(16, 4)
    EG, EP, EO = V(8, 2), V(8, 2), [V(4, 4), V(4, 4)]
    sT, sT2, sA, sBsrc, sM0, sH, sK1, sK2 = range(S_T0 + 4, S_T0 + 12)
    map_16x16(a, cfg.get('map3', '2x4'))
    a(f'v_lshlrev_b32 v{vL16}, 4, v0')
    a(f's_mul_i32 s{sBsrc}, s{S_NF}, {240 * 1024}')
    a(f's_mul_i32 s{sM0}, s{S_WAVE}, 6144')
    a(f's_add_u32 s{sBsrc}, s{sBsrc}, s{sM0}')
    a(f's_add_u32 s{sBsrc}, s{sBsrc}, {WS_WGU}')
    a(f'v_and_b32 v{vT0}, 15, v0')
    a(f'v_lshlrev_b32 v{vT0}, 4, v{vT0}')
    a(f'v_lshrrev_b32 v{vT1}, 5, v0')
    a(f'v_lshl_add_u32 v{vT0}, v{vT1}, 8, v{vT0}')
    a(f'v_bfe_u32 v{vT1}, v0, 4, 1')
    a(f's_movk_i32 s{sT}, {80 * 256}')
    a(f'v_mad_u32_u24 v{vAo}, v{vT1}, s{sT}, v{vT0}')
    a(f's_mov_b32 s{sT}, {192 * 256}')
    a(f'v_mad_u32_u24 v{vHo}, v{vT1}, s{sT}, v{vT0}')
    a(f's_lshl_b32 s{sT}, s{S_MT3}, 2')
    a(f's_add_u32 s{sT}, s{sT}, s{S_WAVE}')
    a(f's_mul_i32 s{sA}, s{sT}, {2 * 80 * 256}')
    a(f's_add_u32 s{sA}, s{sA}, {WS_AH}')
    a(f's_mul_i32 s{sH}, s{sT}, {2 * 192 * 256}')
    a(f's_mul_i32 s{sT2}, s{S_NF}, {12 * 256}')
    a(f's_add_u32 s{sH}, s{sH}, s{sT2}')
    a(f's_add_u32 s{sH}, s{sH}, {WS_AHH}')
    a(f's_lshl_b32 s{sK1}, s{sT}, 11')
    a(f's_add_u32 s{sK1}, s{sK1}, {WS_HS}')
    kernel_srds(a, ['ws'])
    a.vm_reset()

    def stage_dma(t):
        slot = (t % NSL) * STG
        for i in range(6):
            if i % 4 == 0:
                a(f's_add_u32 m0, s{sM0}, {slot + i * 1024}')
                a(f's_add_u32 s{sT}, s{sBsrc}, {t * STG + i * 1024}')
            a(f'buffer_load_dwordx4 v{vL16}, s[{R_WS}:{R_WS+3}], s{sT} offen offset:{(i % 4) * 1024} {ld} lds', tag=('S', t))

    def a_load(b):
        if b and b % 8 == 0: a(f's_add_u32 s{sA}, s{sA}, 4096')
        a(f'buffer_load_dwordx4 {ar(4 * b, 4)}, v{vAo}, s[{R_WS}:{R_WS+3}], s{sA} offen offset:{(b % 8) * 512} {ld}', tag=('A', b))

    def misc_loads():
        a(f'v_and_b32 v{vT0}, 31, v0')
        a(f'v_lshlrev_b32 v{vT0}, 3, v{vT0}')
        a(f'v_lshrrev_b32 v{vT1}, 5, v0')
        a(f'v_lshl_add_u32 v{vSo}, v{vT1}, 10, v{vT0}')
        for i in range(4):
            a(f'buffer_load_dwordx2 {vr(ST + 2 * i, 2)}, v{vSo}, s[{R_WS}:{R_WS+3}], s{sK1} offen offset:{i * 256} {ld}', tag='ST')
        a(f's_mul_i32 s{sT}, s{S_NF}, 768')
        a(f's_add_u32 s{sT}, s{sT}, {WS_CS}')
        for g in range(8):
            a(f'buffer_load_dwordx4 {vr(CSL + 4 * g, 4)}, v{vL16}, s[{R_WS}:{R_WS+3}], s{sT} offen {ld}', tag='CS')
            if g < 7: a(f's_add_u32 s{sT}, s{sT}, 12288')

    pend = []
    pend += [lambda: stage_dma(0)] + [(lambda b=b: a_load(b)) for b in range(12)]
    pend += [lambda: stage_dma(1)] + [(lambda b=b: a_load(b)) for b in range(12, 24)]
    pend += [lambda: stage_dma(2)] + [(lambda b=b: a_load(b)) for b in range(24, 36)]
    pend += [lambda: stage_dma(3)] + [(lambda b=b: a_load(b)) for b in range(36, 40)]
    pend += [misc_loads, lambda: stage_dma(4), lambda: stage_dma(5)]
    while len(a.vm) < 50: pend.pop(0)()
    for k in range(3):
        a(f'v_add_u32 v{vLB + k}, {k * 2 * STG}, v{vL16}')
    a(f'v_lshrrev_b32 v{vT1}, 5, v0')
    a(f'v_lshlrev_b32 v{vCsr}, 4, v{vT1}')
    a(f'v_add_u32 v{vCsr}, {L_CS}, v{vCsr}')
    c0 = -2.0 * math.sqrt(2.0 / math.pi) * math.log2(math.e)

    def prep():
        o = []
        o.append(('vm', 'ST'))
        for i in range(1, 4):
            o.append(f'v_add_f32 v{ST}, v{ST}, v{ST + 2 * i}')
            o.append(f'v_add_f32 v{ST + 1}, v{ST + 1}, v{ST + 2 * i + 1}')
        for k in range(2): o.append(f'v_mov_b32 v{ST + 2 + k}, v{ST + k}')
        for k in range(2): o.append(f'v_permlane32_swap_b32 v{ST + k}, v{ST + 2 + k}')
        for k in range(2): o.append(f'v_add_f32 v{ST + k}, v{ST + k}, v{ST + 2 + k}')
        o.append(f'v_mul_f32 v{vNM}, {f32(-1.0 / 640)}, v{ST}')
        o.append(f'v_mul_f32 v{ST + 1}, {f32(1.0 / 640)}, v{ST + 1}')
        o.append(f'v_fma_f32 v{ST + 1}, -v{vNM}, v{vNM}, v{ST + 1}')
        o.append(f'v_max_f32 v{ST + 1}, 0, v{ST + 1}')
        o.append(f'v_add_f32 v{ST + 1}, {f32(1e-5)}, v{ST + 1}')
        o.append(f'v_rsq_f32 v{vRstd}, v{ST + 1}')
        o.append(('vm', 'CS'))
        for g in range(1, 8):
            for k in range(4): o.append(f'v_add_f32 v{CSL + k}, v{CSL + k}, v{CSL + 4 * g + k}')
        o.append(f'v_add_u32 v{vT0}, {L_CS}, v{vL16}')
        o.append((f'ds_write_b128 v{vT0}, {vr(CSL, 4)}', 'csw'))
        o.append(f'v_mov_b32 v{vK1}, {f32(c0)}')
        o.append(f's_mov_b32 s{sK2}, {f32(c0 * 0.044715)}')
        return o

    def epilogue(s):
        A = ACC + 16 * (s % 4)
        O = EO[s % 2]
        o = [('lg', 'csw')]
        for q in range(4):
            o.append((f'ds_read_b128 {vr(EC + 4 * q, 4)}, v{vCsr} offset:{(s * 32 + 8 * q) * 4}', ('cs', s)))
        o.append(('lg', ('cs', s)))
        for i in range(16): o.append(f'v_fmac_f32 v{A + i}, v{vNM}, v{EC + i}')
        gi = [A + (i >> 2) * 8 + (i & 3) for i in range(8)]
        ui = [g + 4 for g in gi]
        for i in range(8): o.append(f'v_mul_f32 v{EG + i}, v{vRstd}, v{gi[i]}')
        for i in range(8): o.append(f'v_mul_f32 v{EP + i}, v{EG + i}, v{EG + i}')
        for i in range(8): o.append(f'v_mul_f32 v{ui[i]}, v{vRstd}, v{ui[i]}')
        for i in range(8): o.append(f'v_fma_f32 v{EP + i}, v{EP + i}, s{sK2}, v{vK1}')
        for i in range(8): o.append(f'v_mul_f32 v{EP + i}, v{EP + i}, v{EG + i}')
        for i in range(8): o.append(f'v_exp_f32 v{EP + i}, v{EP + i}')
        for i in range(8): o.append(f'v_mul_f32 v{ui[i]}, v{ui[i]}, v{EG + i}')
        for i in range(8): o.append(f'v_add_f32 v{EP + i}, 1.0, v{EP + i}')
        for i in range(8): o.append(f'v_rcp_f32 v{EP + i}, v{EP + i}')
        for i in range(8): o.append(f'v_mul_f32 v{ui[i]}, v{ui[i]}, v{EP + i}')
        for p in range(4): o.append(f'v_cvt_pk_bf16_f32 v{O + p}, v{ui[2 * p]}, v{ui[2 * p + 1]}')
        o.append(f'buffer_store_dwordx4 {vr(O, 4)}, v{vHo}, s[{R_WS}:{R_WS+3}], s{sH} offen offset:{s * 512} {st}')
        return o

    def run(x):
        if isinstance(x, tuple):
            if x[0] == 'vm': a.vm_wait(x[1])
            elif x[0] == 'lg': a.lg_wait(x[1])
            else: a(x[0], tag=x[1])
        else:
            a(x)

    seq = order()
    a.lg_reset()

    def w_read(p):
        t = p // 24
        if p % 24 == 0:
            a.vm_wait(('S', t))
            a('s_barrier')
            if 2 <= t and t + 4 < 10: pend.append(lambda t=t: stage_dma(t + 4))
        addr = (t % NSL) * STG + (p % 24) * 1024
        k = addr // (2 * STG)
        a(f'ds_read_b128 {vr(WF + 4 * (p % NF), 4)}, v{vLB + k} offset:{addr - k * 2 * STG}', tag=('w', p))
    for p in range(NF - 1): w_read(p)
    work = []
    prepped = False
    for p, (s, b) in enumerate(seq):
        if p + NF - 1 < 240: w_read(p + NF - 1)
        a.vm_wait(('A', b))
        a.lg_wait(('w', p))
        c = vr(ACC + 16 * (s % 4), 16)
        a(f'v_mfma_f32_32x32x16_bf16 {c}, {vr(WF + 4 * (p % NF), 4)}, {ar(4 * b, 4)}, {c if b else 0}')
        if pend and len(a.vm) < 56: pend.pop(0)()
        if p == 56: work += prep()
        if b == 39 and s < 5 and s >= NP1 - 1:
            for s2 in (range(NP1) if s == NP1 - 1 else [s]): work += [None] * 8 * (s2 == s and s >= NP1 or s2 == 0) + epilogue(s2)
        n = 0
        while work and n < 4:
            x = work.pop(0)
            if x is not None: run(x)
            n += 1
    assert not pend
    for x in work:
        if x is not None: run(x)
    for x in epilogue(5): run(x)
    return V.n, 160
```

```python
import sys, json
from common import *
import p1, p24, p3

NAME = 'sequential_preLN__sliding_local_dilated__glu_gated_geglu__prompt'

def build(cfg):
    a = Asm()
    launches = []
    descs = []
    body = []
    phases = cfg.get('phases', [1, 2, 3, 4])
    table = {1: ('p1_kernel', p1.emit_p1, p1.LDS_P1), 2: ('p2_kernel', p24.emit_p2, p24.LDS_P2),
             3: ('p3_kernel', p3.emit_p3, p3.LDS_P3), 4: ('p4_kernel', p24.emit_p4, p24.LDS_P4)}
    for ph in phases:
        name, fn, lds = table[ph]
        a = Asm()
        kernel_head(a, name, f'L_exit_{ph}', None)
        r = fn(a, cfg)
        nv, na = r if isinstance(r, tuple) else (r, 0)
        a(f'L_exit_{ph}:')
        a('s_endpgm')
        body.append(a.text())
        acc = (nv + 3) // 4 * 4
        descs.append(descriptor(name, acc + na if na else nv, acc))
        launches.append(f'; @launch kernel={name} grid=(256,1,1) block=(256,1,1) lds={lds}')
    head = open('cdna_kernels/' + NAME + '.s.ref').read().split('; Override')[0]
    out = head + '\n'.join(launches) + '\n.amdgcn_target "amdgcn-amd-amdhsa--gfx950"\n.text\n' + ''.join(body)
    out += '.section .rodata,"a"\n' + ''.join(descs)
    return out

if __name__ == '__main__':
    cfg = json.loads(sys.argv[2]) if len(sys.argv) > 2 else {}
    open(sys.argv[1], 'w').write(build(cfg))
```

```python
from dsl import *
import struct

S, D, DF = 2048, 640, 1536
X_BYTES = S * D * 2
WQKV_BYTES = D * 3 * D * 2
WO_BYTES = D * D * 2
WG_BYTES = D * DF * 2
WD_BYTES = DF * D * 2
OUT_BYTES = S * D * 2

WS_WGU = 0x000000
WS_WD = 0x3C0000
WS_CS = 0x5A0000
WS_AO = 0x600000
WS_AH = 0x880000
WS_HS = 0xB00000
WS_AHH = 0xC00000
WS_FLAGS = 0x1200000
WS_BYTES = 0x1300000

S_X, S_WQ, S_WO, S_G, S_U, S_DN, S_OUT, S_DBG, S_WS = 4, 6, 8, 12, 14, 16, 18, 20, 22
R_X, R_WQ, R_WO, R_G, R_U, R_DN, R_OUT, R_WS = 24, 28, 32, 36, 40, 44, 48, 52
S_WAVE = 56
S_MT = 57
S_NT = 58
S_T0 = 60


def f32(x):
    return '0x%08x' % struct.unpack('<I', struct.pack('<f', x))[0]


def srd(a, r, p, nbytes):
    a(f's_mov_b32 s{r}, s{p}')
    a(f's_and_b32 s{r+1}, s{p+1}, 0xffff')
    a(f's_mov_b32 s{r+2}, {nbytes}')
    a(f's_mov_b32 s{r+3}, 0x20000')


def kernel_head(a, name, end_label, stampit):
    a.raw(f'.globl {name}\n.p2align 8\n.type {name},@function\n{name}:')
    if stampit: stamp(a, {'stamp': stampit}, 0)
    a('s_load_dwordx16 s[4:19], s[0:1], 0')
    a('s_load_dwordx4 s[20:23], s[0:1], 64')
    a('s_cmp_ge_u32 s2, 256')
    a(f's_cbranch_scc1 {end_label}')
    a('v_lshrrev_b32 v1, 6, v0')
    a('v_and_b32 v0, 63, v0')
    a(f'v_readfirstlane_b32 s{S_WAVE}, v1')


SRD_TABLE = {'x': (R_X, S_X, X_BYTES), 'wq': (R_WQ, S_WQ, WQKV_BYTES), 'wo': (R_WO, S_WO, WO_BYTES),
             'g': (R_G, S_G, WG_BYTES), 'u': (R_U, S_U, WG_BYTES), 'dn': (R_DN, S_DN, WD_BYTES),
             'out': (R_OUT, S_OUT, OUT_BYTES), 'ws': (R_WS, S_WS, WS_BYTES)}


def kernel_srds(a, srds):
    a('s_waitcnt lgkmcnt(0)')
    for k in srds:
        srd(a, *SRD_TABLE[k])


def map_32x8(a, mode):
    t = S_T0
    a(f's_and_b32 s{t}, s2, 7')
    a(f's_lshr_b32 s{t+1}, s2, 3')
    if mode == '4x2':
        a(f's_lshr_b32 s{S_MT}, s{t}, 1')
        a(f's_lshl_b32 s{S_MT}, s{S_MT}, 3')
        a(f's_lshr_b32 s{t+2}, s{t+1}, 2')
        a(f's_add_u32 s{S_MT}, s{S_MT}, s{t+2}')
        a(f's_and_b32 s{S_NT}, s{t}, 1')
        a(f's_lshl_b32 s{S_NT}, s{S_NT}, 2')
        a(f's_and_b32 s{t+2}, s{t+1}, 3')
        a(f's_add_u32 s{S_NT}, s{S_NT}, s{t+2}')
    elif mode == '8x1':
        a(f's_lshl_b32 s{S_MT}, s{t}, 2')
        a(f's_lshr_b32 s{t+2}, s{t+1}, 3')
        a(f's_add_u32 s{S_MT}, s{S_MT}, s{t+2}')
        a(f's_and_b32 s{S_NT}, s{t+1}, 7')
    elif mode == '2x4':
        a(f's_lshr_b32 s{S_MT}, s{t}, 2')
        a(f's_lshl_b32 s{S_MT}, s{S_MT}, 4')
        a(f's_lshr_b32 s{t+2}, s{t+1}, 1')
        a(f's_add_u32 s{S_MT}, s{S_MT}, s{t+2}')
        a(f's_and_b32 s{S_NT}, s{t}, 3')
        a(f's_lshl_b32 s{S_NT}, s{S_NT}, 1')
        a(f's_and_b32 s{t+2}, s{t+1}, 1')
        a(f's_add_u32 s{S_NT}, s{S_NT}, s{t+2}')
    else:
        raise ValueError(mode)


def descriptor(name, nvgpr, accum, nsgpr=100):
    return (f'.p2align 6\n.amdhsa_kernel {name}\n  .amdhsa_next_free_vgpr {nvgpr}\n  .amdhsa_next_free_sgpr {nsgpr}\n'
            f'  .amdhsa_accum_offset {accum}\n  .amdhsa_group_segment_fixed_size 0\n  .amdhsa_kernarg_size 80\n'
            f'  .amdhsa_user_sgpr_count 2\n  .amdhsa_user_sgpr_kernarg_segment_ptr 1\n'
            f'  .amdhsa_system_sgpr_workgroup_id_x 1\n  .amdhsa_float_denorm_mode_32 3\n.end_amdhsa_kernel\n')


class Alloc:
    def __init__(self, start, limit=256):
        self.n = start; self.limit = limit
    def __call__(self, n=1, align=1):
        if n > 1 and align == 1: align = 2
        self.n = (self.n + align - 1) // align * align
        r = self.n; self.n += n
        assert self.n <= self.limit, f'out of registers: {self.n}'
        return r


WS_STAMP = 0x1280000
S_STAMP = 84
STAMP_IDS = [0, 1, 2, 3, 4, 5, 7, 8, 9, 11, 12, 14, 15, 17, 18, 19]


def stamp(a, cfg, idx):
    ids = cfg.get('stamp_ids', STAMP_IDS)
    if cfg.get('stamp') and idx in ids:
        op = 's_memtime' if cfg.get('stamp') == 'cyc' else 's_memrealtime'
        a(f'{op} s[100:101]')
        a('s_waitcnt lgkmcnt(0)')
        a(f's_mov_b32 s{S_STAMP + ids.index(idx)}, s100')


def stamp_flush(a, cfg):
    if not cfg.get('stamp'): return
    a('s_waitcnt vmcnt(0)')
    stamp(a, cfg, 19)
    a(f's_lshl_b32 s{S_T0}, s2, 2')
    a(f's_add_u32 s{S_T0}, s{S_T0}, s{S_WAVE}')
    a(f's_lshl_b32 s{S_T0}, s{S_T0}, 6')
    a(f's_add_u32 s{S_T0}, s{S_T0}, {WS_STAMP}')
    a('v_mov_b32 v1, 0')
    a('s_mov_b64 exec, 1')
    for i in range(16):
        a(f'v_mov_b32 v2, s{S_STAMP + i}')
        a(f'buffer_store_dword v2, v1, s[{R_WS}:{R_WS+3}], s{S_T0} offen offset:{4 * i}')
```

```python
import sys, json, math
from common import *

NAME = 'sequential_preLN__sliding_local_dilated__glu_gated_geglu__prompt'

SLOT = 40960
WIMG = 10240
L_STG = 3 * SLOT
L_ONES = L_STG + 3 * 10240
L_SQ = L_ONES + 64
L_NONCE = L_SQ + 320
L_VS = 102400
P2_STG = 25600
STG3 = 24576
L_EX2 = 4 * STG3
L_CS = L_EX2 + 61440
LDS_BYTES = 163840

WS_F1, WS_F2, WS_F3 = WS_FLAGS, WS_FLAGS + 0x1000, WS_FLAGS + 0x2000

vM, vQ, vL16, vT0, vT1, vT2, vT3 = 1, 2, 3, 4, 5, 6, 7
vPoll = 8
H = 16
LOC = 26
S_NONCE = 4
S_MT2, S_NT2, S_MT3, S_NF = 6, 7, 8, 9
R_A, R_B = 12, 16
NP1 = 2


def bs23(k):
    return (k & ~12) | ((k & 4) << 1) | ((k & 8) >> 1)


def order3():
    o = [(s, b) for b in range(40) for s in range(NP1)]
    o += [(s, b) for s in range(NP1, 6) for b in range(40)]
    return o


def weave(a, main, fill, lead=0, span=None):
    fill = list(fill)
    n = len(main)
    span = span or (n - lead)
    done = 0
    for i, m in enumerate(main):
        a(m)
        if i >= lead:
            want = min(len(fill), ((i - lead + 1) * len(fill) + span - 1) // span)
            while done < want:
                a(fill[done]); done += 1
    while done < len(fill):
        a(fill[done]); done += 1


def xcd_map(a, dM, dN, nM, nN, mode):
    mg, ng = (int(x) for x in mode.split('x'))
    lm, ln = nM // mg, nN // ng
    t = S_T0
    a(f's_and_b32 s{t}, s2, 7')
    a(f's_lshr_b32 s{t+1}, s2, 3')
    a(f's_lshr_b32 s{dM}, s{t}, {ng.bit_length() - 1}')
    a(f's_mul_i32 s{dM}, s{dM}, {lm}')
    a(f's_lshr_b32 s{t+2}, s{t+1}, {ln.bit_length() - 1}')
    a(f's_add_u32 s{dM}, s{dM}, s{t+2}')
    a(f's_and_b32 s{dN}, s{t}, {ng - 1}')
    a(f's_mul_i32 s{dN}, s{dN}, {ln}')
    a(f's_and_b32 s{t+2}, s{t+1}, {ln - 1}')
    a(f's_add_u32 s{dN}, s{dN}, s{t+2}')


def signal(a, base, sRow, sCol, ncol, tag):
    sT = S_T0
    a('s_waitcnt vmcnt(0) lgkmcnt(0)')
    a.vm_reset(); a.lg_reset()
    a('s_barrier')


def publish(a, base, sRow, sCol, ncol, tag):
    sT = S_T0
    a(f's_cmp_lg_u32 s{S_WAVE}, 0')
    a(f's_cbranch_scc1 L_pub_{tag}')
    a(f's_mul_i32 s{sT}, s{sRow}, {ncol}')
    a(f's_add_u32 s{sT}, s{sT}, s{sCol}')
    a(f's_lshl_b32 s{sT}, s{sT}, 3')
    a(f's_add_u32 s{sT}, s{sT}, {base}')
    a(f'v_mov_b32 v{vPoll}, s{S_NONCE}')
    a(f'v_mov_b32 v{vPoll + 1}, s{S_NONCE + 1}')
    a(f'v_mov_b32 v{vPoll + 2}, 0')
    a('s_mov_b64 exec, 1')
    a(f'buffer_store_dwordx2 {vr(vPoll, 2)}, v{vPoll + 2}, s[{R_WS}:{R_WS+3}], s{sT} offen sc1')
    a('s_mov_b64 exec, -1')
    a(f'L_pub_{tag}:')


def poll(a, sBase, n, tag):
    sC, sX = S_T0, S_T0 + 2
    a(f's_mov_b32 s{sC}, 0')
    if n <= 64:
        a(f'v_and_b32 v{vT0}, {n - 1}, v0')
        a(f'v_lshlrev_b32 v{vT0}, 3, v{vT0}')
    a(f'L_poll_{tag}:')
    if n <= 64:
        a(f'buffer_load_dwordx2 {vr(vPoll, 2)}, v{vT0}, s[{R_WS}:{R_WS+3}], s{sBase} offen sc1')
        a('s_waitcnt vmcnt(0)')
        a(f'v_cmp_ne_u64 vcc, s[{S_NONCE}:{S_NONCE+1}], {vr(vPoll, 2)}')
    else:
        a(f'buffer_load_dwordx4 {vr(vPoll, 4)}, v{vL16}, s[{R_WS}:{R_WS+3}], s{sBase} offen sc1')
        a(f'buffer_load_dwordx4 {vr(vPoll + 4, 4)}, v{vL16}, s[{R_WS}:{R_WS+3}], s{sBase} offen offset:1024 sc1')
        a('s_waitcnt vmcnt(0)')
        a(f'v_cmp_ne_u64 vcc, s[{S_NONCE}:{S_NONCE+1}], {vr(vPoll, 2)}')
        for k in range(1, 4):
            a(f'v_cmp_ne_u64 s[{sX}:{sX+1}], s[{S_NONCE}:{S_NONCE+1}], {vr(vPoll + 2 * k, 2)}')
            a(f's_or_b64 vcc, vcc, s[{sX}:{sX+1}]')
    a('s_cmp_eq_u64 vcc, 0')
    a(f's_cbranch_scc1 L_polled_{tag}')
    a(f's_add_u32 s{sC}, s{sC}, 1')
    a(f's_cmp_lt_u32 s{sC}, 0x20000')
    a(f's_cbranch_scc1 L_poll_{tag}')
    a(f'L_polled_{tag}:')
    a.vm_reset()


def phase1(a, cfg):
    st = 'sc1'
    V = Alloc(LOC)
    vXo0, vXo1, vWo = V(), V(), V()
    vXb0, vXb1, vWb, vWrB, vWrK, vHb0, vHb1, vHK, vOb0, vOb1 = [V() for _ in range(10)]
    vXa0, vXa1, vWa, vHa, vOa = [V() for _ in range(5)]
    vRa = V(2)
    vR, vR2 = V(5), V(5)
    vNon = V(4, 2)
    SQ = V(8, 4)
    ACC = V(80, 4)
    FX = [V(24, 4), V(24, 4)]
    FW = [V(16, 4), V(16, 4)]
    acc = lambda sub, T: ACC + (sub * 4 + T) * 4
    sT, sT2, sI, sSlotR, sSlotW, sStage, sXoff, sWoff, sU, sM0x, sM0w = range(S_T0 + 3, S_T0 + 14)
    sMul, sMuls, sRb, sRs0, sRs1, sRoA, sRoB, sRstr, sWo, sWoM = range(S_T0 + 14, S_T0 + 24)

    xcd_map(a, S_MT, S_NT, 32, 8, cfg.get('map1', '4x2'))
    a(f's_and_b32 s{sT}, s{S_WAVE}, 1')
    a(f's_lshl_b32 s{sT}, s{sT}, 2')
    a(f'v_add_u32 v{vT0}, s{sT}, v{vQ}')
    a(f'v_and_b32 v{vT1}, 7, v0')
    a(f'v_xor_b32 v{vT0}, v{vT0}, v{vT1}')
    a(f'v_lshlrev_b32 v{vT0}, 4, v{vT0}')
    a(f's_lshl_b32 s{sT}, s{S_MT}, 6')
    a(f's_lshl_b32 s{sT2}, s{S_WAVE}, 3')
    a(f's_add_u32 s{sT}, s{sT}, s{sT2}')
    a(f's_sub_u32 s{sT}, s{sT}, 16')
    a(f'v_lshrrev_b32 v{vT1}, 3, v0')
    a(f'v_add_u32 v{vT1}, s{sT}, v{vT1}')
    a(f'v_add_u32 v{vT2}, 32, v{vT1}')
    a(f'v_max_i32 v{vT1}, 0, v{vT1}')
    a(f's_movk_i32 s{sT}, 1280')
    a(f'v_mad_u32_u24 v{vXo0}, v{vT1}, s{sT}, v{vT0}')
    a(f'v_mad_u32_u24 v{vXo1}, v{vT2}, s{sT}, v{vT0}')
    a(f'v_cmp_le_u32 vcc, 30, v0')
    a(f'v_subrev_u32 v{vT1}, 30, v0')
    a(f'v_mov_b32 v{vT3}, 3840')
    a(f'v_cndmask_b32 v{vT1}, v0, v{vT1}, vcc')
    a(f'v_cndmask_b32 v{vT2}, 0, v{vT3}, vcc')
    a(f'v_mul_u32_u24 v{vT3}, 26, v{vT1}')
    a(f'v_lshrrev_b32 v{vT3}, 8, v{vT3}')
    a(f's_movk_i32 s{sT}, 1120')
    a(f'v_mad_u32_u24 v{vT2}, v{vT3}, s{sT}, v{vT2}')
    a(f'v_lshl_add_u32 v{vT2}, v{vT1}, 4, v{vT2}')
    a(f's_mul_i32 s{sT}, s{S_NT}, 160')
    a(f's_mul_i32 s{sT2}, s{S_WAVE}, {16 * 3840}')
    a(f's_add_u32 s{sT}, s{sT}, s{sT2}')
    a(f'v_add_u32 v{vWo}, s{sT}, v{vT2}')
    a(f's_lshr_b32 s{sT}, s2, 3')
    a(f's_mul_i32 s{sStage}, s{sT}, 3')
    a(f's_mul_i32 s{sT}, s{sStage}, 6554')
    a(f's_lshr_b32 s{sT}, s{sT}, 16')
    a(f's_mul_i32 s{sT}, s{sT}, 10')
    a(f's_sub_u32 s{sStage}, s{sStage}, s{sT}')
    a(f's_lshl_b32 s{sM0x}, s{S_WAVE}, 10')
    a(f's_mul_i32 s{sM0w}, s{S_WAVE}, {8 * 960}')
    a(f's_add_u32 s{sM0w}, s{sM0w}, {WIMG}')
    kernel_srds(a, ['x', 'wq'])
    stamp(a, cfg, 1)
    uid = [0]

    def w_dma(j):
        return (f's_add_u32 s{sT}, s{sM0w}, s{sSlotW}\n' if j in (0, 3) else '') + \
            (f's_add_u32 m0, s{sT}, {960 * j}\n'
             f's_add_u32 s{sT2}, s{sWoff}, {bs23(2 * j) * 3840}\n'
             f's_mov_b32 exec_hi, 0x0fffffff\n'
             f'buffer_load_dwordx4 v{vWo}, s[{R_WQ}:{R_WQ+3}], s{sT2} offen lds\n'
             f's_mov_b32 exec_hi, -1')

    def first_half():
        uid[0] += 1
        o = [f's_lshl_b32 s{sXoff}, s{sStage}, 7\n'
             f's_mul_i32 s{sWoff}, s{sStage}, {64 * 3840}\n'
             f's_add_u32 m0, s{sM0x}, s{sSlotW}\n'
             f's_add_u32 s{sStage}, s{sStage}, 1\n'
             f'buffer_load_dwordx4 v{vXo0}, s[{R_X}:{R_X+3}], s{sXoff} offen lds',
             f's_add_u32 m0, m0, 4096\n'
             f's_cmp_eq_u32 s{sStage}, 10\n'
             f'buffer_load_dwordx4 v{vXo1}, s[{R_X}:{R_X+3}], s{sXoff} offen lds\n'
             f's_cselect_b32 s{sStage}, 0, s{sStage}',
             f's_cmp_ge_u32 s{S_WAVE}, 2\n'
             f's_cbranch_scc1 L_p1_x2_{uid[0]}\n'
             f's_add_u32 m0, m0, 4096\n'
             f's_add_u32 s{sT2}, s{sXoff}, {32 * 1280}\n'
             f'buffer_load_dwordx4 v{vXo1}, s[{R_X}:{R_X+3}], s{sT2} offen lds\n'
             f'L_p1_x2_{uid[0]}:']
        return o + [w_dma(j) for j in range(3)]

    def second_half():
        return [w_dma(j) for j in range(3, 8)]

    for slot in (2 * SLOT, 0):
        a(f's_mov_b32 s{sSlotW}, {slot}')
        for x in first_half() + second_half(): a(x)
    a(f's_mov_b32 s{sSlotW}, {SLOT}')
    for x in first_half(): a(x)
    a(f's_mov_b32 s{sSlotR}, {2 * SLOT}')
    a(f's_cmp_lg_u32 s{S_WAVE}, 0')
    a('s_cbranch_scc1 L_p1_notag')
    a(f's_memrealtime s[{sMul}:{sMul+1}]')
    a(f'v_mov_b32 v{vNon + 2}, 0')
    a(f'v_mov_b32 v{vNon + 3}, 0')
    a('s_waitcnt lgkmcnt(0)')
    a(f's_or_b32 s{sMul}, s{sMul}, 1')
    a(f'v_mov_b32 v{vNon}, s{sMul}')
    a(f'v_mov_b32 v{vNon + 1}, s{sMul+1}')
    a('s_mov_b64 exec, 1')
    a(f'global_atomic_cmpswap_x2 {vr(vPoll, 2)}, v{vNon + 2}, {vr(vNon, 4)}, s[{S_DBG}:{S_DBG+1}] sc0 sc1')
    a('s_mov_b64 exec, -1')
    a('L_p1_notag:')

    for k in ('wo', 'g', 'u', 'dn', 'out', 'ws'):
        srd(a, *SRD_TABLE[k])
    xcd_map(a, S_MT2, S_NT2, 32, 8, cfg.get('map2', '4x2'))
    xcd_map(a, S_MT3, S_NF, 16, 16, cfg.get('map3', '4x2'))
    a(f's_movk_i32 s{sT}, 6554')
    a(f's_movk_i32 s{sT2}, 1120')
    for i in range(5):
        a(f'v_add_u32 v{vT0}, {64 * i}, v0')
        a(f'v_mul_u32_u24 v{vT1}, s{sT}, v{vT0}')
        a(f'v_lshrrev_b32 v{vT1}, 16, v{vT1}')
        a(f'v_lshlrev_b32 v{vT0}, 4, v{vT0}')
        a(f'v_mad_u32_u24 v{vR + i}, v{vT1}, s{sT2}, v{vT0}')
    a(f's_mul_i32 s{sWo}, s{S_WAVE}, {32 * 1280}')
    a(f's_mul_i32 s{sT}, s{S_NT2}, 160')
    a(f's_add_u32 s{sWo}, s{sWo}, s{sT}')
    a(f's_mul_i32 s{sWoM}, s{S_WAVE}, 5120')
    a(f's_lshl_b32 s{sU}, s2, 1')
    a(f's_add_u32 s{sU}, s{sU}, s{S_WAVE}')
    a(f's_add_u32 s{sT}, s2, 512')
    a(f's_cmp_lt_u32 s{S_WAVE}, 2')
    a(f's_cselect_b32 s{sU}, s{sU}, s{sT}')
    a(f's_cmp_eq_u32 s{S_WAVE}, 3')
    a(f's_cselect_b32 s{sU}, 1000, s{sU}')
    a(f's_mul_i32 s{sRb}, s{S_WAVE}, 10240')
    a(f's_add_u32 s{sRb}, s{sRb}, {L_STG}')
    a(f's_cmp_ge_u32 s{sU}, 384')
    a('s_cbranch_scc1 L_p1_udown')
    a(f's_mul_i32 s{sRs0}, s{sU}, 1366')
    a(f's_lshr_b32 s{sRs0}, s{sRs0}, 16')
    a(f's_mul_i32 s{sT}, s{sRs0}, 48')
    a(f's_sub_u32 s{sRs1}, s{sU}, s{sT}')
    a(f'v_lshrrev_b32 v{vT0}, 2, v0')
    a(f'v_mul_u32_u24 v{vT0}, 3072, v{vT0}')
    a(f'v_and_b32 v{vT1}, 3, v0')
    for i in range(5): a(f'v_lshl_add_u32 v{vR2 + i}, v{vT1}, 4, v{vT0}')
    a(f's_mul_i32 s{sRoA}, s{sRs0}, {80 * 3072}')
    a(f's_lshl_b32 s{sT2}, s{sRs1}, 6')
    a(f's_add_u32 s{sRoA}, s{sRoA}, s{sT2}')
    a(f's_mov_b32 s{sRoB}, s{sRoA}')
    a(f's_mov_b32 s{sRstr}, {16 * 3072}')
    a(f's_mov_b64 s[{R_A}:{R_A+1}], s[{R_G}:{R_G+1}]')
    a(f's_mov_b64 s[{R_B}:{R_B+1}], s[{R_U}:{R_U+1}]')
    a('s_branch L_p1_uset')
    a('L_p1_udown:')
    a(f's_sub_u32 s{sT}, s{sU}, 384')
    a(f's_lshr_b32 s{sRs0}, s{sT}, 3')
    a(f's_and_b32 s{sRs1}, s{sT}, 7')
    for i in range(5): a(f'v_mov_b32 v{vR2 + i}, v{vR + i}')
    a(f's_mul_i32 s{sRoA}, s{sRs0}, {64 * 1280}')
    a(f's_mul_i32 s{sT2}, s{sRs1}, 160')
    a(f's_add_u32 s{sRoA}, s{sRoA}, s{sT2}')
    a(f's_add_u32 s{sRoB}, s{sRoA}, {32 * 1280}')
    a(f's_mov_b32 s{sRstr}, 0')
    a(f's_mov_b64 s[{R_A}:{R_A+1}], s[{R_DN}:{R_DN+1}]')
    a(f's_mov_b64 s[{R_B}:{R_B+1}], s[{R_DN}:{R_DN+1}]')
    a('L_p1_uset:')
    a(f's_cmp_lt_u32 s{sU}, 576')
    a(f's_cselect_b32 s{R_A+2}, {WG_BYTES}, 0')
    a(f's_cselect_b32 s{R_B+2}, {WG_BYTES}, 0')
    a(f's_cselect_b32 s{sRb}, s{sRb}, 0x30000')
    a(f's_mov_b32 s{R_A+3}, 0x20000')
    a(f's_mov_b32 s{R_B+3}, 0x20000')

    a(f'v_lshrrev_b32 v{vT0}, 1, v{vM}')
    a(f'v_xor_b32 v{vT0}, v{vT0}, v{vQ}')
    a(f'v_lshlrev_b32 v{vT0}, 4, v{vT0}')
    a(f'v_lshl_add_u32 v{vXb0}, v{vM}, 7, v{vT0}')
    a(f'v_xor_b32 v{vXb1}, 64, v{vXb0}')
    a(f's_lshl_b32 s{sT}, s{S_WAVE}, 11')
    a(f's_add_u32 s{sT}, s{sT}, 2048')
    a(f'v_add_u32 v{vOb0}, s{sT}, v{vXb0}')
    a(f'v_add_u32 v{vOb1}, s{sT}, v{vXb1}')
    a(f'v_cmp_eq_u32 vcc, 0, v{vM}')
    a(f'v_mov_b32 v{vT0}, {L_ONES}')
    a(f'v_cndmask_b32 v{vHb0}, v{vXb0}, v{vT0}, vcc')
    a(f'v_cndmask_b32 v{vHb1}, v{vXb1}, v{vT0}, vcc')
    a(f'v_cndmask_b32 v{vHK}, 1, 0, vcc')
    a(f'v_lshrrev_b32 v{vT0}, 1, v{vQ}')
    a(f'v_lshlrev_b32 v{vT0}, 4, v{vT0}')
    a(f'v_and_b32 v{vT1}, 1, v{vQ}')
    a(f'v_lshl_add_u32 v{vT0}, v{vT1}, 2, v{vT0}')
    a(f'v_lshrrev_b32 v{vT1}, 2, v{vM}')
    a(f'v_add_u32 v{vT0}, v{vT0}, v{vT1}')
    a(f'v_mul_u32_u24 v{vT0}, 480, v{vT0}')
    a(f's_mul_i32 s{sT}, s{S_WAVE}, 40')
    a(f's_add_u32 s{sT}, s{sT}, {WIMG}')
    a(f'v_add_u32 v{vT0}, s{sT}, v{vT0}')
    a(f'v_and_b32 v{vT1}, 3, v0')
    a(f'v_lshl_add_u32 v{vWb}, v{vT1}, 3, v{vT0}')
    a(f'v_add_u32 v{vWrB}, {160 + 32}, v{vT0}')
    a(f'v_add_u32 v{vT2}, 32, v{vT0}')
    a(f'v_cmp_eq_u32 vcc, 1, v{vT1}')
    a(f'v_cndmask_b32 v{vWrB}, v{vWrB}, v{vT2}, vcc')
    a(f'v_add_u32 v{vT2}, {320 + 32}, v{vT0}')
    a(f'v_cmp_eq_u32 vcc, 2, v{vT1}')
    a(f'v_cndmask_b32 v{vWrB}, v{vWrB}, v{vT2}, vcc')
    a(f'v_mov_b32 v{vT2}, {L_ONES}')
    a(f'v_cmp_eq_u32 vcc, 3, v{vT1}')
    a(f'v_cndmask_b32 v{vWrB}, v{vWrB}, v{vT2}, vcc')
    a(f'v_cndmask_b32 v{vWrK}, 1, 0, vcc')
    a(f'v_mov_b32 v{vT0}, 0x3f803f80')
    a(f'v_lshlrev_b32 v{vT1}, 2, v{vM}')
    a(f'v_add_u32 v{vT1}, {L_ONES}, v{vT1}')
    a(f'ds_write_b32 v{vT1}, v{vT0}')
    for i in range(88):
        a(f'v_mov_b32 v{SQ + i}, 0')
    a(f's_mov_b32 s{sI}, 0')

    def reads(h):
        xa = vXa0 if h == 0 else vXa1
        pre = []
        if h == 0:
            pre += [f'v_add_u32 v{vWa}, s{sSlotR}, v{vWb}', f'v_add_u32 v{vXa0}, s{sSlotR}, v{vXb0}',
                    f'v_add_u32 v{vXa1}, s{sSlotR}, v{vXb1}']
        o = []
        for T in range(3):
            for hh in range(2):
                o.append(f'ds_read_b64_tr_b16 {vr(FW[h] + 4 * T + 2 * hh, 2)}, v{vWa} offset:{h * 15360 + hh * 3840 + T * 160}')
        for hh in range(2):
            o.append(f's_add_u32 s{sMul}, s{sSlotR}, {h * 15360 + hh * 3840}\n'
                     f'v_mad_u32_u24 v{vRa + hh}, v{vWrK}, s{sMul}, v{vWrB}\n'
                     f'ds_read_b64_tr_b16 {vr(FW[h] + 12 + 2 * hh, 2)}, v{vRa + hh}')
        o.append(f'v_mad_u32_u24 v{vHa}, v{vHK}, s{sSlotR}, v{vHb0 if h == 0 else vHb1}\n'
                 f'ds_read_b128 {vr(FX[h], 4)}, v{vHa}')
        for sub in range(1, 5):
            o.append(f'ds_read_b128 {vr(FX[h] + 4 * sub, 4)}, v{xa} offset:{sub * 2048}')
        o.append(f'v_add_u32 v{vOa}, s{sSlotR}, v{vOb0 if h == 0 else vOb1}\n'
                 f'ds_read_b128 {vr(FX[h] + 20, 4)}, v{vOa}')
        return pre, o

    def mfmas(h):
        o = []
        for sub in range(5):
            for T in range(4):
                c = vr(acc(sub, T), 4)
                o.append(f'v_mfma_f32_16x16x32_bf16 {c}, {vr(FW[h] + 4 * T, 4)}, {vr(FX[h] + 4 * sub, 4)}, {c}')
        o.append(f'v_mfma_f32_16x16x32_bf16 {vr(SQ, 4)}, {vr(FX[h], 4)}, {vr(FX[h], 4)}, {vr(SQ, 4)}')
        o.append(f'v_mfma_f32_16x16x32_bf16 {vr(SQ + 4, 4)}, {vr(FX[h] + 20, 4)}, {vr(FX[h] + 20, 4)}, {vr(SQ + 4, 4)}')
        return o

    def mix(rd, dma):
        out = []
        rd, dma = list(rd), list(dma)
        while rd or dma:
            out += rd[:2]; rd = rd[2:]
            out += dma[:1]; dma = dma[1:]
        return out

    def iteration(dma0, dma1, nwait, last=False):
        a('s_waitcnt lgkmcnt(0)')
        weave(a, mfmas(0), mix(reads(1)[1], dma0), span=18)
        if last:
            a('s_waitcnt lgkmcnt(0)')
            a('s_barrier')
            weave(a, mfmas(1), dma1, span=18)
            return
        a(f's_mov_b32 s{sSlotW}, s{sSlotR}')
        a(f's_add_u32 s{sSlotR}, s{sSlotR}, {SLOT}')
        a(f's_cmp_eq_u32 s{sSlotR}, {3 * SLOT}')
        a(f's_cselect_b32 s{sSlotR}, 0, s{sSlotR}')
        pre, rd = reads(0)
        a(f's_waitcnt vmcnt({nwait}) lgkmcnt(0)')
        for x in pre: a(x)
        a('s_barrier')
        weave(a, mfmas(1), mix(rd, dma1), span=18)

    def wo_dma(u):
        return [f's_add_u32 m0, s{sWoM}, {(20 * u + i) * 1024}\n'
                + (f's_add_u32 s{sT2}, s{sWo}, {u * 4 * 32 * 1280}\n' if i == 0 else 's_nop 0\n')
                + f'buffer_load_dwordx4 v{vR + i}, s[{R_WO}:{R_WO+3}], s{sT2} offen lds' for i in range(5)]

    def rp_dma(lo, hi):
        o = []
        for i in range(lo, hi):
            for side, (R, so) in enumerate(((R_A, sRoA), (R_B, sRoB))):
                o.append(f's_add_u32 m0, s{sRb}, {side * 5120 + i * 1024}\ns_nop 0\n'
                         f'buffer_load_dwordx4 v{vR2 + i}, s[{R}:{R+3}], s{so} offen lds\n'
                         f's_add_u32 s{so}, s{so}, s{sRstr}')
        return o

    a('s_waitcnt vmcnt(15) lgkmcnt(0)')
    stamp(a, cfg, 2)
    pre, rd = reads(0)
    for x in pre: a(x)
    a('s_barrier')
    for x in rd: a(x)
    a('L_p1_loop:')
    iteration(second_half(), first_half(), 10)
    a(f's_add_u32 s{sI}, s{sI}, 1')
    a(f's_cmp_lt_u32 s{sI}, 7')
    a('s_cbranch_scc1 L_p1_loop')
    a.check_backedge('L_p1_loop')
    iteration(second_half(), rp_dma(0, 3) + wo_dma(0), 10)
    iteration(rp_dma(3, 5) + wo_dma(1), wo_dma(2), 11 + 9)
    iteration(wo_dma(3), wo_dma(4), 0, last=True)
    stamp(a, cfg, 3)

    E = Alloc(FX[0], FW[1] + 16)
    vCS = E(16, 2)
    vRS, vNM, vRstd, vRstdR, vTm, vSS = E(5), E(6, 2), E(6, 2), E(6, 2), E(5), E(5)
    VP = [E(2, 2) for _ in range(5)]
    QF = [None] + [E(4, 2) for _ in range(4)]
    KF = [V(4, 2) for _ in range(5)]
    sQ3 = sMul
    a.lg_reset()
    a(f'v_lshlrev_b32 v{vT0}, 2, v{vM}')
    a(f'v_add_u32 v{vT1}, {48 * 4}, v{vT0}')
    for sub in range(5):
        a(f'ds_bpermute_b32 v{vRS + sub}, v{vT1}, v{acc(sub, 3)}', tag='rs')
    a(f'v_and_b32 v{vT2}, 3, v0')
    for r in range(1, 4):
        a(f'v_cmp_eq_u32 vcc, {r}, v{vT2}')
        a(f'v_cndmask_b32 v{SQ}, v{SQ}, v{SQ + r}, vcc')
        a(f'v_cndmask_b32 v{SQ + 4}, v{SQ + 4}, v{SQ + 4 + r}, vcc')
    a(f's_lshl_b32 s{sT}, s{S_WAVE}, 6')
    a(f'v_add_u32 v{vT0}, {L_SQ}, v{vT0}')
    a(f'v_add_u32 v{vT2}, s{sT}, v{vT0}')
    a('s_mov_b32 exec_lo, 0x00f0000f')
    a('s_mov_b32 exec_hi, 0xf0000f00')
    a(f'ds_write_b32 v{vT0}, v{SQ}', tag='sq')
    a(f'ds_write_b32 v{vT2}, v{SQ + 4} offset:64', tag='sq')
    a('s_mov_b64 exec, -1')
    for T in range(4):
        for r in range(4):
            a(f'v_mov_b32_dpp v{vCS + 4 * T + r}, v{acc(0, T) + r} row_newbcast:0 row_mask:0xf bank_mask:0xf')
    a.lg_wait('sq')
    a('s_barrier')
    for sub in range(5):
        a(f'ds_read_b32 v{vSS + sub}, v{vT0} offset:{64 * sub}', tag='ss')
    a(f's_mov_b32 s{sT}, {f32(-1.0 / 640)}')
    a(f's_mov_b32 s{sT2}, {f32(1.0 / 640)}')
    a(f's_mov_b32 s{sQ3}, 0')
    a(f's_mov_b32 s{sQ3+1}, 0xffff0000')
    for sub in range(5): a(f'v_mul_f32 v{vNM + sub}, s{sT}, v{vRS + sub}')
    for sub in range(5): a(f'v_mul_f32 v{vTm + sub}, v{vNM + sub}, v{vNM + sub}')

    def bc(reg):
        return vr(reg & ~1, 2), reg & 1

    todo = [(sub, T) for sub in range(5) for T in range(4) if (sub, T) != (0, 0)]
    for sub, T in todo:
        nm, nh = bc(vNM + sub)
        for p in range(2):
            d = vr(acc(sub, T) + 2 * p, 2)
            a(f'v_pk_fma_f32 {d}, {vr(vCS + 4 * T + 2 * p, 2)}, {nm}, {d} op_sel:[0,{nh},0] op_sel_hi:[1,{nh},1]')
    a.lg_wait('ss')
    for sub in range(5): a(f'v_fma_f32 v{vTm + sub}, v{vSS + sub}, s{sT2}, -v{vTm + sub}')
    for sub in range(5): a(f'v_max_f32 v{vTm + sub}, 0, v{vTm + sub}')
    for sub in range(5): a(f'v_add_f32 v{vTm + sub}, {f32(1e-5)}, v{vTm + sub}')
    for sub in range(5): a(f'v_rsq_f32 v{vRstd + sub}, v{vTm + sub}')
    for sub in range(5): a(f'v_cndmask_b32 v{vRstdR + sub}, v{vRstd + sub}, 0, s[{sQ3}:{sQ3+1}]')
    vVw, vVr, vVr2 = vXa0, vXa1, vWa
    a(f's_mul_i32 s{sT}, s{S_WAVE}, 3328')
    a(f's_add_u32 s{sT}, s{sT}, {L_VS}')
    a(f'v_mul_u32_u24 v{vT0}, 40, v{vM}')
    a(f'v_add_u32 v{vT0}, s{sT}, v{vT0}')
    a(f'v_lshl_add_u32 v{vVw}, v{vQ}, 3, v{vT0}')

    def finish(sub, T):
        rs_, rh = bc((vRstdR if T == 3 else vRstd) + sub)
        for p in range(2):
            d = vr(acc(sub, T) + 2 * p, 2)
            a(f'v_pk_mul_f32 {d}, {d}, {rs_} op_sel:[0,{rh}] op_sel_hi:[1,{rh}]')
        dst = {0: QF[sub], 1: KF[sub], 2: VP[sub], 3: KF[sub] + 2}[T]
        for p in range(2):
            a(f'v_cvt_pk_bf16_f32 v{dst + p}, v{acc(sub, T) + 2 * p}, v{acc(sub, T) + 2 * p + 1}')
    for sub in range(5):
        finish(sub, 2); finish(sub, 3)
        a(f'ds_write_b64 v{vVw}, {vr(VP[sub], 2)} offset:{sub * 640}', tag='vw')
    a('s_mov_b32 exec_lo, 0')
    a('s_mov_b32 exec_hi, 0xffff')
    for sub in range(5):
        a(f'ds_write_b64 v{vT0}, {vr(KF[sub] + 2, 2)} offset:{sub * 640 + 32}', tag='vw')
    a('s_mov_b64 exec, -1')
    for sub in range(5):
        finish(sub, 1)
        if sub:
            finish(sub, 0)
            for p in range(2): a(f'v_mov_b32 v{QF[sub] + 2 + p}, 0')
    for sub in range(1, 5):
        for p in range(2): a(f'v_permlane16_swap_b32 v{KF[sub] + 2 + p}, v{QF[sub] + 2 + p}')
    a(f'v_lshrrev_b32 v{vT1}, 2, v0')
    a(f'v_mul_u32_u24 v{vT1}, 40, v{vT1}')
    a(f'v_add_u32 v{vVr2}, s{sT}, v{vT1}')
    a(f'v_and_b32 v{vT1}, 3, v0')
    a(f'v_lshl_add_u32 v{vVr}, v{vT1}, 3, v{vVr2}')
    A2 = Alloc(ACC, ACC + 80)
    VTM, VTR = A2(10, 2), A2(10, 2)
    SS_ = [None] + [A2(8, 4) for _ in range(4)]
    vB, vB0 = A2(8, 2), A2(4, 2)
    vMx, vSm, vTx = A2(4), A2(4), A2(4)
    for b in range(1, 5):
        a(f'v_mfma_f32_16x16x32_bf16 {vr(SS_[b], 4)}, {vr(KF[b - 1], 4)}, {vr(QF[b], 4)}, 0')
        a(f'v_mfma_f32_16x16x32_bf16 {vr(SS_[b] + 4, 4)}, {vr(KF[b], 4)}, {vr(QF[b], 4)}, 0')
    a.lg_wait('vw')
    for sub in range(5):
        a(f'ds_read_b64_tr_b16 {vr(VTM + 2 * sub, 2)}, v{vVr} offset:{sub * 640}', tag='vt')
        a(f'ds_read_b64_tr_b16 {vr(VTR + 2 * sub, 2)}, v{vVr2} offset:{sub * 640 + 32}', tag='vt')
    LOG2E = math.log2(math.e)
    csc = (20 ** -0.5) * LOG2E
    a(f'v_lshlrev_b32 v{vT0}, 2, v{vQ}')
    a(f'v_sub_u32 v{vT0}, v{vM}, v{vT0}')
    a(f'v_mov_b32 v{vT2}, {f32(-1e30)}')
    a(f's_cmp_eq_u32 s{S_MT}, 0')
    a(f's_cselect_b32 s{sT}, {f32(-1e9 * LOG2E)}, 0')
    a(f's_cselect_b32 s{sMul}, 0, {f32(csc)}')
    a(f'v_mov_b32 v{vT3}, s{sT}')
    for blk in range(2):
        for r in range(4):
            a(f'v_add_u32 v{vT1}, {16 - 16 * blk - r}, v{vT0}')
            a(f'v_and_b32 v{vT1}, 0xfffffff1, v{vT1}')
            a(f'v_cmp_eq_u32 vcc, 0, v{vT1}')
            a(f'v_cndmask_b32 v{vB + 4 * blk + r}, v{vT2}, 0, vcc')
            if blk == 0:
                a(f'v_cndmask_b32 v{vB0 + r}, v{vT2}, v{vT3}, vcc')
    a(f's_mov_b32 s{sT2}, {f32(csc)}')
    B4 = range(1, 5)
    for b in B4:
        for i in range(8):
            if b == 1 and i < 4:
                a(f'v_fma_f32 v{SS_[b] + i}, v{SS_[b] + i}, s{sMul}, v{vB0 + i}')
            else:
                a(f'v_fma_f32 v{SS_[b] + i}, v{SS_[b] + i}, s{sT2}, v{vB + i}')
    for b in B4: a(f'v_max3_f32 v{vMx + b - 1}, v{SS_[b]}, v{SS_[b] + 1}, v{SS_[b] + 2}')
    for b in B4: a(f'v_max3_f32 v{vMx + b - 1}, v{vMx + b - 1}, v{SS_[b] + 3}, v{SS_[b] + 4}')
    for b in B4: a(f'v_max3_f32 v{vMx + b - 1}, v{vMx + b - 1}, v{SS_[b] + 5}, v{SS_[b] + 6}')
    for b in B4: a(f'v_max_f32 v{vMx + b - 1}, v{vMx + b - 1}, v{SS_[b] + 7}')
    for sw in ('v_permlane16_swap_b32', 'v_permlane32_swap_b32'):
        for b in range(4): a(f'v_mov_b32 v{vTx + b}, v{vMx + b}')
        for b in range(4): a(f'{sw} v{vMx + b}, v{vTx + b}')
        for b in range(4): a(f'v_max_f32 v{vMx + b}, v{vMx + b}, v{vTx + b}')
    for b in B4:
        for i in range(8): a(f'v_sub_f32 v{SS_[b] + i}, v{SS_[b] + i}, v{vMx + b - 1}')
    for b in B4:
        for i in range(8): a(f'v_exp_f32 v{SS_[b] + i}, v{SS_[b] + i}')
    for b in B4: a(f'v_add_f32 v{vSm + b - 1}, v{SS_[b]}, v{SS_[b] + 1}')
    for i in range(2, 8):
        for b in B4: a(f'v_add_f32 v{vSm + b - 1}, v{vSm + b - 1}, v{SS_[b] + i}')
    for sw in ('v_permlane16_swap_b32', 'v_permlane32_swap_b32'):
        for b in range(4): a(f'v_mov_b32 v{vTx + b}, v{vSm + b}')
        for b in range(4): a(f'{sw} v{vSm + b}, v{vTx + b}')
        for b in range(4): a(f'v_add_f32 v{vSm + b}, v{vSm + b}, v{vTx + b}')
    for b in range(4): a(f'v_rcp_f32 v{vSm + b}, v{vSm + b}')
    for b in B4:
        for i in range(8): a(f'v_mul_f32 v{SS_[b] + i}, v{SS_[b] + i}, v{vSm + b - 1}')
    for b in B4:
        for p in range(4): a(f'v_cvt_pk_bf16_f32 v{QF[b] + p}, v{SS_[b] + 2 * p}, v{SS_[b] + 2 * p + 1}')
    a.lg_wait('vt')
    for b in B4:
        a(f'v_mfma_f32_16x16x32_bf16 {vr(SS_[b], 4)}, {vr(VTM + 2 * (b - 1), 4)}, {vr(QF[b], 4)}, 0')
        a(f'v_mfma_f32_16x16x32_bf16 {vr(SS_[b] + 4, 4)}, {vr(VTR + 2 * (b - 1), 4)}, {vr(QF[b], 4)}, 0')
    a(f's_lshr_b32 s{sT}, s{S_NT}, 1')
    a(f's_mul_i32 s{sT}, s{sT}, 20')
    a(f's_mul_i32 s{sT2}, s{S_MT}, {4 * 80}')
    a(f's_add_u32 s{sT}, s{sT}, s{sT2}')
    a(f's_and_b32 s{sT2}, s{S_NT}, 1')
    a(f's_lshl_b32 s{sMul}, s{sT2}, 3')
    a(f's_add_u32 s{sMul}, s{sMul}, s{sT}')
    a(f's_lshl_b32 s{sMuls}, s{S_WAVE}, 1')
    a(f's_add_u32 s{sMul}, s{sMul}, s{sMuls}')
    a(f's_lshl_b32 s{sMul}, s{sMul}, 8')
    a(f's_add_u32 s{sMul}, s{sMul}, {WS_AO}')
    a(f's_lshl_b32 s{sT2}, s{sT2}, 1')
    a(f's_add_u32 s{sT}, s{sT}, s{sT2}')
    a(f's_lshr_b32 s{sT2}, s{S_WAVE}, 1')
    a(f's_add_u32 s{sT}, s{sT}, s{sT2}')
    a(f's_lshl_b32 s{sT}, s{sT}, 8')
    a(f's_and_b32 s{sT2}, s{S_WAVE}, 1')
    a(f's_lshl_b32 s{sT2}, s{sT2}, 3')
    a(f's_add_u32 s{sT}, s{sT}, s{sT2}')
    a(f's_add_u32 s{sT}, s{sT}, {WS_AO + 16 * 256}')
    a(f'v_and_b32 v{vT0}, 1, v{vQ}')
    a(f'v_mul_u32_u24 v{vT0}, {80 * 256}, v{vT0}')
    a(f'v_lshrrev_b32 v{vT1}, 1, v{vQ}')
    a(f'v_lshl_add_u32 v{vT0}, v{vT1}, 8, v{vT0}')
    a(f'v_lshl_add_u32 v{vT0}, v{vM}, 4, v{vT0}')
    a(f'v_mul_u32_u24 v{vT1}, {80 * 256}, v{vQ}')
    a(f'v_lshl_add_u32 v{vT1}, v{vM}, 4, v{vT1}')
    OM = [KF[0], KF[1]]
    ORr = [None] + [VP[b] for b in B4]
    for pr in range(2):
        for k in range(2):
            b = 1 + 2 * pr + k
            for p in range(2):
                a(f'v_cvt_pk_bf16_f32 v{OM[pr] + 2 * k + p}, v{SS_[b] + 2 * p}, v{SS_[b] + 2 * p + 1}')
    for b in B4:
        for p in range(2):
            a(f'v_cvt_pk_bf16_f32 v{ORr[b] + p}, v{SS_[b] + 4 + 2 * p}, v{SS_[b] + 4 + 2 * p + 1}')
    for pr in range(2):
        for p in range(2): a(f'v_permlane16_swap_b32 v{OM[pr] + p}, v{OM[pr] + 2 + p}')
    a(f's_add_u32 s{sMuls}, s{sMul}, {2 * 80 * 256}')
    a(f'buffer_store_dwordx4 {vr(OM[0], 4)}, v{vT0}, s[{R_WS}:{R_WS+3}], s{sMul} offen {st}')
    a(f'buffer_store_dwordx4 {vr(OM[1], 4)}, v{vT0}, s[{R_WS}:{R_WS+3}], s{sMuls} offen {st}')
    for b in range(2, 5):
        a(f'v_cmp_eq_u32 vcc, {b - 1}, v{vQ}')
        for p in range(2): a(f'v_cndmask_b32 v{ORr[1] + p}, v{ORr[1] + p}, v{ORr[b] + p}, vcc')
    a(f'buffer_store_dwordx2 {vr(ORr[1], 2)}, v{vT1}, s[{R_WS}:{R_WS+3}], s{sT} offen {st}')
    stamp(a, cfg, 4)

    RF = ACC
    a('s_waitcnt vmcnt(3)')
    a(f's_cmp_lg_u32 s{S_WAVE}, 0')
    a('s_cbranch_scc1 L_p1_tagged')
    a(f'v_cmp_eq_u64 vcc, 0, {vr(vPoll, 2)}')
    a(f'v_cndmask_b32 v{vNon}, v{vPoll}, v{vNon}, vcc')
    a(f'v_cndmask_b32 v{vNon + 1}, v{vPoll + 1}, v{vNon + 1}, vcc')
    a(f'v_mov_b32 v{vT2}, {L_NONCE}')
    a('s_mov_b64 exec, 1')
    a(f'ds_write_b64 v{vT2}, {vr(vNon, 2)}')
    a('s_mov_b64 exec, -1')
    a('L_p1_tagged:')
    a(f's_cmp_ge_u32 s{sU}, 576')
    a('s_cbranch_scc1 L_p1_end')
    a(f's_cmp_ge_u32 s{sU}, 384')
    a('s_cbranch_scc1 L_p1_rd')
    vCa, vCb, vOne = vXa0, vXa1, vWa
    a(f'v_lshrrev_b32 v{vT0}, 1, v0')
    a(f'v_and_b32 v{vT0}, 1, v{vT0}')
    a(f'v_mul_u32_u24 v{vT0}, 5120, v{vT0}')
    a(f'v_and_b32 v{vT1}, 1, v0')
    a(f'v_lshl_add_u32 v{vT0}, v{vT1}, 3, v{vT0}')
    a(f'v_and_b32 v{vT1}, 1, v{vQ}')
    a(f'v_lshl_add_u32 v{vT0}, v{vT1}, 4, v{vT0}')
    a(f'v_lshrrev_b32 v{vT1}, 2, v{vM}')
    a(f'v_lshl_add_u32 v{vT0}, v{vT1}, 6, v{vT0}')
    a(f'v_add_u32 v{vT0}, s{sRb}, v{vT0}')
    a(f'v_lshrrev_b32 v{vT1}, 5, v0')
    a(f'v_lshl_add_u32 v{vT2}, v{vT1}, 9, v{vT0}')
    a(f'v_mul_u32_u24 v{vT1}, {40 * 64}, v{vT1}')
    a(f'v_add_u32 v{vT0}, v{vT1}, v{vT0}')
    a.lg_reset()
    for sl in range(2):
        for bp in range(5):
            f = RF + 4 * (sl * 5 + bp)
            for h in range(2):
                if bp < 4:
                    a(f'ds_read_b64_tr_b16 {vr(f + 2 * h, 2)}, v{vT2} offset:{bp * 1280 + h * 256 + 32 * sl}', tag=(sl, bp))
                else:
                    a(f'ds_read_b64_tr_b16 {vr(f + 2 * h, 2)}, v{vT0} offset:{16 * 64 + h * 1280 + 32 * sl}', tag=(sl, bp))
    a(f's_mul_i32 s{sT}, s{sRs1}, 21846')
    a(f's_lshr_b32 s{sT}, s{sT}, 16')
    a(f's_mul_i32 s{sT2}, s{sT}, 3')
    a(f's_sub_u32 s{sT2}, s{sRs1}, s{sT2}')
    a(f's_mul_i32 s{sT}, s{sT}, 240')
    a(f's_mul_i32 s{sMul}, s{sT2}, 80')
    a(f's_add_u32 s{sT}, s{sT}, s{sMul}')
    a(f's_cmp_eq_u32 s{sT2}, 0')
    a(f's_cselect_b32 s{sMul}, 2, 1')
    a(f's_cselect_b32 s{sMuls}, 1, 40')
    a(f's_lshl_b32 s{sMul}, s{sMul}, 10')
    a(f's_lshl_b32 s{sMuls}, s{sMuls}, 10')
    a(f's_lshl_b32 s{sT}, s{sT}, 10')
    a(f's_lshr_b32 s{sT2}, s{sRs0}, 1')
    a(f's_mul_i32 s{sT2}, s{sT2}, 10')
    a(f's_and_b32 s{sI}, s{sRs0}, 1')
    a(f's_add_u32 s{sXoff}, s{sT2}, s{sI}')
    a(f's_add_u32 s{sXoff}, s{sXoff}, 8')
    a(f's_lshl_b32 s{sI}, s{sI}, 2')
    a(f's_add_u32 s{sT2}, s{sT2}, s{sI}')
    a(f's_mul_i32 s{sT2}, s{sT2}, s{sMul}')
    a(f's_add_u32 s{sT2}, s{sT2}, s{sT}')
    a(f's_mul_i32 s{sXoff}, s{sXoff}, s{sMul}')
    a(f's_add_u32 s{sXoff}, s{sXoff}, s{sT}')
    a(f'v_mov_b32 v{vCa}, 0')
    a(f'v_mov_b32 v{vCb}, 0')
    a(f'v_mov_b32 v{vOne}, 0x3f803f80')
    for sl in range(2):
        if sl == 1:
            a(f's_add_u32 s{sT2}, s{sT2}, s{sMuls}')
            a(f's_add_u32 s{sXoff}, s{sXoff}, s{sMuls}')
        a(f's_mov_b32 s{sWoff}, s{sT2}')
        for bp in range(5):
            f = RF + 4 * (sl * 5 + bp)
            a.lg_wait((sl, bp))
            a(f'buffer_store_dwordx4 {vr(f, 4)}, v{vL16}, s[{R_WS}:{R_WS+3}], s{sWoff if bp < 4 else sXoff} offen {st}')
            if bp < 3: a(f's_add_u32 s{sWoff}, s{sWoff}, s{sMul}')
    for sl in range(2):
        for n in range(20): a(f'v_dot2c_f32_bf16 v{vCb if sl else vCa}, v{RF + 20 * sl + n}, v{vOne}')
    a(f'v_permlane32_swap_b32 v{vCa}, v{vCb}')
    a(f's_mul_i32 s{sT}, s{sRs0}, {3072 * 4}')
    a(f's_lshl_b32 s{sT2}, s{sRs1}, 8')
    a(f's_add_u32 s{sT}, s{sT}, s{sT2}')
    a(f's_add_u32 s{sT}, s{sT}, {WS_CS}')
    a(f'v_add_f32 v{vCa}, v{vCa}, v{vCb}')
    a(f'v_lshlrev_b32 v{vT0}, 2, v0')
    a(f'buffer_store_dword v{vCa}, v{vT0}, s[{R_WS}:{R_WS+3}], s{sT} offen {st}')
    a('s_branch L_p1_end')
    a('L_p1_rd:')
    a(f'v_lshrrev_b32 v{vT0}, 1, v{vQ}')
    a(f'v_lshlrev_b32 v{vT0}, 4, v{vT0}')
    a(f'v_and_b32 v{vT1}, 1, v{vQ}')
    a(f'v_lshl_add_u32 v{vT0}, v{vT1}, 2, v{vT0}')
    a(f'v_lshrrev_b32 v{vT1}, 2, v{vM}')
    a(f'v_add_u32 v{vT0}, v{vT0}, v{vT1}')
    a(f'v_mul_u32_u24 v{vT0}, 160, v{vT0}')
    a(f'v_and_b32 v{vT1}, 3, v0')
    a(f'v_mul_u32_u24 v{vT1}, 40, v{vT1}')
    a(f'v_add3_u32 v{vT0}, v{vT0}, v{vT1}, s{sRb}')
    a.lg_reset()
    for kb in range(2):
        for j in range(5):
            f = RF + 4 * (kb * 5 + j)
            for h in range(2):
                a(f'ds_read_b64_tr_b16 {vr(f + 2 * h, 2)}, v{vT0} offset:{kb * 5120 + h * 1280 + 8 * j}', tag=(kb, j))
    a(f's_mul_i32 s{sT}, s{sRs1}, 240')
    a(f's_mul_i32 s{sT2}, s{sRs0}, 10')
    a(f's_add_u32 s{sT}, s{sT}, s{sT2}')
    a(f's_lshl_b32 s{sT}, s{sT}, 10')
    a(f's_add_u32 s{sT}, s{sT}, {WS_WD}')
    for n in range(10):
        a.lg_wait((n // 5, n % 5))
        if n % 4 == 0 and n: a(f's_add_u32 s{sT}, s{sT}, 4096')
        a(f'buffer_store_dwordx4 {vr(RF + 4 * n, 4)}, v{vL16}, s[{R_WS}:{R_WS+3}], s{sT} offen offset:{(n % 4) * 1024} {st}')
    a('L_p1_end:')
    a('s_waitcnt vmcnt(0) lgkmcnt(0)')
    a.vm_reset(); a.lg_reset()
    a('s_barrier')
    a(f'v_mov_b32 v{vT2}, {L_NONCE}')
    a(f'ds_read_b64 {vr(vPoll, 2)}, v{vT2}')
    a('s_waitcnt lgkmcnt(0)')
    a(f'v_readfirstlane_b32 s{S_NONCE}, v{vPoll}')
    a(f'v_readfirstlane_b32 s{S_NONCE + 1}, v{vPoll + 1}')
    publish(a, WS_F1, S_MT, S_NT, 8, 'p1')
    stamp(a, cfg, 5)


def reduce_scatter(a, ACC, TMP, ex_base, sT):
    a.lg_reset()
    for i in range(1, 4):
        a(f's_add_u32 s{sT}, s{S_WAVE}, {i}')
        a(f's_and_b32 s{sT}, s{sT}, 3')
        a(f's_mul_i32 s{sT}, s{sT}, 15360')
        a(f's_add_u32 s{sT}, s{sT}, {ex_base + (i - 1) * 5120}')
        a(f'v_add_u32 v{vT1}, s{sT}, v{vL16}')
        for j in range(5):
            a(f'ds_write_b128 v{vT1}, {vr(ACC + (i * 5 + j) * 4, 4)} offset:{j * 1024}')
    a(f's_mul_i32 s{sT}, s{S_WAVE}, 15360')
    a(f's_add_u32 s{sT}, s{sT}, {ex_base}')
    a(f'v_add_u32 v{vT1}, s{sT}, v{vL16}')
    a.lg_wait_all()
    a('s_barrier')
    for n in range(15):
        a(f'ds_read_b128 {vr(TMP + 4 * n, 4)}, v{vT1} offset:{n * 1024}', tag=n)
    for n in range(15):
        a.lg_wait(n)
        j = n % 5
        for p in range(2):
            d = vr(ACC + j * 4 + 2 * p, 2)
            a(f'v_pk_add_f32 {d}, {d}, {vr(TMP + 4 * n + 2 * p, 2)}')


def unpack(a, RES, U):
    for i in range(10):
        a(f'v_lshlrev_b32 v{U + 2 * i}, 16, v{RES + i}')
        a(f'v_and_b32 v{U + 2 * i + 1}, 0xffff0000, v{RES + i}')


def row_addr(a, vD, sD, sT):
    a(f's_lshl_b32 s{sD}, s{S_MT2}, 2')
    a(f's_add_u32 s{sD}, s{sD}, s{S_WAVE}')
    a(f's_mul_i32 s{sD}, s{sD}, {16 * 1280}')
    a(f's_mul_i32 s{sT}, s{S_NT2}, 160')
    a(f's_add_u32 s{sD}, s{sD}, s{sT}')
    a(f'v_mul_u32_u24 v{vD}, 1280, v{vM}')
    a(f's_movk_i32 s{sT}, 40')
    a(f'v_mad_u32_u24 v{vD}, v{vQ}, s{sT}, v{vD}')


def a_bases(a, sA, nch, base, sT, sT2):
    for i in range(4):
        a(f's_add_u32 s{sT}, s{S_WAVE}, {i}')
        a(f's_and_b32 s{sT}, s{sT}, 3')
        a(f's_lshl_b32 s{sT2}, s{S_MT2}, 2')
        a(f's_add_u32 s{sT}, s{sT}, s{sT2}')
        a(f's_mul_i32 s{sT}, s{sT}, {nch}')
        a(f's_mul_i32 s{sT2}, s{S_WAVE}, {nch // 4}')
        a(f's_add_u32 s{sT}, s{sT}, s{sT2}')
        a(f's_lshl_b32 s{sT}, s{sT}, 8')
        a(f's_add_u32 s{sA + i}, s{sT}, {base}')


S_B3SRC, S_B3M0, S_B4 = 10, 11, 3


def b3_dma(t, tmp):
    slot = (t % 6) * STG3
    o = []
    for i in range(6):
        pre = ''
        if i % 4 == 0:
            pre = f's_add_u32 m0, s{S_B3M0}, {slot + i * 1024}\ns_add_u32 s{tmp}, s{S_B3SRC}, {t * STG3 + i * 1024}\n'
        o.append(pre + f'buffer_load_dwordx4 v{vL16}, s[{R_WS}:{R_WS+3}], s{tmp} offen offset:{(i % 4) * 1024} sc1 lds')
    return o


def phase2(a, cfg):
    st = ld = 'sc1'
    V = Alloc(LOC)
    vL16b, vBm, vBr, vXr, vMain, vRem = [V() for _ in range(6)]
    vSt, vTs = V(2, 2), V(2, 2)
    RES = V(10, 2); RU = V(20, 2)
    ACC = V(80, 4)
    AF = V(80, 4)
    sT, sT2, sStg, sMain, sRem, sXr, sFl, sD = range(S_T0 + 4, S_T0 + 12)
    sA = S_T0 + 12
    row_addr(a, vXr, sXr, sT)
    a(f'buffer_load_dwordx4 {vr(RES, 4)}, v{vXr}, s[{R_X}:{R_X+3}], s{sXr} offen')
    a(f'buffer_load_dwordx4 {vr(RES + 4, 4)}, v{vXr}, s[{R_X}:{R_X+3}], s{sXr} offen offset:16')
    a(f'buffer_load_dwordx2 {vr(RES + 8, 2)}, v{vXr}, s[{R_X}:{R_X+3}], s{sXr} offen offset:32')
    a(f's_mul_i32 s{sStg}, s{S_WAVE}, {P2_STG}')
    a(f'v_lshrrev_b32 v{vT0}, 1, v{vQ}')
    a(f'v_mul_u32_u24 v{vT0}, 20, v{vT0}')
    a(f'v_and_b32 v{vT1}, 1, v{vQ}')
    a(f'v_lshl_add_u32 v{vT0}, v{vT1}, 3, v{vT0}')
    a(f'v_lshrrev_b32 v{vT1}, 2, v{vM}')
    a(f'v_add_u32 v{vT0}, v{vT0}, v{vT1}')
    a(f'v_mul_u32_u24 v{vT0}, 160, v{vT0}')
    a(f'v_and_b32 v{vT2}, 3, v0')
    a(f'v_mul_u32_u24 v{vT2}, 40, v{vT2}')
    a(f'v_add3_u32 v{vBm}, v{vT0}, v{vT2}, s{sStg}')
    a(f'v_mul_u32_u24 v{vT0}, 40, v{vQ}')
    a(f'v_add_u32 v{vT0}, v{vT0}, v{vT1}')
    a(f'v_mul_u32_u24 v{vT0}, 160, v{vT0}')
    a(f'v_add3_u32 v{vBr}, v{vT0}, v{vT2}, s{sStg}')
    for kb in range(5):
        for j in range(5):
            for h in range(2):
                d = ar((kb * 5 + j) * 4 + 2 * h, 2)
                if kb < 4:
                    a(f'ds_read_b64_tr_b16 {d}, v{vBm} offset:{kb * 6400 + h * 640 + 8 * j}')
                else:
                    a(f'ds_read_b64_tr_b16 {d}, v{vBr} offset:{16 * 160 + h * 3200 + 8 * j}')
    a(f'v_add_u32 v{vL16b}, 4096, v{vL16}')
    a_bases(a, sA, 80, WS_AO, sT, sT2)
    a(f's_lshl_b32 s{sMain}, s{S_MT2}, 2')
    a(f's_add_u32 s{sMain}, s{sMain}, s{S_WAVE}')
    a(f's_mul_i32 s{sMain}, s{sMain}, 80')
    a(f's_lshr_b32 s{sT}, s{S_NT2}, 1')
    a(f's_mul_i32 s{sT}, s{sT}, 20')
    a(f's_add_u32 s{sMain}, s{sMain}, s{sT}')
    a(f's_and_b32 s{sT}, s{S_NT2}, 1')
    a(f's_lshl_b32 s{sRem}, s{sT}, 1')
    a(f's_add_u32 s{sRem}, s{sRem}, s{sMain}')
    a(f's_lshl_b32 s{sRem}, s{sRem}, 8')
    a(f's_add_u32 s{sRem}, s{sRem}, {WS_AH + 16 * 256}')
    a(f's_lshl_b32 s{sT}, s{sT}, 3')
    a(f's_add_u32 s{sMain}, s{sMain}, s{sT}')
    a(f's_lshl_b32 s{sMain}, s{sMain}, 8')
    a(f's_add_u32 s{sMain}, s{sMain}, {WS_AH}')
    a(f'v_lshlrev_b32 v{vMain}, 4, v{vM}')
    a(f'v_lshrrev_b32 v{vT0}, 1, v{vQ}')
    a(f'v_lshl_add_u32 v{vRem}, v{vT0}, 8, v{vMain}')
    a(f'v_and_b32 v{vT0}, 1, v{vQ}')
    a(f'v_lshl_add_u32 v{vRem}, v{vT0}, 3, v{vRem}')
    a(f'v_lshl_add_u32 v{vMain}, v{vQ}, 9, v{vMain}')
    a(f's_lshl_b32 s{sXr}, s{S_MT2}, 1')
    a(f's_lshr_b32 s{sT2}, s{S_WAVE}, 1')
    a(f's_add_u32 s{sXr}, s{sXr}, s{sT2}')
    a(f's_lshl_b32 s{sXr}, s{sXr}, 3')
    a(f's_add_u32 s{sXr}, s{sXr}, s{S_NT2}')
    a(f's_lshl_b32 s{sXr}, s{sXr}, 8')
    a(f's_and_b32 s{sT2}, s{S_WAVE}, 1')
    a(f's_lshl_b32 s{sT2}, s{sT2}, 7')
    a(f's_add_u32 s{sXr}, s{sXr}, s{sT2}')
    a(f's_add_u32 s{sXr}, s{sXr}, {WS_HS}')
    a(f'v_lshlrev_b32 v{vXr}, 3, v{vM}')
    a(f's_mul_i32 s{S_B3SRC}, s{S_NF}, {240 * 1024}')
    a(f's_mul_i32 s{S_B3M0}, s{S_WAVE}, 6144')
    a(f's_add_u32 s{S_B3SRC}, s{S_B3SRC}, s{S_B3M0}')
    a(f's_add_u32 s{S_B3SRC}, s{S_B3SRC}, {WS_WGU}')
    a(f's_mul_i32 s{S_B4}, s{S_NT2}, 240')
    a(f's_mul_i32 s{sT}, s{S_WAVE}, 60')
    a(f's_add_u32 s{S_B4}, s{S_B4}, s{sT}')
    a(f's_lshl_b32 s{S_B4}, s{S_B4}, 10')
    a(f's_add_u32 s{S_B4}, s{S_B4}, {WS_WD}')
    a(f's_mov_b32 s{sFl}, {WS_F1}')
    a('s_waitcnt vmcnt(0) lgkmcnt(0)')
    unpack(a, RES, RU)
    a('s_barrier')
    stamp(a, cfg, 6)
    poll(a, sFl, 256, 'p2')
    stamp(a, cfg, 7)
    for kb in range(5):
        for i in range(4):
            v, off = (vL16, kb * 1024) if kb < 4 else (vL16b, 0)
            a(f'buffer_load_dwordx4 {vr(AF + (i * 5 + kb) * 4, 4)}, v{v}, s[{R_WS}:{R_WS+3}], s{sA + i} offen offset:{off} {ld}', tag=('A', kb))
    pre = [x for t in range(4) for x in b3_dma(t, sD)]
    npre = cfg.get('p2_pre', 6)
    for x in pre[:npre]: a(x)
    pre = pre[npre:]
    for kb in range(5):
        a.vm_wait(('A', kb))
        mm = []
        for j in range(5):
            for i in range(4):
                c = vr(ACC + (i * 5 + j) * 4, 4)
                mm.append(f'v_mfma_f32_16x16x32_bf16 {c}, {ar((kb * 5 + j) * 4, 4)}, {vr(AF + (i * 5 + kb) * 4, 4)}, {c if kb else 0}')
        k = (len(pre) + 4 - kb) // (5 - kb)
        weave(a, mm, pre[:k]); pre = pre[k:]
    stamp(a, cfg, 8)
    reduce_scatter(a, ACC, AF, L_EX2, sT)
    for i in range(10):
        d = vr(ACC + 2 * i, 2)
        a(f'v_pk_add_f32 {d}, {d}, {vr(RU + 2 * i, 2)}')
    for i in range(10):
        a(f'v_cvt_pk_bf16_f32 v{H + i}, v{ACC + 2 * i}, v{ACC + 2 * i + 1}')
    a(f'buffer_store_dwordx4 {vr(H, 4)}, v{vMain}, s[{R_WS}:{R_WS+3}], s{sMain} offen {st}')
    a(f'buffer_store_dwordx4 {vr(H + 4, 4)}, v{vMain}, s[{R_WS}:{R_WS+3}], s{sMain} offen offset:256 {st}')
    a(f'buffer_store_dwordx2 {vr(H + 8, 2)}, v{vRem}, s[{R_WS}:{R_WS+3}], s{sRem} offen {st}')
    a(f'v_mov_b32 v{vSt}, 0')
    a(f'v_mov_b32 v{vSt + 1}, 0')
    a(f'v_mov_b32 v{vT0}, 0x3f803f80')
    for i in range(10):
        a(f'v_dot2c_f32_bf16 v{vSt}, v{H + i}, v{vT0}')
        a(f'v_dot2c_f32_bf16 v{vSt + 1}, v{H + i}, v{H + i}')
    for sw in ('v_permlane16_swap_b32', 'v_permlane32_swap_b32'):
        for k in range(2): a(f'v_mov_b32 v{vTs + k}, v{vSt + k}')
        for k in range(2): a(f'{sw} v{vSt + k}, v{vTs + k}')
        for k in range(2): a(f'v_add_f32 v{vSt + k}, v{vSt + k}, v{vTs + k}')
    a('s_mov_b64 exec, 0xffff')
    a(f'buffer_store_dwordx2 {vr(vSt, 2)}, v{vXr}, s[{R_WS}:{R_WS+3}], s{sXr} offen {st}')
    a('s_mov_b64 exec, -1')
    a('s_waitcnt vmcnt(0)')
    a.vm_reset(); a.lg_reset()
    a('s_barrier')
    publish(a, WS_F2, S_MT2, S_NT2, 8, 'p2')
    stamp(a, cfg, 9)


B4_EARLY = 10
B4V = 256 - 104


def b4_reg(n):
    if n < 24: return ar(160 + 4 * n, 4)
    if n < 50: return vr(B4V + 4 * (n - 24), 4)
    return vr(LOC + 4 + 80 + 4 * (n - 50), 4)


def b4_load(n):
    pre = f's_add_u32 s{S_B4}, s{S_B4}, 4096\n' if n and n % 4 == 0 else ''
    return pre + f'buffer_load_dwordx4 {b4_reg(n)}, v{vL16}, s[{R_WS}:{R_WS+3}], s{S_B4} offen offset:{(n % 4) * 1024} sc1'


def phase3(a, cfg):
    st = ld = 'sc1'
    V = Alloc(LOC, B4V)
    vAo, vSo, vHo, vCsr, vNM, vRstd, vK1 = [V() for _ in range(7)]
    vLB = V(3)
    ACC = V(48, 4)
    NF = cfg.get('p3_nf', 6)
    WF = V(4 * NF, 4)
    EC = V(16, 4)
    EG, EP, EO = V(8, 2), V(8, 2), [V(4, 4), V(4, 4)]
    ST = EP
    CSL = B4V
    sT, sT2, sA, sH, sSt, sK2, sFl, sD = range(S_T0 + 4, S_T0 + 12)
    for t in (4, 5):
        for x in b3_dma(t, sD): a(x)
    a(f's_mul_i32 s{sT}, s{S_NF}, 768')
    a(f's_add_u32 s{sT}, s{sT}, {WS_CS}')
    for g in range(8):
        a(f'buffer_load_dwordx4 {vr(CSL + 4 * g, 4)}, v{vL16}, s[{R_WS}:{R_WS+3}], s{sT} offen {ld}')
        if g < 7: a(f's_add_u32 s{sT}, s{sT}, 12288')
    a(f'v_lshlrev_b32 v{vT0}, 4, v{vM}')
    a(f'v_lshrrev_b32 v{vT1}, 5, v0')
    a(f'v_lshl_add_u32 v{vT0}, v{vT1}, 8, v{vT0}')
    a(f'v_lshlrev_b32 v{vCsr}, 4, v{vT1}')
    a(f'v_add_u32 v{vCsr}, {L_CS}, v{vCsr}')
    a(f'v_and_b32 v{vT2}, 31, v0')
    a(f'v_lshlrev_b32 v{vT2}, 3, v{vT2}')
    a(f'v_lshl_add_u32 v{vSo}, v{vT1}, 10, v{vT2}')
    a(f'v_and_b32 v{vT1}, 1, v{vQ}')
    a(f's_movk_i32 s{sT}, {80 * 256}')
    a(f'v_mad_u32_u24 v{vAo}, v{vT1}, s{sT}, v{vT0}')
    a(f's_mov_b32 s{sT}, {192 * 256}')
    a(f'v_mad_u32_u24 v{vHo}, v{vT1}, s{sT}, v{vT0}')
    a(f's_lshl_b32 s{sT}, s{S_MT3}, 2')
    a(f's_add_u32 s{sT}, s{sT}, s{S_WAVE}')
    a(f's_mul_i32 s{sA}, s{sT}, {2 * 80 * 256}')
    a(f's_add_u32 s{sA}, s{sA}, {WS_AH}')
    a(f's_mul_i32 s{sH}, s{sT}, {2 * 192 * 256}')
    a(f's_mul_i32 s{sT2}, s{S_NF}, {12 * 256}')
    a(f's_add_u32 s{sH}, s{sH}, s{sT2}')
    a(f's_add_u32 s{sH}, s{sH}, {WS_AHH}')
    a(f's_lshl_b32 s{sSt}, s{sT}, 11')
    a(f's_add_u32 s{sSt}, s{sSt}, {WS_HS}')
    a(f's_lshl_b32 s{sFl}, s{S_MT3}, 7')
    a(f's_add_u32 s{sFl}, s{sFl}, {WS_F2}')
    for k in range(3):
        a(f'v_add_u32 v{vLB + k}, {k * 2 * STG3}, v{vL16}')
    c0 = -2.0 * math.sqrt(2.0 / math.pi) * math.log2(math.e)
    a(f'v_mov_b32 v{vK1}, {f32(c0)}')
    a(f's_mov_b32 s{sK2}, {f32(c0 * 0.044715)}')
    a('s_waitcnt vmcnt(0)')
    for g in range(1, 8):
        for p in range(2):
            a(f'v_pk_add_f32 {vr(CSL + 2 * p, 2)}, {vr(CSL + 2 * p, 2)}, {vr(CSL + 4 * g + 2 * p, 2)}')
    a(f'v_add_u32 v{vT0}, {L_CS}, v{vL16}')
    a(f'ds_write_b128 v{vT0}, {vr(CSL, 4)}')
    a('s_waitcnt lgkmcnt(0)')
    a('s_barrier')
    a.lg_reset()
    seq = order3()
    pend = []

    def w_read(p):
        t = p // 24
        if p % 24 == 0 and t >= 2:
            a.vm_wait(('S', t))
            a('s_barrier')
            if t + 4 < 10: pend[:0] = [(x, ('S', t + 4)) for x in b3_dma(t + 4, sD)]
        addr = (t % 6) * STG3 + (p % 24) * 1024
        k = addr // (2 * STG3)
        a(f'ds_read_b128 {vr(WF + 4 * (p % NF), 4)}, v{vLB + k} offset:{addr - k * 2 * STG3}', tag=('w', p))
    for p in range(NF - 1): w_read(p)
    stamp(a, cfg, 10)
    poll(a, sFl, 16, 'p3')
    stamp(a, cfg, 11)

    def a_load(b):
        pre = f's_add_u32 s{sA}, s{sA}, 4096\n' if b and b % 8 == 0 else ''
        return (pre + f'buffer_load_dwordx4 {ar(4 * b, 4)}, v{vAo}, s[{R_WS}:{R_WS+3}], s{sA} offen offset:{(b % 8) * 512} {ld}', ('A', b))
    for i in range(4):
        a(f'buffer_load_dwordx2 {vr(ST + 2 * i, 2)}, v{vSo}, s[{R_WS}:{R_WS+3}], s{sSt} offen offset:{i * 256} {ld}', tag='ST')
    up = cfg.get('p3_up', 20)
    for b in range(up): a(*a_load(b))
    aq = [a_load(b) for b in range(up, 40)]
    bq = [(b4_load(n), 'B4') for n in range(5 * B4_EARLY)]

    def prep():
        o = [('vm', 'ST')]
        for i in range(1, 4):
            o.append(f'v_add_f32 v{ST}, v{ST}, v{ST + 2 * i}')
            o.append(f'v_add_f32 v{ST + 1}, v{ST + 1}, v{ST + 2 * i + 1}')
        for k in range(2): o.append(f'v_mov_b32 v{ST + 2 + k}, v{ST + k}')
        o.append(None); o.append(None)
        for k in range(2): o.append(f'v_permlane32_swap_b32 v{ST + k}, v{ST + 2 + k}')
        for k in range(2): o.append(f'v_add_f32 v{ST + k}, v{ST + k}, v{ST + 2 + k}')
        o.append(f'v_mul_f32 v{vNM}, {f32(-1.0 / 640)}, v{ST}')
        o.append(f'v_mul_f32 v{ST + 1}, {f32(1.0 / 640)}, v{ST + 1}')
        o.append(f'v_fma_f32 v{ST + 1}, -v{vNM}, v{vNM}, v{ST + 1}')
        o.append(f'v_max_f32 v{ST + 1}, 0, v{ST + 1}')
        o.append(f'v_add_f32 v{ST + 1}, {f32(1e-5)}, v{ST + 1}')
        o.append(f'v_rsq_f32 v{vRstd}, v{ST + 1}')
        return o

    def cs_reads(s):
        return [(f'ds_read_b128 {vr(EC + 4 * q, 4)}, v{vCsr} offset:{(s * 32 + 8 * q) * 4}', ('cs', s)) for q in range(4)]

    def epilogue(s, nxt):
        A = ACC + 16 * (s % 3)
        O = EO[s % 2]
        o = [('lg', ('cs', s))]
        for i in range(16): o.append(f'v_fmac_f32 v{A + i}, v{vNM}, v{EC + i}')
        if nxt is not None: o += cs_reads(nxt)
        gi = [A + (i >> 2) * 8 + (i & 3) for i in range(8)]
        ui = [g + 4 for g in gi]
        for i in range(8): o.append(f'v_mul_f32 v{EG + i}, v{vRstd}, v{gi[i]}')
        for i in range(8): o.append(f'v_mul_f32 v{EP + i}, v{EG + i}, v{EG + i}')
        for i in range(8): o.append(f'v_fma_f32 v{EP + i}, v{EP + i}, s{sK2}, v{vK1}')
        for i in range(8): o.append(f'v_mul_f32 v{EP + i}, v{EP + i}, v{EG + i}')
        for i in range(8):
            o.append(f'v_exp_f32 v{EP + i}, v{EP + i}')
            o.append(f'v_mul_f32 v{ui[i]}, v{vRstd}, v{ui[i]}')
        for i in range(8): o.append(f'v_add_f32 v{EP + i}, 1.0, v{EP + i}')
        for i in range(8):
            o.append(f'v_rcp_f32 v{EP + i}, v{EP + i}')
            o.append(f'v_mul_f32 v{ui[i]}, v{ui[i]}, v{EG + i}')
        for i in range(8): o.append(f'v_mul_f32 v{ui[i]}, v{ui[i]}, v{EP + i}')
        for p in range(4): o.append(f'v_cvt_pk_bf16_f32 v{O + p}, v{ui[2 * p]}, v{ui[2 * p + 1]}')
        o.append(f'buffer_store_dwordx4 {vr(O, 4)}, v{vHo}, s[{R_WS}:{R_WS+3}], s{sH} offen offset:{s * 512} {st}')
        o.append(('done', s))
        return o

    def run(x):
        if x is None: return
        if isinstance(x, tuple):
            if x[0] == 'vm': a.vm_wait(x[1])
            elif x[0] == 'lg': a.lg_wait(x[1])
            elif x[0] == 'done': finished.add(x[1])
            else: a(x[0], tag=x[1])
        else:
            a(x)

    finished = set()

    def cost(x):
        if x is None: return 4
        if isinstance(x, tuple) and x[0] == 'done': return 0
        t = x[0] if isinstance(x, tuple) else x
        return 8 if t.startswith(('v_exp', 'v_rcp', 'v_rsq')) else 4

    work = []
    budget = cfg.get('p3_budget', 16)
    for p, (s, b) in enumerate(seq):
        if p + NF - 1 < 240: w_read(p + NF - 1)
        a.vm_wait(('A', b))
        a.lg_wait(('w', p))
        if p in (80, 160): stamp(a, cfg, {80: 12, 160: 13}[p])
        if b == 0 and s >= 3:
            late = 0
            while s - 3 not in finished:
                run(work.pop(0)); late += 1
            if late: print(f'phase 3: {late} epilogue items of sub-tile {s - 3} were late', file=sys.stderr)
        c = vr(ACC + 16 * (s % 3), 16)
        a(f'v_mfma_f32_32x32x16_bf16 {c}, {vr(WF + 4 * (p % NF), 4)}, {ar(4 * b, 4)}, {c if b else 0}')
        left = budget
        if aq: a(*aq.pop(0)); left -= 4
        elif pend: a(*pend.pop(0)); left -= 4
        elif bq and p >= 80 and p % 2 == 0: a(*bq.pop(0)); left -= 4
        if p == 40: work += prep() + cs_reads(0)
        if b == 39 and NP1 - 1 <= s < 5:
            if s == NP1 - 1:
                work += epilogue(0, 1) + epilogue(1, 2)
            else:
                work += [None] * 10 + epilogue(s, s + 1)
        while work and left >= cost(work[0]):
            left -= cost(work[0]); run(work.pop(0))
    assert not pend and not aq and not bq, (len(pend), len(aq), len(bq))
    stamp(a, cfg, 14)
    for x in work: run(x)
    for x in epilogue(5, None): run(x)
    a('s_waitcnt vmcnt(0)')
    a.vm_reset(); a.lg_reset()
    a('s_barrier')
    publish(a, WS_F3, S_MT3, S_NF, 16, 'p3')
    stamp(a, cfg, 15)


def phase4(a, cfg):
    ld = 'sc1'
    vOut = LOC
    ACC = LOC + 4
    assert ACC % 2 == 0 and LOC + 4 + 80 + 40 <= B4V
    NR = 10
    sT, sT2, sOut, sFl = range(S_T0 + 4, S_T0 + 8)
    sA = S_T0 + 8
    for n in range(5 * B4_EARLY, 60): a(b4_load(n))
    a_bases(a, sA, 192, WS_AHH, sT, sT2)
    row_addr(a, vOut, sOut, sT)
    a(f's_lshr_b32 s{sFl}, s{S_MT2}, 1')
    a(f's_lshl_b32 s{sFl}, s{sFl}, 7')
    a(f's_add_u32 s{sFl}, s{sFl}, {WS_F3}')
    stamp(a, cfg, 16)
    poll(a, sFl, 16, 'p4')
    stamp(a, cfg, 17)

    def a_load(kb, i):
        pre = f's_add_u32 s{sA + i}, s{sA + i}, 4096\n' if kb and kb % 4 == 0 else ''
        return (pre + f'buffer_load_dwordx4 {ar(((kb % NR) * 4 + i) * 4, 4)}, v{vL16}, s[{R_WS}:{R_WS+3}], s{sA + i} offen offset:{(kb % 4) * 1024} {ld}', ('A', kb))
    up = cfg.get('p4_up', 5)
    for kb in range(up):
        for i in range(4): a(*a_load(kb, i))
    for kb in range(12):
        a.vm_wait(('A', kb))
        nxt = [a_load(kb + up, i) for i in range(4)] if kb + up < 12 else []
        n = 0
        for j in range(5):
            for i in range(4):
                c = vr(ACC + (i * 5 + j) * 4, 4)
                a(f'v_mfma_f32_16x16x32_bf16 {c}, {b4_reg(kb * 5 + j)}, {ar(((kb % NR) * 4 + i) * 4, 4)}, {c if kb else 0}')
                n += 1
                if nxt and n % 4 == 2: a(*nxt.pop(0))
    stamp(a, cfg, 18)
    TMP = B4V
    reduce_scatter(a, ACC, TMP, 0, sT)
    unpack(a, H, TMP)
    for i in range(10):
        d = vr(ACC + 2 * i, 2)
        a(f'v_pk_add_f32 {d}, {d}, {vr(TMP + 2 * i, 2)}')
    for i in range(10):
        a(f'v_cvt_pk_bf16_f32 v{H + i}, v{ACC + 2 * i}, v{ACC + 2 * i + 1}')
    a(f'buffer_store_dwordx4 {vr(H, 4)}, v{vOut}, s[{R_OUT}:{R_OUT+3}], s{sOut} offen')
    a(f'buffer_store_dwordx4 {vr(H + 4, 4)}, v{vOut}, s[{R_OUT}:{R_OUT+3}], s{sOut} offen offset:16')
    a(f'buffer_store_dwordx2 {vr(H + 8, 2)}, v{vOut}, s[{R_OUT}:{R_OUT+3}], s{sOut} offen offset:32')


def build(cfg):
    a = Asm()
    name = NAME + '_kernel'
    kernel_head(a, name, 'L_exit', cfg.get('stamp'))
    a(f'v_and_b32 v{vM}, 15, v0')
    a(f'v_lshrrev_b32 v{vQ}, 4, v0')
    a(f'v_lshlrev_b32 v{vL16}, 4, v0')
    phase1(a, cfg)
    phase2(a, cfg)
    phase3(a, cfg)
    phase4(a, cfg)
    stamp_flush(a, cfg)
    a('L_exit:')
    a('s_endpgm')
    head = open('cdna_kernels/' + NAME + '.s.ref').read().split('; Override')[0]
    out = head + f'; @launch grid=(256,1,1) block=(256,1,1) lds={LDS_BYTES}\n'
    out += '.amdgcn_target "amdgcn-amd-amdhsa--gfx950"\n.text\n' + a.text()
    out += '.section .rodata,"a"\n' + descriptor(name, 512, 256, 102)
    return out


if __name__ == '__main__':
    cfg = json.loads(sys.argv[2]) if len(sys.argv) > 2 else {}
    open(sys.argv[1], 'w').write(build(cfg))
```

```python
import re

_REG = re.compile(r'\b([vas])(?:\[(\d+):(\d+)\]|(\d+))\b|\b([vas])\[(\d+):(\d+)\]')

def regs_of(tok):
    tok = tok.strip()
    out = set()
    m = re.fullmatch(r'-?(?:abs\()?\|?([vas])\[(\d+):(\d+)\]\|?\)?', tok)
    if m:
        for i in range(int(m.group(2)), int(m.group(3)) + 1):
            out.add((m.group(1), i))
        return out
    m = re.fullmatch(r'-?(?:abs\()?\|?([vas])(\d+)\|?\)?', tok)
    if m:
        out.add((m.group(1), int(m.group(2))))
        return out
    if tok in ('vcc', 'vcc_lo', 'vcc_hi'):
        out.add(('vcc', 0))
    elif tok in ('exec', 'exec_lo', 'exec_hi'):
        out.add(('exec', 0))
    elif tok == 'm0':
        out.add(('m0', 0))
    return out

TRANS = ('v_exp_f32', 'v_log_f32', 'v_rcp_f32', 'v_rsq_f32', 'v_sqrt_f32', 'v_sin_f32', 'v_cos_f32')

class Ins:
    __slots__ = ('text', 'op', 'cls', 'w', 'r', 'slots', 'passes', 'srcc', 'dpp', 'perm', 'rdlane', 'trans', 'widestore', 'lds_dma', 'sdwa', 'ab')

def parse(text):
    t = text.split(';')[0].strip()
    op = t.split()[0]
    rest = t[len(op):].strip()
    ops, depth, cur = [], 0, ''
    for ch in rest:
        if ch == '[': depth += 1
        if ch == ']': depth -= 1
        if ch == ',' and depth == 0:
            ops.append(cur.strip()); cur = ''
        else:
            cur += ch
    if cur.strip(): ops.append(cur.strip())
    mods = ''
    if ops:
        parts = ops[-1].split(None, 1)
        if len(parts) == 2:
            ops[-1], mods = parts
    i = Ins(); i.text = text; i.op = op; i.w = set(); i.r = set(); i.slots = 1; i.passes = 0; i.srcc = set(); i.ab = set()
    i.dpp = ('_dpp' in op) or ('row_' in mods) or ('quad_perm' in mods); i.perm = op.startswith('v_permlane')
    i.rdlane = op.startswith('v_readlane') or op.startswith('v_readfirstlane')
    i.trans = op.replace('_e32', '').replace('_e64', '') in TRANS
    i.widestore = False; i.lds_dma = False; i.sdwa = ('_sdwa' in op) or ('op_sel:' in mods and not op.startswith('v_pk'))
    R = [regs_of(o) for o in ops]
    if op == 's_nop':
        i.cls = 'salu'; i.slots = int(ops[0], 0) + 1
    elif op.startswith('v_mfma'):
        i.cls = 'mfma'; i.w = R[0]; i.ab = R[1] | R[2]; i.srcc = R[3]; i.r = i.ab | i.srcc
        i.passes = 8 if '32x32x16' in op else 4
    elif op.startswith('v_cmp'):
        i.cls = 'valu'; i.w = R[0]; i.r = set().union(*R[1:])
    elif op.startswith('v_permlane') and 'swap' in op:
        i.cls = 'valu'; i.w = R[0] | R[1]; i.r = R[0] | R[1]
    elif op.startswith('v_'):
        i.cls = 'valu'; i.w = R[0]; i.r = set().union(*R[1:]) if len(R) > 1 else set()
        if op.startswith(('v_fmac', 'v_dot2c', 'v_pk_fmac', 'v_writelane')) or i.dpp: i.r |= R[0]
        if op.startswith(('v_add_co', 'v_sub_co', 'v_addc_co', 'v_subb_co', 'v_mad_u64')): i.w |= R[1]
        if op.startswith('v_cndmask') and len(ops) == 3: i.r.add(('vcc', 0))
    elif op.startswith(('buffer_', 'global_', 'flat_')):
        i.cls = 'vmem'
        if op in ('buffer_wbl2', 'buffer_inv'):
            pass
        elif 'store' in op:
            i.r = set().union(*R)
            i.widestore = ('x3' in op or 'x4' in op)
            i.srcc = R[0] if op.startswith('buffer_') else R[1]
        elif 'atomic' in op:
            ret = 'sc0' in mods.split()
            if op.startswith('global_') and ret: i.w = R[0]; i.r = set().union(*R[1:])
            else:
                i.r = set().union(*R)
                if ret: i.w = R[0]
        elif 'lds' in mods.split() or '_lds_' in op:
            i.lds_dma = True; i.r = set().union(*R) | {('m0', 0)}
        else:
            i.w = R[0]; i.r = set().union(*R[1:])
    elif op.startswith('ds_'):
        i.cls = 'ds'
        if op.startswith(('ds_read', 'ds_bpermute', 'ds_permute', 'ds_swizzle')):
            i.w = R[0]; i.r = set().union(*R[1:])
        else:
            i.r = set().union(*R)
    elif op.startswith('s_'):
        i.cls = 'salu'
        if op.startswith(('s_cmp', 's_cbranch', 's_branch', 's_waitcnt', 's_barrier', 's_endpgm', 's_sleep', 's_setprio', 's_bitcmp')):
            i.r = set().union(*R) if R else set()
        else:
            i.w = R[0] if R else set(); i.r = set().union(*R[1:]) if len(R) > 1 else set()
            if 'saveexec' in op: i.w |= {('exec', 0)}
    else:
        raise ValueError('unknown op ' + text)
    return i

def vec(s): return {x for x in s if x[0] in 'va' and x[0] != 'vcc' and len(x[0]) == 1}
def sca(s): return {x for x in s if x[0] in ('s', 'vcc')}

def need(p, c):
    n = 0
    if p.cls == 'valu':
        pw = vec(p.w)
        if c.cls == 'mfma' and pw & c.r: n = max(n, 2)
        if c.cls == 'valu':
            if c.dpp and pw & c.r: n = max(n, 2)
            if c.perm and pw & c.r: n = max(n, 2)
            if c.rdlane and pw & c.r: n = max(n, 1)
            if p.trans and not c.trans and pw & c.r: n = max(n, 1)
            if p.trans and c.trans and pw & c.r: n = max(n, 1)
            if p.sdwa and pw & (c.r | c.w): n = max(n, 1)
        if p.trans and c.cls in ('vmem', 'ds') and pw & c.r: n = max(n, 1)
        if p.op.startswith('v_dot'):
            if c.op == p.op:
                if pw & (c.r - c.w): n = max(n, 3)
            elif pw & (c.r | c.w): n = max(n, 3)
        ps = sca(p.w)
        if ps:
            if c.cls == 'valu' and ps & c.r: n = max(n, 4 if (c.rdlane or c.op.startswith('v_writelane')) else 2)
            if c.cls == 'vmem' and ps & c.r: n = max(n, 5)
            if c.cls == 'salu' and ps & c.r: n = max(n, 1)
        if ('exec', 0) in p.w: n = max(n, 5)
    if p.cls == 'mfma':
        big = p.passes == 8
        if c.cls == 'mfma':
            if p.w & c.ab: n = max(n, 12 if big else 8)
            if p.w & c.srcc and not (p.w == c.srcc and p.passes == c.passes): n = max(n, 10 if big else 6)
            if p.w & c.w and not (p.w == c.srcc and p.passes == c.passes): n = max(n, 10 if big else 6)
        elif c.cls in ('valu', 'vmem', 'ds'):
            if p.w & (c.r | c.w): n = max(n, 12 if big else 8)
            if c.cls == 'valu' and p.srcc & c.w: n = max(n, 7 if big else 3)
    if p.cls == 'vmem' and p.widestore and c.cls in ('valu', 'mfma', 'ds', 'vmem') and p.srcc & c.w:
        n = max(n, 2)
    if p.cls == 'salu' and ('m0', 0) in p.w and c.lds_dma: n = max(n, 1)
    return n

class Asm:
    def __init__(self):
        self.lines = []
        self.hist = []
        self.vm = []
        self.lg = []
        self.marks = {}
        self.issued = set()
        self.nbytes_guess = 0
    def raw(self, s):
        self.lines.append(s)
    def comment(self, s):
        self.lines.append('    ; ' + s)
    def label(self, name):
        self.lines.append(name + ':')
        self.marks[name] = len(self.hist_all) if hasattr(self, 'hist_all') else 0
    def _deficit(self, hist, c):
        d = 0; dist = 0
        for p in reversed(hist):
            n = need(p, c)
            if n > dist: d = max(d, n - dist)
            dist += p.slots
            if dist >= 24: break
        return d
    def __call__(self, text, tag=None):
        for t in text.split('\n'):
            t = t.strip()
            if not t: continue
            if t.startswith(';'):
                self.lines.append('    ' + t); continue
            if t.endswith(':'):
                self.label(t[:-1]); continue
            c = parse(t)
            d = self._deficit(self.hist, c)
            while d > 0:
                k = min(d, 16)
                nop = parse(f's_nop {k-1}')
                self._push(nop); d -= k
            self._push(c)
            if c.cls == 'vmem':
                self.vm.append(tag); self.issued.add(tag)
            if c.cls == 'ds': self.lg.append(tag)
    def _push(self, c):
        self.lines.append('    ' + c.text)
        self.hist.append(c)
        if not hasattr(self, 'hist_all'): self.hist_all = []
        self.hist_all.append(c)
        if len(self.hist) > 40: self.hist.pop(0)
    def check_backedge(self, name):
        start = self.marks[name]
        hist = list(self.hist)
        for c in self.hist_all[start:start + 30]:
            d = self._deficit(hist, c)
            if d > 0:
                raise RuntimeError(f'back-edge hazard at {name}: {c.text} needs {d} more states')
            hist.append(c)
    def vm_reset(self, tags=()):
        self.vm = list(tags); self.issued = set(tags)
    def lg_reset(self): self.lg = []
    def vm_count_after(self, tag):
        idx = max(i for i, t in enumerate(self.vm) if t == tag)
        return len(self.vm) - 1 - idx
    def vm_wait(self, tag, extra='', must=True):
        assert not must or tag in self.issued, f'waiting for {tag}, which was never issued'
        if tag not in self.vm: return
        n = self.vm_count_after(tag)
        n = min(n, 63)
        self(f's_waitcnt vmcnt({n}){extra}')
        idx = len(self.vm) - n
        self.vm = [None] * 0 + self.vm[idx:] if n else []
    def vm_pending(self, tag): return tag in self.vm
    def lg_pending(self, tag): return tag in self.lg
    def lg_wait(self, tag):
        if tag not in self.lg: return
        idx = max(i for i, t in enumerate(self.lg) if t == tag)
        n = min(len(self.lg) - 1 - idx, 15)
        self(f's_waitcnt lgkmcnt({n})')
        self.lg = self.lg[len(self.lg) - n:] if n else []
    def lg_wait_all(self):
        self('s_waitcnt lgkmcnt(0)'); self.lg = []
    def vm_wait_all(self):
        self('s_waitcnt vmcnt(0)'); self.vm = []
    def text(self):
        return '\n'.join(self.lines) + '\n'

def vr(base, n=1, k='v'):
    return f'{k}{base}' if n == 1 else f'{k}[{base}:{base+n-1}]'
def ar(base, n=1): return vr(base, n, 'a')
def sr(base, n=1): return vr(base, n, 's')
```

```python
import sys, json, math
from common import *

NAME = 'sequential_preLN__sliding_local_dilated__glu_gated_geglu__prompt'

SLOT = 40960
WIMG = 10240
L_STG = 3 * SLOT
L_ONES = L_STG + 3 * 10240
L_SQ = L_ONES + 64
L_NONCE = L_SQ + 320
L_VS = 102400
P2_STG = 25600
STG3 = 24576
L_EX2 = 4 * STG3
L_CS = L_EX2 + 61440
LDS_BYTES = 163840

WS_F1, WS_F2, WS_F3, WS_F0 = WS_FLAGS, WS_FLAGS + 0x1000, WS_FLAGS + 0x2000, WS_FLAGS + 0x3000

vM, vQ, vL16, vT0, vT1, vT2, vT3 = 1, 2, 3, 4, 5, 6, 7
vPoll = 8
H = 16
LOC = 26
S_NONCE = 4
S_MT2, S_NT2, S_MT3, S_NF = 6, 7, 8, 9
R_A, R_B = 12, 16
NP1 = 3
B4V = 168
B4_EARLY = 24 + (256 - B4V) // 4
B3_GAP = 6
CSL = 224


def bs23(k):
    return (k & ~12) | ((k & 4) << 1) | ((k & 8) >> 1)


def order3():
    o = [(s, b) for b in range(40) for s in range(NP1)]
    o += [(s, b) for s in range(NP1, 6) for b in range(40)]
    return o


def weave(a, main, fill, lead=0, span=None):
    fill = list(fill)
    n = len(main)
    span = span or (n - lead)
    done = 0
    for i, m in enumerate(main):
        a(m)
        if i >= lead:
            want = min(len(fill), ((i - lead + 1) * len(fill) + span - 1) // span)
            while done < want:
                a(fill[done]); done += 1
    while done < len(fill):
        a(fill[done]); done += 1


class Rec:
    def __init__(self): self.items = []; self.cur = []
    def __call__(self, t, tag=None): self.cur.append(t)
    def cut(self):
        if self.cur: self.items.append('\n'.join(self.cur)); self.cur = []
    def each(self):
        self.items += self.cur; self.cur = []


def xcd_map(a, dM, dN, nM, nN, mode):
    mg, ng = (int(x) for x in mode.split('x'))
    lm, ln = nM // mg, nN // ng
    t = S_T0
    a(f's_and_b32 s{t}, s2, 7')
    a(f's_lshr_b32 s{t+1}, s2, 3')
    a(f's_lshr_b32 s{dM}, s{t}, {ng.bit_length() - 1}')
    a(f's_mul_i32 s{dM}, s{dM}, {lm}')
    a(f's_lshr_b32 s{t+2}, s{t+1}, {ln.bit_length() - 1}')
    a(f's_add_u32 s{dM}, s{dM}, s{t+2}')
    a(f's_and_b32 s{dN}, s{t}, {ng - 1}')
    a(f's_mul_i32 s{dN}, s{dN}, {ln}')
    a(f's_and_b32 s{t+2}, s{t+1}, {ln - 1}')
    a(f's_add_u32 s{dN}, s{dN}, s{t+2}')


def signal(a, base, sRow, sCol, ncol, tag):
    sT = S_T0
    a('s_waitcnt vmcnt(0) lgkmcnt(0)')
    a.vm_reset(); a.lg_reset()
    a('s_barrier')


def publish(a, base, sRow, sCol, ncol, tag):
    sT = S_T0
    a(f's_cmp_lg_u32 s{S_WAVE}, 0')
    a(f's_cbranch_scc1 L_pub_{tag}')
    a(f's_mul_i32 s{sT}, s{sRow}, {ncol}')
    a(f's_add_u32 s{sT}, s{sT}, s{sCol}')
    a(f's_lshl_b32 s{sT}, s{sT}, 3')
    a(f's_add_u32 s{sT}, s{sT}, {base}')
    a(f'v_mov_b32 v{vPoll}, s{S_NONCE}')
    a(f'v_mov_b32 v{vPoll + 1}, s{S_NONCE + 1}')
    a(f'v_mov_b32 v{vPoll + 2}, 0')
    a('s_mov_b64 exec, 1')
    a(f'buffer_store_dwordx2 {vr(vPoll, 2)}, v{vPoll + 2}, s[{R_WS}:{R_WS+3}], s{sT} offen sc1')
    a('s_mov_b64 exec, -1')
    a(f'L_pub_{tag}:')


POLL = {'deep': 1, 'sleep': 0, 'one': 2}


def poll(a, sBase, n, tag):
    sC, sX = S_T0, S_T0 + 2
    one = POLL.get('one') and n <= 64
    if one:
        a(f's_cmp_lg_u32 s{S_WAVE}, {POLL["one"] - 1}')
        a(f's_cbranch_scc1 L_polled_{tag}')
    a(f's_mov_b32 s{sC}, 0')
    if POLL.get('pre') and n <= 64: a(f"s_sleep {POLL['pre']}")
    if n <= 64:
        a(f'v_and_b32 v{vT0}, {n - 1}, v0')
        a(f'v_lshlrev_b32 v{vT0}, 3, v{vT0}')
        ld = lambda k: f'buffer_load_dwordx2 {vr(vPoll + 2 * k, 2)}, v{vT0}, s[{R_WS}:{R_WS+3}], s{sBase} offen sc1'
        if POLL['deep'] == 2:
            a(ld(0))
            a('s_sleep 5')
        a(f'L_poll_{tag}:')
        for k in range(POLL['deep']):
            a(ld(1 - k if POLL['deep'] == 2 else 0))
            a(f"s_waitcnt vmcnt({POLL['deep'] - 1})")
            a(f'v_cmp_ne_u64 vcc, s[{S_NONCE}:{S_NONCE+1}], {vr(vPoll + 2 * k, 2)}')
            a('s_cmp_eq_u64 vcc, 0')
            a(f's_cbranch_scc1 L_polled_{tag}')
            if POLL['sleep']: a(f"s_sleep {POLL['sleep']}")
    else:
        a(f'L_poll_{tag}:')
        a(f'buffer_load_dwordx4 {vr(vPoll, 4)}, v{vL16}, s[{R_WS}:{R_WS+3}], s{sBase} offen sc1')
        a(f'buffer_load_dwordx4 {vr(vPoll + 4, 4)}, v{vL16}, s[{R_WS}:{R_WS+3}], s{sBase} offen offset:1024 sc1')
        a('s_waitcnt vmcnt(0)')
        a(f'v_cmp_ne_u64 vcc, s[{S_NONCE}:{S_NONCE+1}], {vr(vPoll, 2)}')
        for k in range(1, 4):
            a(f'v_cmp_ne_u64 s[{sX}:{sX+1}], s[{S_NONCE}:{S_NONCE+1}], {vr(vPoll + 2 * k, 2)}')
            a(f's_or_b64 vcc, vcc, s[{sX}:{sX+1}]')
        a('s_cmp_eq_u64 vcc, 0')
        a(f's_cbranch_scc1 L_polled_{tag}')
    a(f's_add_u32 s{sC}, s{sC}, 1')
    a(f's_cmp_lt_u32 s{sC}, 0x10000')
    a(f's_cbranch_scc1 L_poll_{tag}')
    a(f'L_polled_{tag}:')
    if one:
        a('s_waitcnt vmcnt(0)')
        a('s_barrier')
    a.vm_reset()


def phase1(a, cfg):
    st = 'sc1'
    V = Alloc(LOC)
    vXo0, vXo1, vWo = V(), V(), V()
    vXb0, vXb1, vWb, vWrB, vWrK, vHb0, vHb1, vHK, vOb0, vOb1 = [V() for _ in range(10)]
    vXa0, vXa1, vWa, vHa, vOa = [V() for _ in range(5)]
    vRa = V(2)
    vR, vR2 = V(5), V(5)
    vNon = V(4, 2)
    SQ = V(8, 4)
    ACC = V(80, 4)
    FX = [V(24, 4), V(24, 4)]
    FW = [V(16, 4), V(16, 4)]
    acc = lambda sub, T: ACC + (sub * 4 + T) * 4
    KF = [V(4, 2) for _ in range(5)]
    sT, sT2, sI, sSlotR, sSlotW, sStage, sXoff, sWoff, sU, sM0x, sM0w = range(S_T0 + 3, S_T0 + 14)
    sMul, sMuls, sRb, sRs0, sRs1, sRoA, sRoB, sRstr, sWo, sWoM = range(S_T0 + 14, S_T0 + 24)
    sSc0, sOm, sOr = 59, 22, 23
    vB, vB0, vOm, vOr, vVw, vVw2 = H, H + 4, H + 6, H + 7, H + 8, H + 9
    vVr, vVr2 = vPoll + 6, vPoll + 7

    xcd_map(a, S_MT, S_NT, 32, 8, cfg.get('map1', '4x2'))
    a(f's_and_b32 s{sT}, s{S_WAVE}, 1')
    a(f's_lshl_b32 s{sT}, s{sT}, 2')
    a(f'v_add_u32 v{vT0}, s{sT}, v{vQ}')
    a(f'v_and_b32 v{vT1}, 7, v0')
    a(f'v_xor_b32 v{vT0}, v{vT0}, v{vT1}')
    a(f'v_lshlrev_b32 v{vT0}, 4, v{vT0}')
    a(f's_lshl_b32 s{sT}, s{S_MT}, 6')
    a(f's_lshl_b32 s{sT2}, s{S_WAVE}, 3')
    a(f's_add_u32 s{sT}, s{sT}, s{sT2}')
    a(f's_sub_u32 s{sT}, s{sT}, 16')
    a(f'v_lshrrev_b32 v{vT1}, 3, v0')
    a(f'v_add_u32 v{vT1}, s{sT}, v{vT1}')
    a(f'v_add_u32 v{vT2}, 32, v{vT1}')
    a(f'v_max_i32 v{vT1}, 0, v{vT1}')
    a(f's_movk_i32 s{sT}, 1280')
    a(f'v_mad_u32_u24 v{vXo0}, v{vT1}, s{sT}, v{vT0}')
    a(f'v_mad_u32_u24 v{vXo1}, v{vT2}, s{sT}, v{vT0}')
    a(f'v_cmp_le_u32 vcc, 30, v0')
    a(f'v_subrev_u32 v{vT1}, 30, v0')
    a(f'v_mov_b32 v{vT3}, 3840')
    a(f'v_cndmask_b32 v{vT1}, v0, v{vT1}, vcc')
    a(f'v_cndmask_b32 v{vT2}, 0, v{vT3}, vcc')
    a(f'v_mul_u32_u24 v{vT3}, 26, v{vT1}')
    a(f'v_lshrrev_b32 v{vT3}, 8, v{vT3}')
    a(f's_movk_i32 s{sT}, 1120')
    a(f'v_mad_u32_u24 v{vT2}, v{vT3}, s{sT}, v{vT2}')
    a(f'v_lshl_add_u32 v{vT2}, v{vT1}, 4, v{vT2}')
    a(f's_mul_i32 s{sT}, s{S_NT}, 160')
    a(f's_mul_i32 s{sT2}, s{S_WAVE}, {16 * 3840}')
    a(f's_add_u32 s{sT}, s{sT}, s{sT2}')
    a(f'v_add_u32 v{vWo}, s{sT}, v{vT2}')
    rot = cfg.get('rot', 'all')
    if rot == 'all':
        a(f's_lshr_b32 s{sT}, s2, 3')
        a(f's_mul_i32 s{sStage}, s{sT}, 3')
        a(f's_mul_i32 s{sT}, s{sStage}, 6554')
        a(f's_lshr_b32 s{sT}, s{sT}, 16')
        a(f's_mul_i32 s{sT}, s{sT}, 10')
        a(f's_sub_u32 s{sStage}, s{sStage}, s{sT}')
    else:
        groups, step = rot
        a(f's_add_u32 s{sStage}, s{S_MT}, s{S_NT}')
        a(f's_and_b32 s{sStage}, s{sStage}, {groups - 1}')
        a(f's_mul_i32 s{sStage}, s{sStage}, {step}')
    a(f's_lshl_b32 s{sM0x}, s{S_WAVE}, 10')
    a(f's_mul_i32 s{sM0w}, s{S_WAVE}, {8 * 960}')
    a(f's_add_u32 s{sM0w}, s{sM0w}, {WIMG}')
    kernel_srds(a, ['x', 'wq'])
    stamp(a, cfg, 1)
    uid = [0]

    sDa, sDb = 0, 1

    def w_dma(j):
        return (f's_add_u32 s{sDa}, s{sM0w}, s{sSlotW}\n' if j in (0, 3) else '') + \
            (f's_add_u32 m0, s{sDa}, {960 * j}\n'
             f's_add_u32 s{sDb}, s{sWoff}, {bs23(2 * j) * 3840}\n'
             f's_mov_b32 exec_hi, 0x0fffffff\n'
             f'buffer_load_dwordx4 v{vWo}, s[{R_WQ}:{R_WQ+3}], s{sDb} offen lds\n'
             f's_mov_b32 exec_hi, -1')

    def first_half(slot=None):
        uid[0] += 1
        o = [(f's_mov_b32 s{sSlotW}, {slot}\n' if slot is not None else '') +
             f's_lshl_b32 s{sXoff}, s{sStage}, 7\n'
             f's_mul_i32 s{sWoff}, s{sStage}, {64 * 3840}\n'
             f's_add_u32 m0, s{sM0x}, s{sSlotW}\n'
             f's_add_u32 s{sStage}, s{sStage}, 1\n'
             f'buffer_load_dwordx4 v{vXo0}, s[{R_X}:{R_X+3}], s{sXoff} offen lds',
             f's_add_u32 m0, m0, 4096\n'
             f's_cmp_eq_u32 s{sStage}, 10\n'
             f'buffer_load_dwordx4 v{vXo1}, s[{R_X}:{R_X+3}], s{sXoff} offen lds\n'
             f's_cselect_b32 s{sStage}, 0, s{sStage}',
             f's_cmp_ge_u32 s{S_WAVE}, 2\n'
             f's_cbranch_scc1 L_p1_x2_{uid[0]}\n'
             f's_add_u32 m0, m0, 4096\n'
             f's_add_u32 s{sDb}, s{sXoff}, {32 * 1280}\n'
             f'buffer_load_dwordx4 v{vXo1}, s[{R_X}:{R_X+3}], s{sDb} offen lds\n'
             f'L_p1_x2_{uid[0]}:']
        return o + [w_dma(j) for j in range(3)]

    def second_half():
        return [w_dma(j) for j in range(3, 8)]

    def wo_dma(u):
        return [f's_add_u32 m0, s{sWoM}, {(20 * u + i) * 1024}\n'
                f's_add_u32 s{sDb}, s{sWo}, {u * 4 * 32 * 1280}\n'
                f'buffer_load_dwordx4 v{vR + i}, s[{R_WO}:{R_WO+3}], s{sDb} offen lds' for i in range(5)]

    def rp_dma():
        o = []
        for i in range(5):
            for side, (R, so) in enumerate(((R_A, sRoA), (R_B, sRoB))):
                o.append(f's_add_u32 m0, s{sRb}, {side * 5120 + i * 1024}\ns_nop 0\n'
                         f'buffer_load_dwordx4 v{vR2 + i}, s[{R}:{R+3}], s{so} offen lds\n'
                         f's_add_u32 s{so}, s{so}, s{sRstr}')
        return o

    for x in first_half(2 * SLOT) + second_half(): a(x)

    r = Rec()
    r(f'v_lshrrev_b32 v{vT0}, 1, v{vM}')
    r(f'v_xor_b32 v{vT0}, v{vT0}, v{vQ}')
    r(f'v_lshlrev_b32 v{vT0}, 4, v{vT0}')
    r(f'v_lshl_add_u32 v{vXb0}, v{vM}, 7, v{vT0}')
    r(f'v_xor_b32 v{vXb1}, 64, v{vXb0}')
    r(f's_lshl_b32 s{sT}, s{S_WAVE}, 11')
    r(f's_add_u32 s{sT}, s{sT}, 2048')
    r(f'v_add_u32 v{vOb0}, s{sT}, v{vXb0}')
    r(f'v_add_u32 v{vOb1}, s{sT}, v{vXb1}')
    r(f'v_cmp_eq_u32 vcc, 0, v{vM}')
    r(f'v_mov_b32 v{vT0}, {L_ONES}')
    r(f'v_cndmask_b32 v{vHb0}, v{vXb0}, v{vT0}, vcc')
    r(f'v_cndmask_b32 v{vHb1}, v{vXb1}, v{vT0}, vcc')
    r(f'v_cndmask_b32 v{vHK}, 1, 0, vcc')
    r(f'v_lshrrev_b32 v{vT0}, 1, v{vQ}')
    r(f'v_lshlrev_b32 v{vT0}, 4, v{vT0}')
    r(f'v_and_b32 v{vT1}, 1, v{vQ}')
    r(f'v_lshl_add_u32 v{vT0}, v{vT1}, 2, v{vT0}')
    r(f'v_lshrrev_b32 v{vT1}, 2, v{vM}')
    r(f'v_add_u32 v{vT0}, v{vT0}, v{vT1}')
    r(f'v_mul_u32_u24 v{vT0}, 480, v{vT0}')
    r(f's_mul_i32 s{sT}, s{S_WAVE}, 40')
    r(f's_add_u32 s{sT}, s{sT}, {WIMG}')
    r(f'v_add_u32 v{vT0}, s{sT}, v{vT0}')
    r(f'v_and_b32 v{vT1}, 3, v0')
    r(f'v_lshl_add_u32 v{vWb}, v{vT1}, 3, v{vT0}')
    r(f'v_add_u32 v{vWrB}, {160 + 32}, v{vT0}')
    r(f'v_add_u32 v{vT2}, 32, v{vT0}')
    r(f'v_cmp_eq_u32 vcc, 1, v{vT1}')
    r(f'v_cndmask_b32 v{vWrB}, v{vWrB}, v{vT2}, vcc')
    r(f'v_add_u32 v{vT2}, {320 + 32}, v{vT0}')
    r(f'v_cmp_eq_u32 vcc, 2, v{vT1}')
    r(f'v_cndmask_b32 v{vWrB}, v{vWrB}, v{vT2}, vcc')
    r(f'v_mov_b32 v{vT2}, {L_ONES}')
    r(f'v_cmp_eq_u32 vcc, 3, v{vT1}')
    r(f'v_cndmask_b32 v{vWrB}, v{vWrB}, v{vT2}, vcc')
    r(f'v_cndmask_b32 v{vWrK}, 1, 0, vcc')
    r(f'v_mov_b32 v{vT0}, 0x3f803f80')
    r(f'v_lshlrev_b32 v{vT1}, 2, v{vM}')
    r(f'v_add_u32 v{vT1}, {L_ONES}, v{vT1}')
    r(f'ds_write_b32 v{vT1}, v{vT0}')
    for k in ('wo', 'g', 'u', 'dn', 'out', 'ws'):
        srd(r, *SRD_TABLE[k])
    if cfg.get('tlb', 0):
        r(f'v_lshlrev_b32 v{vT3}, 19, v0')
        for R in (R_WS, R_G, R_U, R_DN, R_OUT):
            r(f'buffer_load_dword v{vPoll + 3}, v{vT3}, s[{R}:{R+3}], 0 offen')
    r.each()
    r(f'v_mov_b32 v{vNon + 2}, 0')
    r(f's_or_b32 s{sT}, s2, s{S_WAVE}')
    r(f's_cmp_lg_u32 s{sT}, 0')
    r('s_cbranch_scc1 L_p1_notag')
    r(f's_memrealtime s[{sMul}:{sMul+1}]')
    r('s_waitcnt lgkmcnt(0)')
    r(f's_or_b32 s{sMul}, s{sMul}, 1')
    r(f'v_mov_b32 v{vNon}, s{sMul}')
    r(f'v_mov_b32 v{vNon + 1}, s{sMul+1}')
    r('s_mov_b64 exec, 1')
    r(f'global_store_dwordx2 v{vNon + 2}, {vr(vNon, 2)}, s[{S_DBG}:{S_DBG+1}] sc1')
    r('s_mov_b64 exec, -1')
    r('L_p1_notag:')
    r.cut()
    xcd_map(r, S_MT2, S_NT2, 32, 8, cfg.get('map2', '4x2'))
    xcd_map(r, S_MT3, S_NF, 16, 16, cfg.get('map3', '4x2'))
    r(f's_movk_i32 s{sT}, 6554')
    r(f's_movk_i32 s{sT2}, 1120')
    for i in range(5):
        r(f'v_add_u32 v{vT0}, {64 * i}, v0')
        r(f'v_mul_u32_u24 v{vT1}, s{sT}, v{vT0}')
        r(f'v_lshrrev_b32 v{vT1}, 16, v{vT1}')
        r(f'v_lshlrev_b32 v{vT0}, 4, v{vT0}')
        r(f'v_mad_u32_u24 v{vR + i}, v{vT1}, s{sT2}, v{vT0}')
    r(f's_mul_i32 s{sWo}, s{S_WAVE}, {32 * 1280}')
    r(f's_mul_i32 s{sT}, s{S_NT2}, 160')
    r(f's_add_u32 s{sWo}, s{sWo}, s{sT}')
    r(f's_mul_i32 s{sWoM}, s{S_WAVE}, 5120')
    r(f's_lshl_b32 s{sU}, s2, 1')
    r(f's_add_u32 s{sU}, s{sU}, s{S_WAVE}')
    r(f's_add_u32 s{sT}, s2, 512')
    r.each()
    r(f's_cmp_lt_u32 s{S_WAVE}, 2')
    r(f's_cselect_b32 s{sU}, s{sU}, s{sT}')
    r(f's_cmp_eq_u32 s{S_WAVE}, 3')
    r(f's_cselect_b32 s{sU}, 1000, s{sU}')
    r(f's_mul_i32 s{sRb}, s{S_WAVE}, 10240')
    r(f's_add_u32 s{sRb}, s{sRb}, {L_STG}')
    r(f's_cmp_ge_u32 s{sU}, 384')
    r('s_cbranch_scc1 L_p1_udown')
    r(f's_mul_i32 s{sRs0}, s{sU}, 1366')
    r(f's_lshr_b32 s{sRs0}, s{sRs0}, 16')
    r(f's_mul_i32 s{sT}, s{sRs0}, 48')
    r(f's_sub_u32 s{sRs1}, s{sU}, s{sT}')
    r(f'v_lshrrev_b32 v{vT0}, 2, v0')
    r(f'v_mul_u32_u24 v{vT0}, 3072, v{vT0}')
    r(f'v_and_b32 v{vT1}, 3, v0')
    for i in range(5): r(f'v_lshl_add_u32 v{vR2 + i}, v{vT1}, 4, v{vT0}')
    r(f's_mul_i32 s{sRoA}, s{sRs0}, {80 * 3072}')
    r(f's_lshl_b32 s{sT2}, s{sRs1}, 6')
    r(f's_add_u32 s{sRoA}, s{sRoA}, s{sT2}')
    r(f's_mov_b32 s{sRoB}, s{sRoA}')
    r(f's_mov_b32 s{sRstr}, {16 * 3072}')
    r(f's_mov_b64 s[{R_A}:{R_A+1}], s[{R_G}:{R_G+1}]')
    r(f's_mov_b64 s[{R_B}:{R_B+1}], s[{R_U}:{R_U+1}]')
    r('s_branch L_p1_uset')
    r('L_p1_udown:')
    r(f's_sub_u32 s{sT}, s{sU}, 384')
    r(f's_lshr_b32 s{sRs0}, s{sT}, 3')
    r(f's_and_b32 s{sRs1}, s{sT}, 7')
    for i in range(5): r(f'v_mov_b32 v{vR2 + i}, v{vR + i}')
    r(f's_mul_i32 s{sRoA}, s{sRs0}, {64 * 1280}')
    r(f's_mul_i32 s{sT2}, s{sRs1}, 160')
    r(f's_add_u32 s{sRoA}, s{sRoA}, s{sT2}')
    r(f's_add_u32 s{sRoB}, s{sRoA}, {32 * 1280}')
    r(f's_mov_b32 s{sRstr}, 0')
    r(f's_mov_b64 s[{R_A}:{R_A+1}], s[{R_DN}:{R_DN+1}]')
    r(f's_mov_b64 s[{R_B}:{R_B+1}], s[{R_DN}:{R_DN+1}]')
    r('L_p1_uset:')
    r(f's_cmp_lt_u32 s{sU}, 576')
    r(f's_cselect_b32 s{R_A+2}, {WG_BYTES}, 0')
    r(f's_cselect_b32 s{R_B+2}, {WG_BYTES}, 0')
    r(f's_cselect_b32 s{sRb}, s{sRb}, 0x30000')
    r(f's_mov_b32 s{R_A+3}, 0x20000')
    r(f's_mov_b32 s{R_B+3}, 0x20000')
    r.cut()
    weave(a, r.items, first_half(0) + second_half() + first_half(SLOT))
    r = Rec()
    for i in range(88): r(f'v_mov_b32 v{SQ + i}, 0')
    LOG2E = math.log2(math.e)
    csc = (20 ** -0.5) * LOG2E
    r(f'v_lshlrev_b32 v{vT0}, 2, v{vQ}')
    r(f'v_sub_u32 v{vT0}, v{vM}, v{vT0}')
    r(f'v_and_b32 v{vT0}, -2, v{vT0}')
    r(f'v_mov_b32 v{vT2}, {f32(-1e30)}')
    r.each()
    r(f's_cmp_eq_u32 s{S_MT}, 0')
    r(f's_cselect_b32 s{sT}, {f32(-1e9 * LOG2E)}, 0')
    r(f's_cselect_b32 s{sSc0}, 0, {f32(csc)}')
    r.cut()
    r(f'v_mov_b32 v{vT3}, s{sT}')
    for blk in range(2):
        for c in range(2):
            r(f'v_add_u32 v{vT1}, {16 - 16 * blk - 2 * c}, v{vT0}')
            r(f'v_cmp_gt_u32 vcc, 16, v{vT1}')
            r(f'v_cndmask_b32 v{vB + 2 * blk + c}, v{vT2}, 0, vcc')
            if blk == 0: r(f'v_cndmask_b32 v{vB0 + c}, v{vT2}, v{vT3}, vcc')
    r(f'v_and_b32 v{vT0}, 1, v{vQ}')
    r(f'v_mul_u32_u24 v{vT0}, {80 * 256}, v{vT0}')
    r(f'v_lshrrev_b32 v{vT1}, 1, v{vQ}')
    r(f'v_lshl_add_u32 v{vT0}, v{vT1}, 8, v{vT0}')
    r(f'v_lshl_add_u32 v{vOm}, v{vM}, 4, v{vT0}')
    r(f'v_mul_u32_u24 v{vT1}, {80 * 256}, v{vQ}')
    r(f'v_lshl_add_u32 v{vOr}, v{vM}, 4, v{vT1}')
    r(f's_mul_i32 s{sT}, s{S_WAVE}, 3328')
    r(f's_add_u32 s{sT}, s{sT}, {L_VS}')
    r(f'v_mul_u32_u24 v{vT0}, 40, v{vM}')
    r(f'v_add_u32 v{vVw2}, s{sT}, v{vT0}')
    r(f'v_lshl_add_u32 v{vVw}, v{vQ}, 3, v{vVw2}')
    r(f'v_lshrrev_b32 v{vT1}, 2, v0')
    r(f'v_mul_u32_u24 v{vT1}, 40, v{vT1}')
    r(f'v_add_u32 v{vVr2}, s{sT}, v{vT1}')
    r(f'v_and_b32 v{vT1}, 3, v0')
    r(f'v_lshl_add_u32 v{vVr}, v{vT1}, 3, v{vVr2}')
    r(f's_lshr_b32 s{sT}, s{S_NT}, 1')
    r(f's_mul_i32 s{sT}, s{sT}, 20')
    r(f's_mul_i32 s{sT2}, s{S_MT}, {4 * 80}')
    r(f's_add_u32 s{sT}, s{sT}, s{sT2}')
    r(f's_and_b32 s{sT2}, s{S_NT}, 1')
    r(f's_lshl_b32 s{sOm}, s{sT2}, 3')
    r(f's_add_u32 s{sOm}, s{sOm}, s{sT}')
    r(f's_lshl_b32 s{sOr}, s{S_WAVE}, 1')
    r(f's_add_u32 s{sOm}, s{sOm}, s{sOr}')
    r(f's_lshl_b32 s{sOm}, s{sOm}, 8')
    r(f's_add_u32 s{sOm}, s{sOm}, {WS_AO}')
    r(f's_lshl_b32 s{sT2}, s{sT2}, 1')
    r(f's_add_u32 s{sT}, s{sT}, s{sT2}')
    r(f's_lshr_b32 s{sT2}, s{S_WAVE}, 1')
    r(f's_add_u32 s{sT}, s{sT}, s{sT2}')
    r(f's_lshl_b32 s{sT}, s{sT}, 8')
    r(f's_and_b32 s{sT2}, s{S_WAVE}, 1')
    r(f's_lshl_b32 s{sT2}, s{sT2}, 3')
    r(f's_add_u32 s{sT}, s{sT}, s{sT2}')
    r(f's_add_u32 s{sOr}, s{sT}, {WS_AO + 16 * 256}')
    r(f's_mov_b32 s{sI}, 0')
    r(f's_mov_b32 s{sSlotR}, {2 * SLOT}')
    r(f's_lshl_b32 s{sT}, s2, 2')
    r(f's_add_u32 s{sT}, s{sT}, s{S_WAVE}')
    r(f's_lshl_b32 s{sT}, s{sT}, 10')
    r(f'buffer_load_dwordx4 {vr(KF[0], 4)}, v{vL16}, s[{R_WO}:{R_WO+3}], s{sT} offen')
    r.each()
    for x in r.items: a(x)

    def reads(h):
        xa = vXa0 if h == 0 else vXa1
        pre = []
        if h == 0:
            pre += [f'v_add_u32 v{vWa}, s{sSlotR}, v{vWb}', f'v_add_u32 v{vXa0}, s{sSlotR}, v{vXb0}',
                    f'v_add_u32 v{vXa1}, s{sSlotR}, v{vXb1}']
        o = []
        for T in range(3):
            for hh in range(2):
                o.append(f'ds_read_b64_tr_b16 {vr(FW[h] + 4 * T + 2 * hh, 2)}, v{vWa} offset:{h * 15360 + hh * 3840 + T * 160}')
        for hh in range(2):
            o[hh] += (f'\ns_add_u32 s{sMul}, s{sSlotR}, {h * 15360 + hh * 3840}\n'
                      f'v_mad_u32_u24 v{vRa + hh}, v{vWrK}, s{sMul}, v{vWrB}')
            o.append(f'ds_read_b64_tr_b16 {vr(FW[h] + 12 + 2 * hh, 2)}, v{vRa + hh}')
        o[2] += f'\nv_mad_u32_u24 v{vHa}, v{vHK}, s{sSlotR}, v{vHb0 if h == 0 else vHb1}'
        o[3] += f'\nv_add_u32 v{vOa}, s{sSlotR}, v{vOb0 if h == 0 else vOb1}'
        o.append(f'ds_read_b128 {vr(FX[h], 4)}, v{vHa}')
        for sub in range(1, 5):
            o.append(f'ds_read_b128 {vr(FX[h] + 4 * sub, 4)}, v{xa} offset:{sub * 2048}')
        o.append(f'ds_read_b128 {vr(FX[h] + 20, 4)}, v{vOa}')
        if cfg.get('x_noread'): o = []
        return pre, o

    def mfmas(h):
        o = []
        for sub in range(5):
            for T in range(4):
                c = vr(acc(sub, T), 4)
                o.append(f'v_mfma_f32_16x16x32_bf16 {c}, {vr(FW[h] + 4 * T, 4)}, {vr(FX[h] + 4 * sub, 4)}, {c}')
        o.append(f'v_mfma_f32_16x16x32_bf16 {vr(SQ, 4)}, {vr(FX[h], 4)}, {vr(FX[h], 4)}, {vr(SQ, 4)}')
        o.append(f'v_mfma_f32_16x16x32_bf16 {vr(SQ + 4, 4)}, {vr(FX[h] + 20, 4)}, {vr(FX[h] + 20, 4)}, {vr(SQ + 4, 4)}')
        if cfg.get('x_nomfma'): o = ['s_nop 0'] * 22
        return o

    def mix(rd, dma):
        out = []
        rd, dma = list(rd), list(dma)
        while rd or dma:
            out += rd[:2]; rd = rd[2:]
            out += dma[:1]; dma = dma[1:]
        return out

    def iteration(dma0, dma1, nwait, last=False, mid=None):
        if cfg.get('x_nodma') and nwait == 10: dma0, dma1 = [], []
        a('s_waitcnt lgkmcnt(0)')
        weave(a, mfmas(0), mix(reads(1)[1], dma0), span=20)
        if last:
            a('s_waitcnt lgkmcnt(0)')
            a('s_barrier')
            weave(a, mfmas(1), dma1, span=20)
            return
        a(f's_mov_b32 s{sSlotW}, s{sSlotR}')
        a(f's_add_u32 s{sSlotR}, s{sSlotR}, {SLOT}')
        a(f's_cmp_eq_u32 s{sSlotR}, {3 * SLOT}')
        a(f's_cselect_b32 s{sSlotR}, 0, s{sSlotR}')
        pre, rd = reads(0)
        a(f's_waitcnt vmcnt({nwait}) lgkmcnt(0)')
        for x in pre: a(x)
        a('s_barrier')
        if mid: mid()
        weave(a, mfmas(1), mix(rd, dma1), span=20)

    def repack():
        RF = KF[0]
        vCa, vCb, vOne = vR2, vR2 + 1, vR2 + 2
        a(f's_mov_b64 s[{R_A}:{R_A+1}], s[{R_WS}:{R_WS+1}]')
        a(f's_mov_b64 s[{R_B}:{R_B+1}], s[{R_WS}:{R_WS+1}]')
        a(f's_mov_b32 s{R_B+2}, 0')
        a(f's_cmp_lt_u32 s{sU}, 576')
        a(f's_cselect_b32 s{R_A+2}, {WS_BYTES}, 0')
        a(f's_cselect_b32 s{sRb}, s{sRb}, 0')
        a(f's_cmp_ge_u32 s{sU}, 384')
        a('s_cbranch_scc1 L_p1_rd')
        a(f'v_lshrrev_b32 v{vT0}, 1, v0')
        a(f'v_and_b32 v{vT0}, 1, v{vT0}')
        a(f'v_mul_u32_u24 v{vT0}, 5120, v{vT0}')
        a(f'v_and_b32 v{vT1}, 1, v0')
        a(f'v_lshl_add_u32 v{vT0}, v{vT1}, 3, v{vT0}')
        a(f'v_and_b32 v{vT1}, 1, v{vQ}')
        a(f'v_lshl_add_u32 v{vT0}, v{vT1}, 4, v{vT0}')
        a(f'v_lshrrev_b32 v{vT1}, 2, v{vM}')
        a(f'v_lshl_add_u32 v{vT0}, v{vT1}, 6, v{vT0}')
        a(f'v_add_u32 v{vT0}, s{sRb}, v{vT0}')
        a(f'v_lshrrev_b32 v{vT1}, 5, v0')
        a(f'v_lshl_add_u32 v{vT2}, v{vT1}, 9, v{vT0}')
        a(f'v_mul_u32_u24 v{vT1}, {40 * 64}, v{vT1}')
        a(f'v_add_u32 v{vT0}, v{vT1}, v{vT0}')
        a(f'v_mov_b32 v{vCa}, 0')
        a(f'v_mov_b32 v{vCb}, 0')
        a(f'v_mov_b32 v{vOne}, 0x3f803f80')
        sNf, sSp, sB0, sB1 = sRoA, sRoB, sRstr, sMuls
        for sl in range(2):
            a.lg_reset()
            for bp in range(5):
                for h in range(2):
                    if bp < 4:
                        a(f'ds_read_b64_tr_b16 {vr(RF + 4 * bp + 2 * h, 2)}, v{vT2} offset:{bp * 1280 + h * 256 + 32 * sl}', tag=bp)
                    else:
                        a(f'ds_read_b64_tr_b16 {vr(RF + 4 * bp + 2 * h, 2)}, v{vT0} offset:{16 * 64 + h * 1280 + 32 * sl}', tag=bp)
            if sl == 0:
                a(f's_mul_i32 s{sNf}, s{sRs1}, 21846')
                a(f's_lshr_b32 s{sNf}, s{sNf}, 16')
                a(f's_mul_i32 s{sT2}, s{sNf}, 3')
                a(f's_sub_u32 s{sSp}, s{sRs1}, s{sT2}')
                a(f's_lshl_b32 s{sSp}, s{sSp}, 1')
                a(f's_mul_i32 s{sNf}, s{sNf}, 240')
                a(f's_lshr_b32 s{sB0}, s{sRs0}, 1')
                a(f's_mul_i32 s{sB0}, s{sB0}, 10')
                a(f's_and_b32 s{sT}, s{sRs0}, 1')
                a(f's_add_u32 s{sB1}, s{sB0}, s{sT}')
                a(f's_add_u32 s{sB1}, s{sB1}, 8')
                a(f's_lshl_b32 s{sT}, s{sT}, 2')
                a(f's_add_u32 s{sB0}, s{sB0}, s{sT}')
            else:
                a(f's_add_u32 s{sSp}, s{sSp}, 1')
            a(f's_mul_i32 s{sT}, s{sSp}, 40')
            a(f's_cmp_lt_u32 s{sSp}, {NP1}')
            a(f's_cselect_b32 s{sT}, s{sSp}, s{sT}')
            a(f's_cselect_b32 s{sMul}, {NP1}, 1')
            a(f's_add_u32 s{sT}, s{sT}, s{sNf}')
            a(f's_mul_i32 s{sT2}, s{sB0}, s{sMul}')
            a(f's_add_u32 s{sT2}, s{sT2}, s{sT}')
            a(f's_lshl_b32 s{sT2}, s{sT2}, 10')
            a(f's_mul_i32 s{sDa}, s{sB1}, s{sMul}')
            a(f's_add_u32 s{sT}, s{sDa}, s{sT}')
            a(f's_lshl_b32 s{sT}, s{sT}, 10')
            a(f's_lshl_b32 s{sMul}, s{sMul}, 10')
            for bp in range(5):
                a.lg_wait(bp)
                a(f'buffer_store_dwordx4 {vr(RF + 4 * bp, 4)}, v{vL16}, s[{R_A}:{R_A+3}], s{sT2 if bp < 4 else sT} offen {st}')
                if bp < 3: a(f's_add_u32 s{sT2}, s{sT2}, s{sMul}')
            for n in range(20): a(f'v_dot2c_f32_bf16 v{vCb if sl else vCa}, v{RF + n}, v{vOne}')
        a(f's_mul_i32 s{sT}, s{sRs0}, {3072 * 4}')
        a(f's_lshl_b32 s{sT2}, s{sRs1}, 8')
        a(f's_add_u32 s{sT}, s{sT}, s{sT2}')
        a(f's_add_u32 s{sT}, s{sT}, {WS_CS}')
        a(f'v_permlane32_swap_b32 v{vCa}, v{vCb}')
        a(f'v_lshlrev_b32 v{vT0}, 2, v0')
        a(f'v_add_f32 v{vCa}, v{vCa}, v{vCb}')
        a(f'buffer_store_dword v{vCa}, v{vT0}, s[{R_A}:{R_A+3}], s{sT} offen {st}')
        a('s_branch L_p1_rend')
        a('L_p1_rd:')
        a(f'v_lshrrev_b32 v{vT0}, 1, v{vQ}')
        a(f'v_lshlrev_b32 v{vT0}, 4, v{vT0}')
        a(f'v_and_b32 v{vT1}, 1, v{vQ}')
        a(f'v_lshl_add_u32 v{vT0}, v{vT1}, 2, v{vT0}')
        a(f'v_lshrrev_b32 v{vT1}, 2, v{vM}')
        a(f'v_add_u32 v{vT0}, v{vT0}, v{vT1}')
        a(f'v_mul_u32_u24 v{vT0}, 160, v{vT0}')
        a(f'v_and_b32 v{vT1}, 3, v0')
        a(f'v_mul_u32_u24 v{vT1}, 40, v{vT1}')
        a(f'v_add3_u32 v{vT0}, v{vT0}, v{vT1}, s{sRb}')
        a(f's_mul_i32 s{sT}, s{sRs1}, 240')
        a(f's_mul_i32 s{sT2}, s{sRs0}, 10')
        a(f's_add_u32 s{sT}, s{sT}, s{sT2}')
        a(f's_lshl_b32 s{sT}, s{sT}, 10')
        a(f's_add_u32 s{sT}, s{sT}, {WS_WD}')
        for kb in range(2):
            a.lg_reset()
            for j in range(5):
                for h in range(2):
                    a(f'ds_read_b64_tr_b16 {vr(RF + 4 * j + 2 * h, 2)}, v{vT0} offset:{kb * 5120 + h * 1280 + 8 * j}', tag=j)
            for j in range(5):
                n = kb * 5 + j
                a.lg_wait(j)
                if n % 4 == 0 and n: a(f's_add_u32 s{sT}, s{sT}, 4096')
                a(f'buffer_store_dwordx4 {vr(RF + 4 * j, 4)}, v{vL16}, s[{R_A}:{R_A+3}], s{sT} offen offset:{(n % 4) * 1024} {st}')
        a(f'buffer_store_dword v{vT0}, v{vL16}, s[{R_B}:{R_B+3}], 0 offen')
        a('L_p1_rend:')

    def pub0():
        a(f's_mov_b32 s{sT}, 0')
        publish(a, WS_F0, sT, 2, 0, 'p0')

    tag_load = f'global_load_dwordx2 {vr(vNon, 2)}, v{vNon + 2}, s[{S_DBG}:{S_DBG+1}] sc1'

    def share_tag():
        a(f's_mov_b32 s{sT}, 0')
        a('L_p1_tag:')
        a(f'v_readfirstlane_b32 s{S_NONCE}, v{vNon}')
        a(f'v_readfirstlane_b32 s{S_NONCE + 1}, v{vNon + 1}')
        a(f's_add_u32 s{sT}, s{sT}, 1')
        a(f's_cmp_lg_u32 s{S_NONCE}, 0')
        a('s_cbranch_scc1 L_p1_tagged')
        a(tag_load)
        a('s_waitcnt vmcnt(0)')
        a(f's_cmp_lt_u32 s{sT}, 0x20000')
        a('s_cbranch_scc1 L_p1_tag')
        a('L_p1_tagged:')

    wo = [x for u in range(5) for x in wo_dma(u)]
    a('s_waitcnt vmcnt(16) lgkmcnt(0)')
    stamp(a, cfg, 2)
    pre, rd = reads(0)
    for x in pre: a(x)
    a('s_barrier')
    for x in rd: a(x)
    rp = rp_dma()
    if cfg.get('x_noR'): rp = ['s_nop 0'] * 10
    if cfg.get('x_Rplain'): rp = [x.replace(f'v{vR2 + i}', f'v{vL16}') for i in range(5) for x in rp[2 * i:2 * i + 2]]
    iteration(second_half() + rp[:5], [tag_load] + rp[5:] + first_half(), 11 if cfg.get('x_noR') else 16)
    stamp(a, cfg, 24)
    a('L_p1_loop:')
    iteration(second_half(), first_half(), 10)
    a(f's_add_u32 s{sI}, s{sI}, 1')
    a(f's_cmp_lt_u32 s{sI}, 6')
    a('s_cbranch_scc1 L_p1_loop')
    a.check_backedge('L_p1_loop')
    stamp(a, cfg, 25)
    n0, n1, n2, n3, n4 = cfg.get('p1_wo', [4, 4, 4, 4, 4])
    assert n0 + n1 <= 10 and n0 + n1 + n2 + n3 <= 20
    c = [0, n0, n0 + n1, n0 + n1 + n2, n0 + n1 + n2 + n3, n0 + n1 + n2 + n3 + n4]
    iteration(second_half(), wo[c[0]:c[1]], 10, mid=lambda: (share_tag(), repack()))
    stamp(a, cfg, 26)
    iteration(wo[c[1]:c[2]], wo[c[2]:c[3]], c[2], mid=pub0)
    iteration(wo[c[3]:c[4]], wo[c[4]:c[5]], 0, last=True)
    wo = wo[c[5]:]
    stamp(a, cfg, 3)

    E = Alloc(FX[0], FW[1] + 16)
    vCS = E(16, 2)
    vRS, vNM, vRstd, vRstdR, vTm, vSS = E(5), E(6, 2), E(6, 2), E(6, 2), E(5), E(5)
    VP = [E(2, 2) for _ in range(5)]
    QF = [None] + [E(4, 2) for _ in range(4)]
    sQ3 = sMul
    a.lg_reset()
    a(f'v_lshlrev_b32 v{vT0}, 2, v{vM}')
    a(f'v_add_u32 v{vT1}, {48 * 4}, v{vT0}')
    a(f'v_and_b32 v{vT2}, 3, v0')
    for sub in range(5):
        a(f'ds_bpermute_b32 v{vRS + sub}, v{vT1}, v{acc(sub, 3)}', tag='rs')
    for r_ in range(1, 4):
        a(f'v_cmp_eq_u32 vcc, {r_}, v{vT2}')
        a(f'v_cndmask_b32 v{SQ}, v{SQ}, v{SQ + r_}, vcc')
        a(f'v_cndmask_b32 v{SQ + 4}, v{SQ + 4}, v{SQ + 4 + r_}, vcc')
    a(f's_lshl_b32 s{sT}, s{S_WAVE}, 6')
    a(f'v_add_u32 v{vT0}, {L_SQ}, v{vT0}')
    a(f'v_add_u32 v{vT2}, s{sT}, v{vT0}')
    a('s_mov_b32 exec_lo, 0x00f0000f')
    a('s_mov_b32 exec_hi, 0xf0000f00')
    a(f'ds_write_b32 v{vT0}, v{SQ}', tag='sq')
    a(f'ds_write_b32 v{vT2}, v{SQ + 4} offset:64', tag='sq')
    a('s_mov_b64 exec, -1')
    for T in range(4):
        for r_ in range(4):
            a(f'v_mov_b32_dpp v{vCS + 4 * T + r_}, v{acc(0, T) + r_} row_newbcast:0 row_mask:0xf bank_mask:0xf')
    a(f's_mov_b32 s{sT}, {f32(-1.0 / 640)}')
    a(f's_mov_b32 s{sT2}, {f32(1.0 / 640)}')
    a(f's_mov_b32 s{sQ3}, 0')
    a(f's_mov_b32 s{sQ3+1}, 0xffff0000')
    a.lg_wait('sq')
    a('s_barrier')
    stamp(a, cfg, 40)
    for sub in range(5):
        a(f'ds_read_b32 v{vSS + sub}, v{vT0} offset:{64 * sub}', tag='ss')
    for sub in range(5): a(f'v_mul_f32 v{vNM + sub}, s{sT}, v{vRS + sub}')
    for sub in range(5): a(f'v_mul_f32 v{vTm + sub}, v{vNM + sub}, v{vNM + sub}')

    def bc(reg):
        return vr(reg & ~1, 2), reg & 1

    r = Rec()
    for sub, T in [(sub, T) for T in (2, 3, 1, 0) for sub in range(5) if (sub, T) != (0, 0)]:
        nm, nh = bc(vNM + sub)
        for p in range(2):
            d = vr(acc(sub, T) + 2 * p, 2)
            r(f'v_pk_fma_f32 {d}, {vr(vCS + 4 * T + 2 * p, 2)}, {nm}, {d} op_sel:[0,{nh},0] op_sel_hi:[1,{nh},1]')
    r.each()
    weave(a, r.items, wo[:5]); wo = wo[5:]
    a.lg_wait('ss')
    for sub in range(5): a(f'v_fma_f32 v{vTm + sub}, v{vSS + sub}, s{sT2}, -v{vTm + sub}')
    for sub in range(5): a(f'v_max_f32 v{vTm + sub}, 0, v{vTm + sub}')
    for sub in range(5): a(f'v_add_f32 v{vTm + sub}, {f32(1e-5)}, v{vTm + sub}')
    for sub in range(5): a(f'v_rsq_f32 v{vRstd + sub}, v{vTm + sub}')
    for sub in range(5): a(f'v_cndmask_b32 v{vRstdR + sub}, v{vRstd + sub}, 0, s[{sQ3}:{sQ3+1}]')

    def finish(sub, T):
        rs_, rh = bc((vRstdR if T == 3 else vRstd) + sub)
        for p in range(2):
            d = vr(acc(sub, T) + 2 * p, 2)
            a(f'v_pk_mul_f32 {d}, {d}, {rs_} op_sel:[0,{rh}] op_sel_hi:[1,{rh}]')
        dst = {0: QF[sub], 1: KF[sub], 2: VP[sub], 3: KF[sub] + 2}[T]
        for p in range(2):
            a(f'v_cvt_pk_bf16_f32 v{dst + p}, v{acc(sub, T) + 2 * p}, v{acc(sub, T) + 2 * p + 1}')
    stamp(a, cfg, 41)
    for sub in range(5):
        finish(sub, 2); finish(sub, 3)
        a(f'ds_write_b64 v{vVw}, {vr(VP[sub], 2)} offset:{sub * 640}', tag='vw')
    a('s_mov_b32 exec_lo, 0')
    a('s_mov_b32 exec_hi, 0xffff')
    for sub in range(5):
        a(f'ds_write_b64 v{vVw2}, {vr(KF[sub] + 2, 2)} offset:{sub * 640 + 32}', tag='vw')
    a('s_mov_b64 exec, -1')
    for sub in range(5):
        finish(sub, 1)
        if sub:
            finish(sub, 0)
            for p in range(2): a(f'v_mov_b32 v{QF[sub] + 2 + p}, 0')
        if wo: a(wo.pop(0))
    for x in wo: a(x)
    for sub in range(1, 5):
        for p in range(2): a(f'v_permlane16_swap_b32 v{KF[sub] + 2 + p}, v{QF[sub] + 2 + p}')
    A2 = Alloc(ACC, ACC + 80)
    VTM, VTR = A2(10, 2), A2(10, 2)
    SS_ = [None] + [A2(8, 4) for _ in range(4)]
    vMx, vSm, vTx, vRe, vRo = A2(4), A2(4), A2(4), A2(4), A2(4)
    a.lg_wait('vw')
    for sub in range(5):
        a(f'ds_read_b64_tr_b16 {vr(VTM + 2 * sub, 2)}, v{vVr} offset:{sub * 640}', tag='vt')
        a(f'ds_read_b64_tr_b16 {vr(VTR + 2 * sub, 2)}, v{vVr2} offset:{sub * 640 + 32}', tag='vt')
    for b in range(1, 5):
        a(f'v_mfma_f32_16x16x32_bf16 {vr(SS_[b], 4)}, {vr(KF[b - 1], 4)}, {vr(QF[b], 4)}, 0')
        a(f'v_mfma_f32_16x16x32_bf16 {vr(SS_[b] + 4, 4)}, {vr(KF[b], 4)}, {vr(QF[b], 4)}, 0')
    stamp(a, cfg, 42)
    sOdd = sMul
    a(f's_mov_b32 s{sOdd}, 0xaaaaaaaa')
    a(f's_mov_b32 s{sOdd+1}, 0xaaaaaaaa')
    a(f's_mov_b32 s{sT2}, {f32(csc)}')
    B4 = range(1, 5)
    for b in B4:
        for c in range(4):
            a(f'v_cndmask_b32 v{SS_[b] + c}, v{SS_[b] + 2 * c}, v{SS_[b] + 2 * c + 1}, s[{sOdd}:{sOdd+1}]')
    for b in B4:
        for c in range(4):
            if b == 1 and c < 2:
                a(f'v_fma_f32 v{SS_[b] + c}, v{SS_[b] + c}, s{sSc0}, v{vB0 + c}')
            else:
                a(f'v_fma_f32 v{SS_[b] + c}, v{SS_[b] + c}, s{sT2}, v{vB + c}')
    for b in B4: a(f'v_max3_f32 v{vMx + b - 1}, v{SS_[b]}, v{SS_[b] + 1}, v{SS_[b] + 2}')
    for b in B4: a(f'v_max_f32 v{vMx + b - 1}, v{vMx + b - 1}, v{SS_[b] + 3}')
    for sw in ('v_permlane16_swap_b32', 'v_permlane32_swap_b32'):
        for b in range(4): a(f'v_mov_b32 v{vTx + b}, v{vMx + b}')
        for b in range(4): a(f'{sw} v{vMx + b}, v{vTx + b}')
        for b in range(4): a(f'v_max_f32 v{vMx + b}, v{vMx + b}, v{vTx + b}')
    for b in B4:
        for c in range(4): a(f'v_sub_f32 v{SS_[b] + c}, v{SS_[b] + c}, v{vMx + b - 1}')
    for b in B4:
        for c in range(4): a(f'v_exp_f32 v{SS_[b] + c}, v{SS_[b] + c}')
    for b in B4: a(f'v_add_f32 v{vSm + b - 1}, v{SS_[b]}, v{SS_[b] + 1}')
    for c in range(2, 4):
        for b in B4: a(f'v_add_f32 v{vSm + b - 1}, v{vSm + b - 1}, v{SS_[b] + c}')
    for sw in ('v_permlane16_swap_b32', 'v_permlane32_swap_b32'):
        for b in range(4): a(f'v_mov_b32 v{vTx + b}, v{vSm + b}')
        for b in range(4): a(f'{sw} v{vSm + b}, v{vTx + b}')
        for b in range(4): a(f'v_add_f32 v{vSm + b}, v{vSm + b}, v{vTx + b}')
    for b in range(4): a(f'v_rcp_f32 v{vSm + b}, v{vSm + b}')
    for b in range(4): a(f'v_cndmask_b32 v{vRe + b}, v{vSm + b}, 0, s[{sOdd}:{sOdd+1}]')
    for b in range(4): a(f'v_cndmask_b32 v{vRo + b}, 0, v{vSm + b}, s[{sOdd}:{sOdd+1}]')
    for b in B4:
        for c in range(4): a(f'v_mul_f32 v{SS_[b] + 4 + c}, v{SS_[b] + c}, v{vRo + b - 1}')
        for c in range(4): a(f'v_mul_f32 v{SS_[b] + c}, v{SS_[b] + c}, v{vRe + b - 1}')
    for b in B4:
        for c in range(4): a(f'v_cvt_pk_bf16_f32 v{QF[b] + c}, v{SS_[b] + c}, v{SS_[b] + 4 + c}')
    stamp(a, cfg, 43)
    a.lg_wait('vt')
    for b in B4:
        a(f'v_mfma_f32_16x16x32_bf16 {vr(SS_[b], 4)}, {vr(VTM + 2 * (b - 1), 4)}, {vr(QF[b], 4)}, 0')
    for b in B4:
        a(f'v_mfma_f32_16x16x32_bf16 {vr(SS_[b] + 4, 4)}, {vr(VTR + 2 * (b - 1), 4)}, {vr(QF[b], 4)}, 0')
    OM = [KF[0], KF[1]]
    ORr = [None] + [VP[b] for b in B4]
    a(f's_add_u32 s{sT}, s{sOm}, {2 * 80 * 256}')
    for pr in range(2):
        for k in range(2):
            b = 1 + 2 * pr + k
            for p in range(2):
                a(f'v_cvt_pk_bf16_f32 v{OM[pr] + 2 * k + p}, v{SS_[b] + 2 * p}, v{SS_[b] + 2 * p + 1}')
    for b in B4:
        for p in range(2):
            a(f'v_cvt_pk_bf16_f32 v{ORr[b] + p}, v{SS_[b] + 4 + 2 * p}, v{SS_[b] + 4 + 2 * p + 1}')
    for pr in range(2):
        for p in range(2): a(f'v_permlane16_swap_b32 v{OM[pr] + p}, v{OM[pr] + 2 + p}')
    a(f'buffer_store_dwordx4 {vr(OM[0], 4)}, v{vOm}, s[{R_WS}:{R_WS+3}], s{sOm} offen {st}')
    a(f'buffer_store_dwordx4 {vr(OM[1], 4)}, v{vOm}, s[{R_WS}:{R_WS+3}], s{sT} offen {st}')
    for b in range(2, 5):
        a(f'v_cmp_eq_u32 vcc, {b - 1}, v{vQ}')
        for p in range(2): a(f'v_cndmask_b32 v{ORr[1] + p}, v{ORr[1] + p}, v{ORr[b] + p}, vcc')
    a(f'buffer_store_dwordx2 {vr(ORr[1], 2)}, v{vOr}, s[{R_WS}:{R_WS+3}], s{sOr} offen {st}')
    stamp(a, cfg, 4)


def exchange_addr(a, vEx, ex_base, sT):
    for i in range(4):
        a(f's_add_u32 s{sT}, s{S_WAVE}, {i}')
        a(f's_and_b32 s{sT}, s{sT}, 3')
        a(f's_mul_i32 s{sT}, s{sT}, 15360')
        a(f's_add_u32 s{sT}, s{sT}, {ex_base + max(i - 1, 0) * 5120}')
        a(f'v_add_u32 v{vEx + i}, s{sT}, v{vL16}')


def ksplit_gemm(a, nkb, tail, ACC, breg, areg, vEx, side, at_block=lambda kb: None):
    seq = [(kb, j, i) for kb in range(nkb - tail) for j in range(5) for i in range(4)]
    seq += [(kb, j, i) for i in (1, 2, 3, 0) for kb in range(nkb - tail, nkb) for j in range(5)]
    a.lg_reset()
    seen = set()
    out = []
    for n, (kb, j, i) in enumerate(seq):
        if kb not in seen:
            seen.add(kb); a.vm_wait(('A', kb)); at_block(kb)
        c = vr(ACC + (i * 5 + j) * 4, 4)
        a(f'v_mfma_f32_16x16x32_bf16 {c}, {breg(kb * 5 + j)}, {areg(kb, i)}, {c if kb or i == 0 else 0}')
        if kb == nkb - 1 and i:
            out.append((n + 8, f'ds_write_b128 v{vEx + i}, {c} offset:{j * 1024}'))
        if out and out[0][0] <= n and n % 2 == 0: a(out.pop(0)[1])
        else: side(n)
    for _, x in out: a(x)


def reduce_finish(a, ACC, TMP, vEx, fill=(), st=lambda i: None):
    a.lg_wait_all()
    st(0)
    a('s_barrier')
    st(1)
    for n in range(15):
        a(f'ds_read_b128 {vr(TMP + 4 * n, 4)}, v{vEx} offset:{n * 1024}', tag=n)
    for x in fill: a(x)
    for n in range(15):
        a.lg_wait(n)
        for k in range(4):
            d = ACC + (n % 5) * 4 + k
            a(f'v_add_f32 v{d}, v{d}, v{TMP + 4 * n + k}')
    st(2)


def unpack(a, RES, U):
    for i in range(10):
        a(f'v_lshlrev_b32 v{U + 2 * i}, 16, v{RES + i}')
        a(f'v_and_b32 v{U + 2 * i + 1}, 0xffff0000, v{RES + i}')


def row_addr(a, vD, sD, sT):
    a(f's_lshl_b32 s{sD}, s{S_MT2}, 2')
    a(f's_add_u32 s{sD}, s{sD}, s{S_WAVE}')
    a(f's_mul_i32 s{sD}, s{sD}, {16 * 1280}')
    a(f's_mul_i32 s{sT}, s{S_NT2}, 160')
    a(f's_add_u32 s{sD}, s{sD}, s{sT}')
    a(f'v_mul_u32_u24 v{vD}, 1280, v{vM}')
    a(f's_movk_i32 s{sT}, 40')
    a(f'v_mad_u32_u24 v{vD}, v{vQ}, s{sT}, v{vD}')


def a_bases(a, sA, nch, base, sT, sT2):
    for i in range(4):
        a(f's_add_u32 s{sT}, s{S_WAVE}, {i}')
        a(f's_and_b32 s{sT}, s{sT}, 3')
        a(f's_lshl_b32 s{sT2}, s{S_MT2}, 2')
        a(f's_add_u32 s{sT}, s{sT}, s{sT2}')
        a(f's_mul_i32 s{sT}, s{sT}, {nch}')
        a(f's_mul_i32 s{sT2}, s{S_WAVE}, {nch // 4}')
        a(f's_add_u32 s{sT}, s{sT}, s{sT2}')
        a(f's_lshl_b32 s{sT}, s{sT}, 8')
        a(f's_add_u32 s{sA + i}, s{sT}, {base}')


S_B3SRC, S_B3M0, S_B4 = 10, 11, 3


def b3_dma(t, tmp):
    slot = (t % 6) * STG3
    o = []
    for i in range(6):
        pre = ''
        if i % 4 == 0:
            pre = f's_add_u32 m0, s{S_B3M0}, {slot + i * 1024}\ns_add_u32 s{tmp}, s{S_B3SRC}, {t * STG3 + i * 1024}\n'
        o.append(pre + f'buffer_load_dwordx4 v{vL16}, s[{R_WS}:{R_WS+3}], s{tmp} offen offset:{(i % 4) * 1024} sc1 lds')
    return o


def b4_reg(n):
    if n < 19: return ar(180 + 4 * n, 4)
    if n < 30: return vr(180 + 4 * (n - 19), 4)
    if n < 35: return ar(160 + 4 * (n - 30), 4)
    if n < 38: return vr(B4V + 4 * (n - 35), 4)
    if n < B4_EARLY: return vr(CSL + 4 * (n - 38), 4)
    return vr(LOC + 4 + 80 + 4 * (n - B4_EARLY), 4)


B4_STATE = {'next': 0}


def b4_load(n):
    pre = f's_add_u32 s{S_B4}, s{S_B4}, 4096\n' if n and n % 4 == 0 else ''
    return pre + f'buffer_load_dwordx4 {b4_reg(n)}, v{vL16}, s[{R_WS}:{R_WS+3}], s{S_B4} offen offset:{(n % 4) * 1024} sc1'


def phase2(a, cfg):
    st = ld = 'sc1'
    V = Alloc(LOC)
    vL16b, vBm, vBr, vXr, vMain, vRem = [V() for _ in range(6)]
    vSt, vTs = V(2, 2), V(2, 2)
    vEx = V(4)
    ACC = V(80, 4)
    TMP = V(60, 4)
    RES = TMP
    assert V.n <= CSL
    AF = 100
    sT, sT2, sStg, sMain, sRem, sXr, sFl, sD, sCs, sF0 = range(S_T0 + 4, S_T0 + 14)
    sA = S_T0 + 14
    row_addr(a, vXr, sXr, sT)
    a(f'buffer_load_dwordx4 {vr(RES, 4)}, v{vXr}, s[{R_X}:{R_X+3}], s{sXr} offen')
    a(f'buffer_load_dwordx4 {vr(RES + 4, 4)}, v{vXr}, s[{R_X}:{R_X+3}], s{sXr} offen offset:16')
    a(f'buffer_load_dwordx2 {vr(RES + 8, 2)}, v{vXr}, s[{R_X}:{R_X+3}], s{sXr} offen offset:32')
    a(f's_mul_i32 s{sStg}, s{S_WAVE}, {P2_STG}')
    a(f'v_lshrrev_b32 v{vT0}, 1, v{vQ}')
    a(f'v_mul_u32_u24 v{vT0}, 20, v{vT0}')
    a(f'v_and_b32 v{vT1}, 1, v{vQ}')
    a(f'v_lshl_add_u32 v{vT0}, v{vT1}, 3, v{vT0}')
    a(f'v_lshrrev_b32 v{vT1}, 2, v{vM}')
    a(f'v_add_u32 v{vT0}, v{vT0}, v{vT1}')
    a(f'v_mul_u32_u24 v{vT0}, 160, v{vT0}')
    a(f'v_and_b32 v{vT2}, 3, v0')
    a(f'v_mul_u32_u24 v{vT2}, 40, v{vT2}')
    a(f'v_add3_u32 v{vBm}, v{vT0}, v{vT2}, s{sStg}')
    a(f'v_mul_u32_u24 v{vT0}, 40, v{vQ}')
    a(f'v_add_u32 v{vT0}, v{vT0}, v{vT1}')
    a(f'v_mul_u32_u24 v{vT0}, 160, v{vT0}')
    a(f'v_add3_u32 v{vBr}, v{vT0}, v{vT2}, s{sStg}')
    a(f'v_add_u32 v{vL16b}, 4096, v{vL16}')
    a_bases(a, sA, 80, WS_AO, sT, sT2)
    a(f's_lshl_b32 s{sMain}, s{S_MT2}, 2')
    a(f's_add_u32 s{sMain}, s{sMain}, s{S_WAVE}')
    a(f's_mul_i32 s{sMain}, s{sMain}, 80')
    a(f's_lshr_b32 s{sT}, s{S_NT2}, 1')
    a(f's_mul_i32 s{sT}, s{sT}, 20')
    a(f's_add_u32 s{sMain}, s{sMain}, s{sT}')
    a(f's_and_b32 s{sT}, s{S_NT2}, 1')
    a(f's_lshl_b32 s{sRem}, s{sT}, 1')
    a(f's_add_u32 s{sRem}, s{sRem}, s{sMain}')
    a(f's_lshl_b32 s{sRem}, s{sRem}, 8')
    a(f's_add_u32 s{sRem}, s{sRem}, {WS_AH + 16 * 256}')
    a(f's_lshl_b32 s{sT}, s{sT}, 3')
    a(f's_add_u32 s{sMain}, s{sMain}, s{sT}')
    a(f's_lshl_b32 s{sMain}, s{sMain}, 8')
    a(f's_add_u32 s{sMain}, s{sMain}, {WS_AH}')
    a(f'v_lshlrev_b32 v{vMain}, 4, v{vM}')
    a(f'v_lshrrev_b32 v{vT0}, 1, v{vQ}')
    a(f'v_lshl_add_u32 v{vRem}, v{vT0}, 8, v{vMain}')
    a(f'v_and_b32 v{vT0}, 1, v{vQ}')
    a(f'v_lshl_add_u32 v{vRem}, v{vT0}, 3, v{vRem}')
    a(f'v_lshl_add_u32 v{vMain}, v{vQ}, 9, v{vMain}')
    a(f's_lshl_b32 s{sXr}, s{S_MT2}, 1')
    a(f's_lshr_b32 s{sT2}, s{S_WAVE}, 1')
    a(f's_add_u32 s{sXr}, s{sXr}, s{sT2}')
    a(f's_lshl_b32 s{sXr}, s{sXr}, 3')
    a(f's_add_u32 s{sXr}, s{sXr}, s{S_NT2}')
    a(f's_lshl_b32 s{sXr}, s{sXr}, 8')
    a(f's_and_b32 s{sT2}, s{S_WAVE}, 1')
    a(f's_lshl_b32 s{sT2}, s{sT2}, 7')
    a(f's_add_u32 s{sXr}, s{sXr}, s{sT2}')
    a(f's_add_u32 s{sXr}, s{sXr}, {WS_HS}')
    a(f'v_lshlrev_b32 v{vXr}, 3, v{vM}')
    a(f's_mul_i32 s{S_B3SRC}, s{S_NF}, {240 * 1024}')
    a(f's_mul_i32 s{S_B3M0}, s{S_WAVE}, 6144')
    a(f's_add_u32 s{S_B3SRC}, s{S_B3SRC}, s{S_B3M0}')
    a(f's_add_u32 s{S_B3SRC}, s{S_B3SRC}, {WS_WGU}')
    a(f's_mul_i32 s{S_B4}, s{S_NT2}, 240')
    a(f's_mul_i32 s{sT}, s{S_WAVE}, 60')
    a(f's_add_u32 s{S_B4}, s{S_B4}, s{sT}')
    a(f's_lshl_b32 s{S_B4}, s{S_B4}, 10')
    a(f's_add_u32 s{S_B4}, s{S_B4}, {WS_WD}')
    a(f's_mov_b32 s{sF0}, {WS_F0}')
    a(f's_lshl_b32 s{sFl}, s{S_MT2}, 6')
    a(f's_add_u32 s{sFl}, s{sFl}, {WS_F1}')
    a(f's_mul_i32 s{sCs}, s{S_NF}, 768')
    a(f's_add_u32 s{sCs}, s{sCs}, {WS_CS}')
    exchange_addr(a, vEx, L_EX2, sT)
    a('s_waitcnt vmcnt(3)')
    a.vm_reset(); a.lg_reset()
    a('s_barrier')
    publish(a, WS_F1, S_MT, S_NT, 8, 'p1')
    stamp(a, cfg, 5)
    for kb in range(5):
        for j in range(5):
            for h in range(2):
                d = ar((kb * 5 + j) * 4 + 2 * h, 2)
                if kb < 4:
                    a(f'ds_read_b64_tr_b16 {d}, v{vBm} offset:{kb * 6400 + h * 640 + 8 * j}')
                else:
                    a(f'ds_read_b64_tr_b16 {d}, v{vBr} offset:{16 * 160 + h * 3200 + 8 * j}')
    a(f's_cmp_lg_u32 s{S_WAVE}, 3')
    a('s_cbranch_scc1 L_p2_no0')
    poll(a, sF0, 256, 'p0')
    a('L_p2_no0:')
    a('s_waitcnt vmcnt(0)')
    unpack(a, RES, ACC)
    a('s_waitcnt lgkmcnt(0)')
    a.lg_reset()
    a('s_barrier')
    w1 = cfg.get('p2_w1', 18)
    pre = [x for t in range(4) for x in b3_dma(t, sD)]
    pre += [f'buffer_load_dwordx4 {vr(CSL + 4 * g, 4)}, v{vL16}, s[{R_WS}:{R_WS+3}], s{sCs} offen {ld}\ns_add_u32 s{sCs}, s{sCs}, 12288' for g in range(8)]
    must = len(pre)
    pre += [b4_load(n) for n in range(30)]
    total = len(pre)
    for x in pre[:w1]: a(x)
    pre = pre[w1:]
    stamp(a, cfg, 6)
    poll(a, sFl, 8, 'p2')
    stamp(a, cfg, 7)
    for kb in range(5):
        for i in range(4):
            v, off = (vL16, kb * 1024) if kb < 4 else (vL16b, 0)
            a(f'buffer_load_dwordx4 {ar(AF + (i * 5 + kb) * 4, 4)}, v{v}, s[{R_WS}:{R_WS+3}], s{sA + i} offen offset:{off} {ld}', tag=('A', kb))
    gap, k1, k2, start = cfg.get('p2_k', [5, 6, 10, 20])

    def side(n):
        if n > start and n % gap == 0 and pre: a(pre.pop(0))
    ksplit_gemm(a, 5, 2, ACC, lambda n: ar(4 * n, 4), lambda kb, i: ar(AF + (i * 5 + kb) * 4, 4), vEx, side,
                lambda kb: stamp(a, cfg, 29) if kb == 0 else None)
    stamp(a, cfg, 8)
    reduce_finish(a, ACC, TMP, vEx, pre[:k1], st=lambda i: stamp(a, cfg, 30 + i))
    pre = pre[k1:]
    k2 = min(k2, len(pre))
    for i in range(10):
        a(f'v_cvt_pk_bf16_f32 v{H + i}, v{ACC + 2 * i}, v{ACC + 2 * i + 1}')
    a(f'buffer_store_dwordx4 {vr(H, 4)}, v{vMain}, s[{R_WS}:{R_WS+3}], s{sMain} offen {st}')
    a(f'buffer_store_dwordx4 {vr(H + 4, 4)}, v{vMain}, s[{R_WS}:{R_WS+3}], s{sMain} offen offset:256 {st}')
    a(f'buffer_store_dwordx2 {vr(H + 8, 2)}, v{vRem}, s[{R_WS}:{R_WS+3}], s{sRem} offen {st}')
    a(f'v_mov_b32 v{vSt}, 0')
    a(f'v_mov_b32 v{vSt + 1}, 0')
    a(f'v_mov_b32 v{vT0}, 0x3f803f80')
    for i in range(10):
        a(f'v_dot2c_f32_bf16 v{vSt}, v{H + i}, v{vT0}')
        a(f'v_dot2c_f32_bf16 v{vSt + 1}, v{H + i}, v{H + i}')
    for sw in ('v_permlane16_swap_b32', 'v_permlane32_swap_b32'):
        for k in range(2): a(f'v_mov_b32 v{vTs + k}, v{vSt + k}')
        for k in range(2): a(f'{sw} v{vSt + k}, v{vTs + k}')
        for k in range(2): a(f'v_add_f32 v{vSt + k}, v{vSt + k}, v{vTs + k}')
    a('s_mov_b64 exec, 0xffff')
    a(f'buffer_store_dwordx2 {vr(vSt, 2)}, v{vXr}, s[{R_WS}:{R_WS+3}], s{sXr} offen {st}')
    a('s_mov_b64 exec, -1')
    stamp(a, cfg, 33)
    for x in pre[:k2]: a(x)

    def finish():
        a(f's_waitcnt vmcnt({k2})')
        a.vm_reset(); a.lg_reset()
        a('s_barrier')
        publish(a, WS_F2, S_MT2, S_NT2, 8, 'p2')
        stamp(a, cfg, 9)
        issued = total - len(pre) + k2
        assert issued >= must
        B4_STATE['next'] = issued - must
        for t in range(4, B3_GAP):
            for x in b3_dma(t, sD): a(x)
    return finish


def phase3(a, cfg, finish2):
    st = cfg.get('p3_st', 'sc1'); ld = cfg.get('p3_ld', 'sc1')
    V = Alloc(LOC, B4V)
    vAo, vSo, vHo, vCsr, vNM, vA1, vA3, vC = [V() for _ in range(8)]
    vLB = V(3)
    NACC = NP1 + 1
    ACC = V(16 * NACC, 4)
    NF = cfg.get('p3_nf', 6)
    WF = V(4 * NF, 4)
    EC = V(16, 4)
    EP, EO = V(8, 2), [V(4, 4), V(4, 4)]
    ST = EP
    sT, sT2, sA, sH, sSt, sFl, sD = range(S_T0 + 4, S_T0 + 11)
    a(f's_lshl_b32 s{sFl}, s{S_MT3}, 7')
    a(f's_add_u32 s{sFl}, s{sFl}, {WS_F2}')
    a(f'v_lshlrev_b32 v{vT0}, 4, v{vM}')
    a(f'v_lshrrev_b32 v{vT1}, 5, v0')
    a(f'v_lshl_add_u32 v{vT0}, v{vT1}, 8, v{vT0}')
    a(f'v_lshlrev_b32 v{vCsr}, 4, v{vT1}')
    a(f'v_add_u32 v{vCsr}, {L_CS}, v{vCsr}')
    a(f'v_and_b32 v{vT2}, 31, v0')
    a(f'v_lshlrev_b32 v{vT2}, 3, v{vT2}')
    a(f'v_lshl_add_u32 v{vSo}, v{vT1}, 10, v{vT2}')
    a(f'v_and_b32 v{vT1}, 1, v{vQ}')
    a(f's_movk_i32 s{sT}, {80 * 256}')
    a(f'v_mad_u32_u24 v{vAo}, v{vT1}, s{sT}, v{vT0}')
    a(f's_mov_b32 s{sT}, {192 * 256}')
    a(f'v_mad_u32_u24 v{vHo}, v{vT1}, s{sT}, v{vT0}')
    a(f's_lshl_b32 s{sT}, s{S_MT3}, 2')
    a(f's_add_u32 s{sT}, s{sT}, s{S_WAVE}')
    a(f's_mul_i32 s{sA}, s{sT}, {2 * 80 * 256}')
    a(f's_add_u32 s{sA}, s{sA}, {WS_AH}')
    a(f's_mul_i32 s{sH}, s{sT}, {2 * 192 * 256}')
    a(f's_mul_i32 s{sT2}, s{S_NF}, {12 * 256}')
    a(f's_add_u32 s{sH}, s{sH}, s{sT2}')
    a(f's_add_u32 s{sH}, s{sH}, {WS_AHH}')
    a(f's_lshl_b32 s{sSt}, s{sT}, 11')
    a(f's_add_u32 s{sSt}, s{sSt}, {WS_HS}')
    for k in range(3):
        a(f'v_add_u32 v{vLB + k}, {k * 2 * STG3}, v{vL16}')
    c0 = -2.0 * math.sqrt(2.0 / math.pi) * math.log2(math.e)
    finish2()
    a.lg_reset()
    seq = order3()
    pend = []
    refill = []

    def w_read(p):
        t = p // 24
        if p % 24 == 0 and t >= 2:
            a.vm_wait(('S', t), must=t >= B3_GAP)
            a('s_barrier')
            if t + 4 < 10: refill.extend((x, ('S', t + 4)) for x in b3_dma(t + 4, sD))
        addr = (t % 6) * STG3 + (p % 24) * 1024
        k = addr // (2 * STG3)
        a(f'ds_read_b128 {vr(WF + 4 * (p % NF), 4)}, v{vLB + k} offset:{addr - k * 2 * STG3}', tag=('w', p))
    stamp(a, cfg, 10)
    poll(a, sFl, 16, 'p3')
    stamp(a, cfg, 11)

    def a_load(b):
        pre = f's_add_u32 s{sA}, s{sA}, 4096\n' if b and b % 8 == 0 else ''
        return (pre + f'buffer_load_dwordx4 {ar(4 * b, 4)}, v{vAo}, s[{R_WS}:{R_WS+3}], s{sA} offen offset:{(b % 8) * 512} {ld}', ('A', b))
    up = cfg.get('p3_up', 16)
    for b in range(up): a(*a_load(b))
    a('s_barrier')
    for p in range(NF - 1): w_read(p)
    for g in range(1, 8):
        for p in range(2):
            a(f'v_pk_add_f32 {vr(CSL + 2 * p, 2)}, {vr(CSL + 2 * p, 2)}, {vr(CSL + 4 * g + 2 * p, 2)}')
    a(f'v_add_u32 v{vT0}, {L_CS}, v{vL16}')
    a(f'ds_write_b128 v{vT0}, {vr(CSL, 4)}')
    rest = [a_load(b) for b in range(up, 40)]
    for t in range(B3_GAP, 6):
        k = max(0, 24 * t // NP1 - up - cfg.get('p3_lead', -8))
        done = 40 - up - len(rest)
        pend += rest[:max(0, k - done)]; rest = rest[max(0, k - done):]
        pend += [(x, ('S', t)) for x in b3_dma(t, sD)]
    pend += rest
    pend += [(f'buffer_load_dwordx2 {vr(ST + 2 * i, 2)}, v{vSo}, s[{R_WS}:{R_WS+3}], s{sSt} offen offset:{i * 256} {ld}', 'ST') for i in range(4)]
    bq = [(b4_load(n), 'B4') for n in range(B4_STATE['next'], B4_EARLY)]
    print(f'phase 3: {len(bq)} down-weight fragments to fetch', file=sys.stderr)

    def prep():
        o = [('vm', 'ST')]
        for i in range(1, 4):
            o.append(f'v_add_f32 v{ST}, v{ST}, v{ST + 2 * i}')
            o.append(f'v_add_f32 v{ST + 1}, v{ST + 1}, v{ST + 2 * i + 1}')
        for k in range(2): o.append(f'v_mov_b32 v{ST + 2 + k}, v{ST + k}')
        o.append(None); o.append(None)
        for k in range(2): o.append(f'v_permlane32_swap_b32 v{ST + k}, v{ST + 2 + k}')
        for k in range(2): o.append(f'v_add_f32 v{ST + k}, v{ST + k}, v{ST + 2 + k}')
        o.append(f'v_mul_f32 v{vNM}, {f32(-1.0 / 640)}, v{ST}')
        o.append(f'v_mul_f32 v{ST + 1}, {f32(1.0 / 640)}, v{ST + 1}')
        o.append(f'v_fma_f32 v{ST + 1}, -v{vNM}, v{vNM}, v{ST + 1}')
        o.append(f'v_max_f32 v{ST + 1}, 0, v{ST + 1}')
        o.append(f'v_add_f32 v{vC}, {f32(1e-5)}, v{ST + 1}')
        o.append(f'v_rsq_f32 v{ST}, v{vC}')
        o.append(None)
        o.append(f'v_mul_f32 v{vA1}, {f32(c0)}, v{ST}')
        o.append(f'v_mul_f32 v{ST + 1}, v{ST}, v{ST}')
        o.append(f'v_mul_f32 v{vA3}, {f32(0.044715)}, v{vA1}')
        o.append(f'v_mul_f32 v{vA3}, v{vA3}, v{ST + 1}')
        return o

    def cs_reads(s):
        return [(f'ds_read_b128 {vr(EC + 4 * q, 4)}, v{vCsr} offset:{(s * 32 + 8 * q) * 4}', ('cs', s)) for q in range(4)]

    def epilogue(s, nxt):
        A = ACC + 16 * (s % NACC)
        O = EO[s % 2]
        o = [('lg', ('cs', s))]
        for i in range(16): o.append(f'v_fmac_f32 v{A + i}, v{vNM}, v{EC + i}')
        if nxt is not None: o += cs_reads(nxt)
        gi = [A + (i >> 2) * 8 + (i & 3) for i in range(8)]
        ui = [g + 4 for g in gi]
        for i in range(8): o.append(f'v_mul_f32 v{EP + i}, v{gi[i]}, v{gi[i]}')
        for i in range(8): o.append(f'v_fma_f32 v{EP + i}, v{EP + i}, v{vA3}, v{vA1}')
        for i in range(8): o.append(f'v_mul_f32 v{EP + i}, v{EP + i}, v{gi[i]}')
        for i in range(8):
            o.append(f'v_exp_f32 v{EP + i}, v{EP + i}')
            o.append(f'v_mul_f32 v{ui[i]}, v{ui[i]}, v{gi[i]}')
        for i in range(8): o.append(f'v_fma_f32 v{EP + i}, v{EP + i}, v{vC}, v{vC}')
        for i in range(8): o.append(f'v_rcp_f32 v{EP + i}, v{EP + i}')
        for i in range(8): o.append(f'v_mul_f32 v{ui[i]}, v{ui[i]}, v{EP + i}')
        for p in range(4): o.append(f'v_cvt_pk_bf16_f32 v{O + p}, v{ui[2 * p]}, v{ui[2 * p + 1]}')
        o.append(f'buffer_store_dwordx4 {vr(O, 4)}, v{vHo}, s[{R_WS}:{R_WS+3}], s{sH} offen offset:{s * 512} {st}')
        o.append(('done', s))
        return o

    finished = set()

    def run(x):
        if x is None: return
        if isinstance(x, tuple):
            if x[0] == 'vm': a.vm_wait(x[1])
            elif x[0] == 'lg': a.lg_wait(x[1])
            elif x[0] == 'done': finished.add(x[1])
            else: a(x[0], tag=x[1])
        else:
            a(x)

    def cost(x):
        if x is None: return 4
        if isinstance(x, tuple) and x[0] == 'done': return 0
        t = x[0] if isinstance(x, tuple) else x
        return 8 if t.startswith(('v_exp', 'v_rcp', 'v_rsq')) else 4

    work = []
    budget = cfg.get('p3_budget', 20)
    P1END = 40 * NP1
    b4_from = cfg.get('p3_b4', 60)
    def waits(p):
        if p < 240:
            a.vm_wait(('A', seq[p][1]))
            a.lg_wait(('w', p))
    waits(0)
    stamp(a, cfg, 20)
    for p, (s, b) in enumerate(seq):
        if p == P1END: stamp(a, cfg, 12)
        if p in (30, 60, 90): stamp(a, cfg, {30: 21, 60: 22, 90: 23}[p])
        if b == 0 and s >= NACC:
            late = 0
            while s - NACC not in finished:
                run(work.pop(0)); late += 1
            if late: print(f'phase 3: {late} epilogue items of sub-tile {s - NACC} were late', file=sys.stderr)
        c = vr(ACC + 16 * (s % NACC), 16)
        a(f'v_mfma_f32_32x32x16_bf16 {c}, {vr(WF + 4 * (p % NF), 4)}, {ar(4 * b, 4)}, {c if b else 0}')
        waits(p + 1)
        if p + NF - 1 < 240: w_read(p + NF - 1)
        left = budget
        if p % cfg.get('p3_pace', 2) == 0 or p < cfg.get('p3_burst', 0):
            if pend: a(*pend.pop(0))
            elif refill: a(*refill.pop(0))
            elif bq and p >= b4_from: a(*bq.pop(0))
        if p == P1END - 30: work += prep() + cs_reads(0)
        if b == 39 and NP1 - 1 <= s < 5:
            if s == NP1 - 1:
                for s2 in range(NP1): work += epilogue(s2, s2 + 1)
            else:
                work += epilogue(s, s + 1)
        if cfg.get('x_noepi') and p >= P1END:
            finished.update(range(6)); work = []
        while work and left >= cost(work[0]):
            left -= cost(work[0]); run(work.pop(0))
    if cfg.get('x_nob4'):
        for x in bq: a(*x)
        bq = []
    assert not pend and not bq and not refill, (len(pend), len(bq))
    stamp(a, cfg, 14)
    print(f'phase 3: {len(work)} epilogue items left after the last MFMA', file=sys.stderr)
    for x in work: run(x)
    for x in epilogue(5, None): run(x)


def phase4(a, cfg):
    ld = 'sc1'
    vOut = vPoll + 7
    vEx = LOC
    ACC = LOC + 4
    assert ACC % 2 == 0 and LOC + 4 + 80 + 4 * (60 - B4_EARLY) <= B4V
    NR = 10
    sT, sT2, sOut, sFl = range(S_T0 + 4, S_T0 + 8)
    sA = S_T0 + 8
    a('s_nop 1')
    for n in range(B4_EARLY, 60): a(b4_load(n))
    a_bases(a, sA, 192, WS_AHH, sT, sT2)
    row_addr(a, vOut, sOut, sT)
    exchange_addr(a, vEx, 0, sT)
    a(f's_lshr_b32 s{sFl}, s{S_MT2}, 1')
    a(f's_lshl_b32 s{sFl}, s{sFl}, 7')
    a(f's_add_u32 s{sFl}, s{sFl}, {WS_F3}')
    a(f's_waitcnt vmcnt({60 - B4_EARLY})')
    a.vm_reset(); a.lg_reset()
    a('s_barrier')
    publish(a, WS_F3, S_MT3, S_NF, 16, 'p3')
    stamp(a, cfg, 15)
    unpack(a, H, ACC)
    stamp(a, cfg, 16)
    poll(a, sFl, 16, 'p4')
    stamp(a, cfg, 17)

    def a_load(kb, i):
        pre = f's_add_u32 s{sA + i}, s{sA + i}, 4096\n' if kb and kb % 4 == 0 else ''
        return (pre + f'buffer_load_dwordx4 {ar(((kb % NR) * 4 + i) * 4, 4)}, v{vL16}, s[{R_WS}:{R_WS+3}], s{sA + i} offen offset:{(kb % 4) * 1024} {ld}', ('A', kb))
    up = cfg.get('p4_up', 5)
    loads = [a_load(kb, i) for kb in range(12) for i in range(4)]
    for x in loads[:4 * up]: a(*x)
    loads = loads[4 * up:]
    step = cfg.get('p4_step', 5)

    def side(n):
        if loads and n % step == 1 and loads[0][1][1] - NR < n // 20: a(*loads.pop(0))
    ksplit_gemm(a, 12, cfg.get('p4_tail', 3), ACC, b4_reg, lambda kb, i: ar(((kb % NR) * 4 + i) * 4, 4), vEx, side,
                lambda kb: stamp(a, cfg, {0: 27, 6: 28}[kb]) if kb in (0, 6) else None)
    assert not loads
    stamp(a, cfg, 18)
    reduce_finish(a, ACC, B4V, vEx, st=lambda i: stamp(a, cfg, 34 + i))
    for i in range(10):
        a(f'v_cvt_pk_bf16_f32 v{H + i}, v{ACC + 2 * i}, v{ACC + 2 * i + 1}')
    a(f'buffer_store_dwordx4 {vr(H, 4)}, v{vOut}, s[{R_OUT}:{R_OUT+3}], s{sOut} offen {cfg.get("out_st", "")}')
    a(f'buffer_store_dwordx4 {vr(H + 4, 4)}, v{vOut}, s[{R_OUT}:{R_OUT+3}], s{sOut} offen offset:16 {cfg.get("out_st", "")}')
    a(f'buffer_store_dwordx2 {vr(H + 8, 2)}, v{vOut}, s[{R_OUT}:{R_OUT+3}], s{sOut} offen offset:32 {cfg.get("out_st", "")}')
    stamp(a, cfg, 37)


def build(cfg):
    POLL.update(cfg.get('poll', {}))
    a = Asm()
    name = NAME + '_kernel'
    kernel_head(a, name, 'L_exit', cfg.get('stamp'))
    a(f'v_and_b32 v{vM}, 15, v0')
    a(f'v_lshrrev_b32 v{vQ}, 4, v0')
    a(f'v_lshlrev_b32 v{vL16}, 4, v0')
    if cfg.get('code_pf', 1):
        a('s_getpc_b64 s[60:61]')
        a('L_pc:')
        a(f's_lshr_b32 s62, s2, 3')
        a(f's_lshl_b32 s62, s62, 2')
        a(f's_add_u32 s62, s62, s{S_WAVE}')
        a(f's_lshl_b32 s62, s62, 8')
        a(f'v_lshl_add_u32 v{vT0}, v0, 2, s62')
        a(f'v_min_u32 v{vT0}, L_exit-L_pc, v{vT0}')
        a(f'v_mov_b32 v{vT2}, s61')
        a(f'v_add_co_u32 v{vT0}, vcc, s60, v{vT0}')
        a(f'v_addc_co_u32 v{vT1}, vcc, 0, v{vT2}, vcc')
        a(f'global_load_dword v{vPoll + 3}, v[{vT0}:{vT1}], off')
    phase1(a, cfg)
    phase3(a, cfg, phase2(a, cfg))
    phase4(a, cfg)
    stamp_flush(a, cfg)
    a('L_exit:')
    a('s_endpgm')
    head = open('cdna_kernels/' + NAME + '.s.ref').read().split('; Override')[0]
    out = head + f'; stamp_ids {json.dumps(cfg.get("stamp_ids", STAMP_IDS))}\n' * bool(cfg.get('stamp')) + f'; @launch grid=(256,1,1) block=(256,1,1) lds={LDS_BYTES}\n'
    out += '.amdgcn_target "amdgcn-amd-amdhsa--gfx950"\n.text\n' + a.text()
    out += '.section .rodata,"a"\n' + descriptor(name, 512, 256, 102)
    return out


if __name__ == '__main__':
    cfg = json.loads(sys.argv[2]) if len(sys.argv) > 2 else {}
    open(sys.argv[1], 'w').write(build(cfg))
```

```python
import sys, json, math
from common import *

NAME = 'sequential_preLN__sliding_local_dilated__glu_gated_geglu__prompt'

SLOT = 40960
WIMG = 10240
L_STG = 3 * SLOT
L_ONES = L_STG + 3 * 10240
L_SQ = L_ONES + 64
L_NONCE = L_SQ + 320
L_VS = 102400
P2_STG = 25600
STG3 = 24576
L_EX2 = 4 * STG3
L_CS = L_EX2 + 61440
LDS_BYTES = 163840

WS_F1, WS_F2, WS_F0, WS_F3 = WS_FLAGS, WS_FLAGS + 0x1000, WS_FLAGS + 0x2000, WS_FLAGS + 0x3000

vM, vQ, vL16, vT0, vT1, vT2, vT3 = 1, 2, 3, 4, 5, 6, 7
vPoll = 8
H = 16
LOC = 26
S_NONCE = 4
S_MT2, S_NT2, S_MT3, S_NF = 6, 7, 8, 9
R_A, R_B = 12, 16
NP1 = 3
B4V = 168
B4_EARLY = 24 + (256 - B4V) // 4
B3_GAP = 6
CSL = 224


def bs23(k):
    return (k & ~12) | ((k & 4) << 1) | ((k & 8) >> 1)


def order3():
    o = [(s, b) for b in range(40) for s in range(NP1)]
    o += [(s, b) for s in range(NP1, 6) for b in range(40)]
    return o


def weave(a, main, fill, lead=0, span=None):
    fill = list(fill)
    n = len(main)
    span = span or (n - lead)
    done = 0
    for i, m in enumerate(main):
        a(m)
        if i >= lead:
            want = min(len(fill), ((i - lead + 1) * len(fill) + span - 1) // span)
            while done < want:
                a(fill[done]); done += 1
    while done < len(fill):
        a(fill[done]); done += 1


class Rec:
    def __init__(self): self.items = []; self.cur = []
    def __call__(self, t, tag=None): self.cur.append(t)
    def cut(self):
        if self.cur: self.items.append('\n'.join(self.cur)); self.cur = []
    def each(self):
        self.items += self.cur; self.cur = []


def xcd_map(a, dM, dN, nM, nN, mode):
    mg, ng = (int(x) for x in mode.split('x'))
    lm, ln = nM // mg, nN // ng
    t = S_T0
    a(f's_and_b32 s{t}, s2, 7')
    a(f's_lshr_b32 s{t+1}, s2, 3')
    a(f's_lshr_b32 s{dM}, s{t}, {ng.bit_length() - 1}')
    a(f's_mul_i32 s{dM}, s{dM}, {lm}')
    a(f's_lshr_b32 s{t+2}, s{t+1}, {ln.bit_length() - 1}')
    a(f's_add_u32 s{dM}, s{dM}, s{t+2}')
    a(f's_and_b32 s{dN}, s{t}, {ng - 1}')
    a(f's_mul_i32 s{dN}, s{dN}, {ln}')
    a(f's_and_b32 s{t+2}, s{t+1}, {ln - 1}')
    a(f's_add_u32 s{dN}, s{dN}, s{t+2}')


def signal(a, base, sRow, sCol, ncol, tag):
    sT = S_T0
    a('s_waitcnt vmcnt(0) lgkmcnt(0)')
    a.vm_reset(); a.lg_reset()
    a('s_barrier')


LOCALX = set()
LD = {'data': 'sc1', 'flag': 'sc1'}


def publish(a, base, sRow, sCol, ncol, tag):
    fl = '' if tag[:2] in LOCALX else 'sc1'
    sT = S_T0
    a(f's_cmp_lg_u32 s{S_WAVE}, 0')
    a(f's_cbranch_scc1 L_pub_{tag}')
    a(f's_mul_i32 s{sT}, s{sRow}, {ncol}')
    a(f's_add_u32 s{sT}, s{sT}, s{sCol}')
    a(f's_lshl_b32 s{sT}, s{sT}, 3')
    a(f's_add_u32 s{sT}, s{sT}, {base}')
    a(f'v_mov_b32 v{vPoll}, s{S_NONCE}')
    a(f'v_mov_b32 v{vPoll + 1}, s{S_NONCE + 1}')
    a(f'v_mov_b32 v{vPoll + 2}, 0')
    a('s_mov_b64 exec, 1')
    a.raw(f'    buffer_store_dwordx2 {vr(vPoll, 2)}, v{vPoll + 2}, s[{R_WS}:{R_WS+3}], s{sT} offen {fl}')
    a('s_mov_b64 exec, -1')
    a(f'L_pub_{tag}:')


POLL = {'deep': 1, 'sleep': 0, 'one': 2}


def poll(a, sBase, n, tag):
    sC, sX = S_T0, S_T0 + 2
    one = POLL.get('one') and n <= 64
    if one:
        a(f's_cmp_lg_u32 s{S_WAVE}, {POLL["one"] - 1}')
        a(f's_cbranch_scc1 L_polled_{tag}')
    a(f's_mov_b32 s{sC}, 0')
    if POLL.get('pre') and n <= 64: a(f"s_sleep {POLL['pre']}")
    if n <= 64:
        a(f'v_and_b32 v{vT0}, {n - 1}, v0')
        a(f'v_lshlrev_b32 v{vT0}, 3, v{vT0}')
        ld = lambda k: f'buffer_load_dwordx2 {vr(vPoll + 2 * k, 2)}, v{vT0}, s[{R_WS}:{R_WS+3}], s{sBase} offen {LD["flag"]}'
        if POLL['deep'] == 2:
            a(ld(0))
            a('s_sleep 5')
        a(f'L_poll_{tag}:')
        for k in range(POLL['deep']):
            a(ld(1 - k if POLL['deep'] == 2 else 0))
            a(f"s_waitcnt vmcnt({POLL['deep'] - 1})")
            a(f'v_cmp_ne_u64 vcc, s[{S_NONCE}:{S_NONCE+1}], {vr(vPoll + 2 * k, 2)}')
            a('s_cmp_eq_u64 vcc, 0')
            a(f's_cbranch_scc1 L_polled_{tag}')
            if POLL['sleep']: a(f"s_sleep {POLL['sleep']}")
    else:
        a(f'L_poll_{tag}:')
        a(f'buffer_load_dwordx4 {vr(vPoll, 4)}, v{vL16}, s[{R_WS}:{R_WS+3}], s{sBase} offen sc1')
        a(f'buffer_load_dwordx4 {vr(vPoll + 4, 4)}, v{vL16}, s[{R_WS}:{R_WS+3}], s{sBase} offen offset:1024 sc1')
        a('s_waitcnt vmcnt(0)')
        a(f'v_cmp_ne_u64 vcc, s[{S_NONCE}:{S_NONCE+1}], {vr(vPoll, 2)}')
        for k in range(1, 4):
            a(f'v_cmp_ne_u64 s[{sX}:{sX+1}], s[{S_NONCE}:{S_NONCE+1}], {vr(vPoll + 2 * k, 2)}')
            a(f's_or_b64 vcc, vcc, s[{sX}:{sX+1}]')
        a('s_cmp_eq_u64 vcc, 0')
        a(f's_cbranch_scc1 L_polled_{tag}')
    a(f's_add_u32 s{sC}, s{sC}, 1')
    a(f's_cmp_lt_u32 s{sC}, 0x10000')
    a(f's_cbranch_scc1 L_poll_{tag}')
    a(f'L_polled_{tag}:')
    if one:
        a('s_waitcnt vmcnt(0)')
        a('s_barrier')
    a.vm_reset()


def phase1(a, cfg):
    st = 'sc1'
    V = Alloc(LOC)
    vXo0, vXo1, vXo2 = V(), V(), V()
    vXb0, vXb1, vWb, vWrB, vWrK, vHb0, vHb1, vHK, vOb0, vOb1 = [V() for _ in range(10)]
    vXa0, vXa1, vWa, vHa, vOa = [V() for _ in range(5)]
    vRa = V(2)
    vR, vR2 = V(5), V(5)
    vNon = V(4, 2)
    SQ = V(8, 4)
    ACC = V(80, 4)
    FX = [V(24, 4), V(24, 4)]
    FW = [V(16, 4), V(16, 4)]
    acc = lambda sub, T: ACC + (sub * 4 + T) * 4
    KF = [V(4, 2) for _ in range(5)]
    vWo = KF[0]
    vWr = KF[2]
    vRm, vRr = V(), V()
    sRd = 36
    sM0x2 = 3
    sT, sT2, sI, sSlotR, sSlotW, sStage, sXoff, sWoff, sU, sM0x, sM0w = range(S_T0 + 3, S_T0 + 14)
    sMul, sMuls, sRb, sRs0, sRs1, sRoA, sRoB, sRstr, sWo, sWoM = range(S_T0 + 14, S_T0 + 24)
    sSc0, sOm, sOr = 59, 22, 23
    vB, vB0, vOm, vOr, vVw, vVw2 = H, H + 4, H + 6, H + 7, H + 8, H + 9
    vVr, vVr2 = vPoll + 6, vPoll + 7

    xcd_map(a, S_MT, S_NT, 32, 8, cfg.get('map1', '4x2'))
    a(f'v_and_b32 v{vT1}, 7, v0')
    a(f'v_xor_b32 v{vT0}, v{vQ}, v{vT1}')
    a(f'v_lshlrev_b32 v{vT0}, 4, v{vT0}')
    a(f'v_xor_b32 v{vT3}, 64, v{vT0}')
    a(f's_lshl_b32 s{sT}, s{S_MT}, 6')
    a(f's_lshl_b32 s{sT2}, s{S_WAVE}, 4')
    a(f's_add_u32 s{sT2}, s{sT}, s{sT2}')
    a(f's_sub_u32 s{sT2}, s{sT2}, 16')
    a(f'v_lshrrev_b32 v{vT1}, 3, v0')
    a(f'v_add_u32 v{vT2}, s{sT2}, v{vT1}')
    a(f'v_max_i32 v{vXo0}, 0, v{vT2}')
    a(f'v_add_u32 v{vT2}, 8, v{vT2}')
    a(f'v_max_i32 v{vXo1}, 0, v{vT2}')
    a(f's_movk_i32 s{sI}, 1280')
    a(f'v_mad_u32_u24 v{vXo0}, v{vXo0}, s{sI}, v{vT0}')
    a(f'v_mad_u32_u24 v{vXo1}, v{vXo1}, s{sI}, v{vT3}')
    a(f's_lshl_b32 s{sT2}, s{S_WAVE}, 3')
    a(f's_add_u32 s{sT}, s{sT}, s{sT2}')
    a(f's_add_u32 s{sT}, s{sT}, 48')
    a(f'v_add_u32 v{vT2}, s{sT}, v{vT1}')
    a(f's_and_b32 s{sT}, s{S_WAVE}, 1')
    a(f's_lshl_b32 s{sT}, s{sT}, 6')
    a(f'v_xor_b32 v{vT0}, s{sT}, v{vT0}')
    a(f'v_mad_u32_u24 v{vXo2}, v{vT2}, s{sI}, v{vT0}')
    a(f's_cmp_lt_u32 s{S_WAVE}, 2')
    a(f's_cselect_b32 s{sT}, 0, 0x7ff00000')
    a(f'v_or_b32 v{vXo2}, s{sT}, v{vXo2}')
    a(f'v_cmp_le_u32 vcc, 30, v0')
    a(f'v_subrev_u32 v{vT1}, 30, v0')
    a(f'v_mov_b32 v{vT3}, 3840')
    a(f'v_cndmask_b32 v{vT1}, v0, v{vT1}, vcc')
    a(f'v_cndmask_b32 v{vT2}, 0, v{vT3}, vcc')
    a(f'v_mul_u32_u24 v{vT3}, 26, v{vT1}')
    a(f'v_lshrrev_b32 v{vT3}, 8, v{vT3}')
    a(f's_movk_i32 s{sT}, 1120')
    a(f'v_mad_u32_u24 v{vT2}, v{vT3}, s{sT}, v{vT2}')
    a(f'v_lshl_add_u32 v{vT2}, v{vT1}, 4, v{vT2}')
    a(f's_mul_i32 s{sT}, s{S_NT}, 160')
    a(f's_mul_i32 s{sT2}, s{S_WAVE}, {16 * 3840}')
    a(f's_add_u32 s{sT}, s{sT}, s{sT2}')
    a(f'v_add_u32 v{vWo}, s{sT}, v{vT2}')
    for j in range(1, 8):
        a(f'v_add_u32 v{vWo + j}, {bs23(2 * j) * 3840 - 960 * (j & 1)}, v{vWo}')
    if cfg.get('x_wlin'):
        a(f's_mul_i32 s{sT}, s{S_NT}, 307200')
        a(f's_mul_i32 s{sT2}, s{S_WAVE}, {8 * 960}')
        a(f's_add_u32 s{sT}, s{sT}, s{sT2}')
        for j in range(8):
            a(f'v_add_u32 v{vWo + j}, s{sT}, v{vL16}')
            a(f'v_add_u32 v{vWo + j}, {960 * (j & ~1)}, v{vWo + j}')
    rot = cfg.get('rot', 'all')
    if rot == 'all':
        a(f's_lshr_b32 s{sT}, s2, 3')
        a(f's_mul_i32 s{sStage}, s{sT}, 3')
        a(f's_mul_i32 s{sT}, s{sStage}, 6554')
        a(f's_lshr_b32 s{sT}, s{sT}, 16')
        a(f's_mul_i32 s{sT}, s{sT}, 10')
        a(f's_sub_u32 s{sStage}, s{sStage}, s{sT}')
    else:
        groups, step = rot
        a(f's_add_u32 s{sStage}, s{S_MT}, s{S_NT}')
        a(f's_and_b32 s{sStage}, s{sStage}, {groups - 1}')
        a(f's_mul_i32 s{sStage}, s{sStage}, {step}')
    a(f's_lshl_b32 s{sM0x}, s{S_WAVE}, 11')
    a(f's_mul_i32 s{sM0w}, s{S_WAVE}, {8 * 960}')
    a(f's_add_u32 s{sM0w}, s{sM0w}, {WIMG}')
    kernel_srds(a, ['x', 'wq'])
    stamp(a, cfg, 1)
    uid = [0]

    sDa, sDb = 0, 1

    def w_pair(k):
        return (f's_add_u32 m0, s{sDa}, {1920 * k}',
                f's_mov_b32 exec_hi, 0x0fffffff\n'
                f'buffer_load_dwordx4 v{vWo + 2 * k}, s[{R_WQ}:{R_WQ+3}], s{sWoff} offen lds\n'
                f'buffer_load_dwordx4 v{vWo + 2 * k + 1}, s[{R_WQ}:{R_WQ+3}], s{sWoff} offen offset:960 lds\n'
                f's_mov_b32 exec_hi, -1')

    def advance(e):
        e(f's_lshl_b32 s{sXoff}, s{sStage}, 7')
        e(f's_mul_i32 s{sWoff}, s{sStage}, {30720 if cfg.get("x_wlin") else 64 * 3840}')
        e(f's_add_u32 s{sDa}, s{sM0w}, s{sSlotW}')
        e(f's_add_u32 s{sDb}, s{sM0x}, s{sSlotW}')
        e(f's_add_u32 s{sStage}, s{sStage}, 1')
        e(f's_cmp_eq_u32 s{sStage}, 10')
        e(f's_cselect_b32 s{sStage}, 0, s{sStage}')

    def first_half():
        return [(f's_mov_b32 m0, s{sDb}', f'buffer_load_dwordx4 v{vXo0}, s[{R_X}:{R_X+3}], s{sXoff} offen lds'),
                (f's_add_u32 m0, s{sDb}, 1024', f'buffer_load_dwordx4 v{vXo1}, s[{R_X}:{R_X+3}], s{sXoff} offen lds'),
                (f's_add_u32 m0, s{sM0x2}, s{sSlotW}', f'buffer_load_dwordx4 v{vXo2}, s[{R_X}:{R_X+3}], s{sXoff} offen lds'),
                w_pair(0)]

    def second_half():
        return [w_pair(k) for k in range(1, 4)]

    def flat(items):
        return [x if isinstance(x, str) else x[0] + '\n' + x[1] for x in items]

    def stage_items(slot, second=True):
        e = Rec(); e(f's_mov_b32 s{sSlotW}, {slot}'); advance(e); e.cut()
        return e.items + flat(first_half() + (second_half() if second else []))

    def wo_dma(u):
        return [(f's_add_u32 m0, s{sWoM}, {(20 * u + i) * 1024}' + (f'\ns_add_u32 s{sXoff}, s{sWo}, {u * 4 * 32 * 1280}' if i == 0 else ''),
                 f'buffer_load_dwordx4 v{vR + i}, s[{R_WO}:{R_WO+3}], s{sXoff} offen lds') for i in range(5)]

    def rp_dma():
        o = []
        for i in range(5):
            for side, (R, so) in enumerate(((R_A, sRoA), (R_B, sRoB))):
                o.append((f's_add_u32 m0, s{sRb}, {side * 5120 + i * 1024}',
                          f'buffer_load_dwordx4 v{vR2 + i}, s[{R}:{R+3}], s{so} offen lds\n'
                          f's_add_u32 s{so}, s{so}, s{sRstr}'))
        return o

    a(f's_lshl_b32 s{sM0x2}, s{S_WAVE}, 10')
    a(f's_add_u32 s{sM0x2}, s{sM0x2}, 8192')
    a(f's_cmp_lt_u32 s{S_WAVE}, 2')
    a(f's_cselect_b32 s{sM0x2}, s{sM0x2}, {LDS_BYTES}')
    for x in stage_items(2 * SLOT): a(x)

    r = Rec()
    r(f'v_lshrrev_b32 v{vT0}, 1, v{vM}')
    r(f'v_xor_b32 v{vT0}, v{vT0}, v{vQ}')
    r(f'v_lshlrev_b32 v{vT0}, 4, v{vT0}')
    r(f'v_lshl_add_u32 v{vXb0}, v{vM}, 7, v{vT0}')
    r(f'v_xor_b32 v{vXb1}, 64, v{vXb0}')
    r(f's_lshl_b32 s{sT}, s{S_WAVE}, 11')
    r(f's_add_u32 s{sT}, s{sT}, 2048')
    r(f'v_add_u32 v{vOb0}, s{sT}, v{vXb0}')
    r(f'v_add_u32 v{vOb1}, s{sT}, v{vXb1}')
    r(f'v_cmp_eq_u32 vcc, 0, v{vM}')
    r(f'v_mov_b32 v{vT0}, {L_ONES}')
    r(f'v_cndmask_b32 v{vHb0}, v{vXb0}, v{vT0}, vcc')
    r(f'v_cndmask_b32 v{vHb1}, v{vXb1}, v{vT0}, vcc')
    r(f'v_cndmask_b32 v{vHK}, 1, 0, vcc')
    r(f'v_lshrrev_b32 v{vT0}, 1, v{vQ}')
    r(f'v_lshlrev_b32 v{vT0}, 4, v{vT0}')
    r(f'v_and_b32 v{vT1}, 1, v{vQ}')
    r(f'v_lshl_add_u32 v{vT0}, v{vT1}, 2, v{vT0}')
    r(f'v_lshrrev_b32 v{vT1}, 2, v{vM}')
    r(f'v_add_u32 v{vT0}, v{vT0}, v{vT1}')
    r(f'v_mul_u32_u24 v{vT0}, 480, v{vT0}')
    r(f's_mul_i32 s{sT}, s{S_WAVE}, 40')
    r(f's_add_u32 s{sT}, s{sT}, {WIMG}')
    r(f'v_add_u32 v{vT0}, s{sT}, v{vT0}')
    r(f'v_and_b32 v{vT1}, 3, v0')
    r(f'v_lshl_add_u32 v{vWb}, v{vT1}, 3, v{vT0}')
    r(f'v_add_u32 v{vWrB}, {160 + 32}, v{vT0}')
    r(f'v_add_u32 v{vT2}, 32, v{vT0}')
    r(f'v_cmp_eq_u32 vcc, 1, v{vT1}')
    r(f'v_cndmask_b32 v{vWrB}, v{vWrB}, v{vT2}, vcc')
    r(f'v_add_u32 v{vT2}, {320 + 32}, v{vT0}')
    r(f'v_cmp_eq_u32 vcc, 2, v{vT1}')
    r(f'v_cndmask_b32 v{vWrB}, v{vWrB}, v{vT2}, vcc')
    r(f'v_mov_b32 v{vT2}, {L_ONES}')
    r(f'v_cmp_eq_u32 vcc, 3, v{vT1}')
    r(f'v_cndmask_b32 v{vWrB}, v{vWrB}, v{vT2}, vcc')
    r(f'v_cndmask_b32 v{vWrK}, 1, 0, vcc')
    for k in range(4):
        r(f's_mov_b32 s{sT}, {(k >> 1) * 15360 + (k & 1) * 3840}')
        r(f'v_mad_u32_u24 v{vWr + k}, v{vWrK}, s{sT}, v{vWrB}')
    r(f'v_mov_b32 v{vT0}, 0x3f803f80')
    r(f'v_lshlrev_b32 v{vT1}, 2, v{vM}')
    r(f'v_add_u32 v{vT1}, {L_ONES}, v{vT1}')
    r(f'ds_write_b32 v{vT1}, v{vT0}')
    for k in ('wo', 'g', 'u', 'dn', 'out', 'ws'):
        srd(r, *SRD_TABLE[k])
    if cfg.get('tlb', 0):
        r(f'v_lshlrev_b32 v{vT3}, 19, v0')
        for R in (R_WS, R_G, R_U, R_DN, R_OUT):
            r(f'buffer_load_dword v{vPoll + 3}, v{vT3}, s[{R}:{R+3}], 0 offen')
    r.each()
    r(f'v_mov_b32 v{vNon + 2}, 0')
    r(f's_or_b32 s{sT}, s2, s{S_WAVE}')
    r(f's_cmp_lg_u32 s{sT}, 0')
    r('s_cbranch_scc1 L_p1_notag')
    r(f's_memrealtime s[{sMul}:{sMul+1}]')
    r('s_waitcnt lgkmcnt(0)')
    r(f's_or_b32 s{sMul}, s{sMul}, 1')
    r(f'v_mov_b32 v{vNon}, s{sMul}')
    r(f'v_mov_b32 v{vNon + 1}, s{sMul+1}')
    r('s_mov_b64 exec, 1')
    r(f'global_store_dwordx2 v{vNon + 2}, {vr(vNon, 2)}, s[{S_DBG}:{S_DBG+1}] sc1')
    r('s_mov_b64 exec, -1')
    r('L_p1_notag:')
    r.cut()
    xcd_map(r, S_MT2, S_NT2, 32, 8, cfg.get('map2', '4x2'))
    xcd_map(r, S_MT3, S_NF, 16, 16, cfg.get('map3', '4x2'))
    r(f's_movk_i32 s{sT}, 6554')
    r(f's_movk_i32 s{sT2}, 1120')
    for i in range(5):
        r(f'v_add_u32 v{vT0}, {64 * i}, v0')
        r(f'v_mul_u32_u24 v{vT1}, s{sT}, v{vT0}')
        r(f'v_lshrrev_b32 v{vT1}, 16, v{vT1}')
        r(f'v_lshlrev_b32 v{vT0}, 4, v{vT0}')
        r(f'v_mad_u32_u24 v{vR + i}, v{vT1}, s{sT2}, v{vT0}')
    r(f's_mul_i32 s{sWo}, s{S_WAVE}, {32 * 1280}')
    r(f's_mul_i32 s{sT}, s{S_NT2}, 160')
    r(f's_add_u32 s{sWo}, s{sWo}, s{sT}')
    r(f's_mul_i32 s{sWoM}, s{S_WAVE}, 5120')
    r(f's_lshl_b32 s{sU}, s2, 1')
    r(f's_add_u32 s{sU}, s{sU}, s{S_WAVE}')
    r(f's_lshr_b32 s{sT}, s2, 3')
    r(f's_and_b32 s{sT2}, s{sT}, 3')
    r(f's_sub_u32 s{sT2}, s{sT2}, 1')
    r(f's_lshr_b32 s{sT}, s{sT}, 2')
    r(f's_lshl_b32 s{sT}, s{sT}, 1')
    r(f's_add_u32 s{sT}, s{sT}, s{sT2}')
    r(f's_lshl_b32 s{sT}, s{sT}, 3')
    r(f's_and_b32 s{sMul}, s2, 7')
    r(f's_add_u32 s{sT}, s{sT}, s{sMul}')
    r(f's_add_u32 s{sT}, s{sT}, 512')
    r.each()
    r(f's_cmp_lt_u32 s{sT2}, 2')
    r(f's_cselect_b32 s{sT}, s{sT}, 1000')
    r(f's_cmp_lt_u32 s{S_WAVE}, 2')
    r(f's_cselect_b32 s{sU}, s{sU}, s{sT}')
    r(f's_cmp_eq_u32 s{S_WAVE}, 3')
    r(f's_cselect_b32 s{sU}, 1000, s{sU}')
    r(f's_mul_i32 s{sRb}, s{S_WAVE}, 10240')
    r(f's_add_u32 s{sRb}, s{sRb}, {L_STG}')
    r(f's_cmp_ge_u32 s{sU}, 384')
    r('s_cbranch_scc1 L_p1_udown')
    r(f's_mul_i32 s{sRs0}, s{sU}, 1366')
    r(f's_lshr_b32 s{sRs0}, s{sRs0}, 16')
    r(f's_mul_i32 s{sT}, s{sRs0}, 48')
    r(f's_sub_u32 s{sRs1}, s{sU}, s{sT}')
    r(f'v_lshrrev_b32 v{vT0}, 3, v0')
    r(f'v_mul_u32_u24 v{vT0}, 3072, v{vT0}')
    r(f'v_and_b32 v{vT1}, 7, v0')
    for i in range(5): r(f'v_lshl_add_u32 v{vR2 + i}, v{vT1}, 4, v{vT0}')
    r(f's_mul_i32 s{sRoA}, s{sRs0}, {80 * 3072}')
    r(f's_lshr_b32 s{sT2}, s{sRs1}, 1')
    r(f's_lshl_b32 s{sT2}, s{sT2}, 7')
    r(f's_add_u32 s{sRoA}, s{sRoA}, s{sT2}')
    r(f's_add_u32 s{sRoB}, s{sRoA}, {40 * 3072}')
    r(f's_mov_b32 s{sRstr}, {8 * 3072}')
    r(f's_cmp_eq_u32 s{S_WAVE}, 0')
    r(f's_cselect_b64 s[{R_A}:{R_A+1}], s[{R_G}:{R_G+1}], s[{R_U}:{R_U+1}]')
    r(f's_cselect_b64 s[{R_B}:{R_B+1}], s[{R_G}:{R_G+1}], s[{R_U}:{R_U+1}]')
    r(f'v_bfe_u32 v{vT0}, v0, 1, 1')
    r(f'v_mul_u32_u24 v{vT0}, 10240, v{vT0}')
    r(f'v_and_b32 v{vT1}, 1, v0')
    r(f'v_lshl_add_u32 v{vT0}, v{vT1}, 3, v{vT0}')
    r(f'v_and_b32 v{vT1}, 1, v{vQ}')
    r(f'v_lshl_add_u32 v{vT0}, v{vT1}, 4, v{vT0}')
    r(f'v_lshrrev_b32 v{vT1}, 2, v{vM}')
    r(f'v_lshl_add_u32 v{vT0}, v{vT1}, 7, v{vT0}')
    r(f's_lshl_b32 s{sT}, s{S_WAVE}, 6')
    r(f's_add_u32 s{sT}, s{sT}, {L_STG}')
    r(f'v_add_u32 v{vT0}, s{sT}, v{vT0}')
    r(f'v_lshrrev_b32 v{vT1}, 5, v0')
    r(f'v_lshl_add_u32 v{vRm}, v{vT1}, 10, v{vT0}')
    r(f'v_mul_u32_u24 v{vT1}, {40 * 128}, v{vT1}')
    r(f'v_add_u32 v{vRr}, v{vT1}, v{vT0}')
    sNf, sSp, sB0, sB1 = sMul, sMuls, sI, sSc0
    r(f's_mul_i32 s{sNf}, s{sRs1}, 21846')
    r(f's_lshr_b32 s{sNf}, s{sNf}, 16')
    r(f's_mul_i32 s{sT2}, s{sNf}, 3')
    r(f's_sub_u32 s{sSp}, s{sRs1}, s{sT2}')
    r(f's_lshl_b32 s{sSp}, s{sSp}, 1')
    r(f's_mul_i32 s{sNf}, s{sNf}, 240')
    r(f's_lshr_b32 s{sB0}, s{sRs0}, 1')
    r(f's_mul_i32 s{sB0}, s{sB0}, 10')
    r(f's_and_b32 s{sT}, s{sRs0}, 1')
    r(f's_add_u32 s{sB1}, s{sB0}, s{sT}')
    r(f's_add_u32 s{sB1}, s{sB1}, 8')
    r(f's_lshl_b32 s{sT}, s{sT}, 2')
    r(f's_add_u32 s{sB0}, s{sB0}, s{sT}')
    for sl in range(2):
        dM, dR, dS = sRd + 3 * sl, sRd + 3 * sl + 1, sRd + 3 * sl + 2
        if sl: r(f's_add_u32 s{sSp}, s{sSp}, 1')
        r(f's_mul_i32 s{sT}, s{sSp}, 40')
        r(f's_cmp_lt_u32 s{sSp}, {NP1}')
        r(f's_cselect_b32 s{sT}, s{sSp}, s{sT}')
        r(f's_cselect_b32 s{dS}, {NP1}, 1')
        r(f's_add_u32 s{sT}, s{sT}, s{sNf}')
        r(f's_mul_i32 s{dM}, s{sB0}, s{dS}')
        r(f's_add_u32 s{dM}, s{dM}, s{sT}')
        r(f's_lshl_b32 s{dM}, s{dM}, 10')
        r(f's_mul_i32 s{dR}, s{sB1}, s{dS}')
        r(f's_add_u32 s{dR}, s{dR}, s{sT}')
        r(f's_lshl_b32 s{dR}, s{dR}, 10')
        r(f's_lshl_b32 s{dS}, s{dS}, 10')
    r(f's_mul_i32 s{sT}, s{sRs0}, {3072 * 4}')
    r(f's_lshl_b32 s{sT2}, s{sRs1}, 8')
    r(f's_add_u32 s{sT}, s{sT}, s{sT2}')
    r(f's_add_u32 s{sRd + 6}, s{sT}, {WS_CS}')
    r('s_branch L_p1_uset')
    r('L_p1_udown:')
    r(f's_sub_u32 s{sT}, s{sU}, 384')
    r(f's_lshr_b32 s{sRs0}, s{sT}, 3')
    r(f's_and_b32 s{sRs1}, s{sT}, 7')
    for i in range(5): r(f'v_mov_b32 v{vR2 + i}, v{vR + i}')
    r(f's_mul_i32 s{sRoA}, s{sRs0}, {64 * 1280}')
    r(f's_mul_i32 s{sT2}, s{sRs1}, 160')
    r(f's_add_u32 s{sRoA}, s{sRoA}, s{sT2}')
    r(f's_add_u32 s{sRoB}, s{sRoA}, {32 * 1280}')
    r(f's_mov_b32 s{sRstr}, 0')
    r(f's_mov_b64 s[{R_A}:{R_A+1}], s[{R_DN}:{R_DN+1}]')
    r(f's_mov_b64 s[{R_B}:{R_B+1}], s[{R_DN}:{R_DN+1}]')
    r(f'v_lshrrev_b32 v{vT0}, 1, v{vQ}')
    r(f'v_lshlrev_b32 v{vT0}, 4, v{vT0}')
    r(f'v_and_b32 v{vT1}, 1, v{vQ}')
    r(f'v_lshl_add_u32 v{vT0}, v{vT1}, 2, v{vT0}')
    r(f'v_lshrrev_b32 v{vT1}, 2, v{vM}')
    r(f'v_add_u32 v{vT0}, v{vT0}, v{vT1}')
    r(f'v_mul_u32_u24 v{vT0}, 160, v{vT0}')
    r(f'v_and_b32 v{vT1}, 3, v0')
    r(f'v_mul_u32_u24 v{vT1}, 40, v{vT1}')
    r(f'v_add3_u32 v{vRm}, v{vT0}, v{vT1}, s{sRb}')
    r(f's_mul_i32 s{sT}, s{sRs1}, 240')
    r(f's_mul_i32 s{sT2}, s{sRs0}, 10')
    r(f's_add_u32 s{sT}, s{sT}, s{sT2}')
    r(f's_lshl_b32 s{sT}, s{sT}, 10')
    r(f's_add_u32 s{sRd}, s{sT}, {WS_WD}')
    r('L_p1_uset:')
    r(f's_cmp_lt_u32 s{sU}, 576')
    r(f's_cselect_b32 s{R_A+2}, {WG_BYTES}, 0')
    r(f's_cselect_b32 s{R_B+2}, {WG_BYTES}, 0')
    r(f's_cselect_b32 s{sRb}, s{sRb}, 0x30000')
    r(f's_mov_b32 s{R_A+3}, 0x20000')
    r(f's_mov_b32 s{R_B+3}, 0x20000')
    r.cut()
    weave(a, r.items, stage_items(0) + stage_items(SLOT, False))
    r = Rec()
    for i in range(88): r(f'v_mov_b32 v{SQ + i}, 0')
    LOG2E = math.log2(math.e)
    csc = (20 ** -0.5) * LOG2E
    r(f'v_lshlrev_b32 v{vT0}, 2, v{vQ}')
    r(f'v_sub_u32 v{vT0}, v{vM}, v{vT0}')
    r(f'v_and_b32 v{vT0}, -2, v{vT0}')
    r(f'v_mov_b32 v{vT2}, {f32(-1e30)}')
    r.each()
    r(f's_cmp_eq_u32 s{S_MT}, 0')
    r(f's_cselect_b32 s{sT}, {f32(-1e9 * LOG2E)}, 0')
    r(f's_cselect_b32 s{sSc0}, 0, {f32(csc)}')
    r.cut()
    r(f'v_mov_b32 v{vT3}, s{sT}')
    for blk in range(2):
        for c in range(2):
            r(f'v_add_u32 v{vT1}, {16 - 16 * blk - 2 * c}, v{vT0}')
            r(f'v_cmp_gt_u32 vcc, 16, v{vT1}')
            r(f'v_cndmask_b32 v{vB + 2 * blk + c}, v{vT2}, 0, vcc')
            if blk == 0: r(f'v_cndmask_b32 v{vB0 + c}, v{vT2}, v{vT3}, vcc')
    r(f'v_and_b32 v{vT0}, 1, v{vQ}')
    r(f'v_mul_u32_u24 v{vT0}, {80 * 256}, v{vT0}')
    r(f'v_lshrrev_b32 v{vT1}, 1, v{vQ}')
    r(f'v_lshl_add_u32 v{vT0}, v{vT1}, 8, v{vT0}')
    r(f'v_lshl_add_u32 v{vOm}, v{vM}, 4, v{vT0}')
    r(f'v_mul_u32_u24 v{vT1}, {80 * 256}, v{vQ}')
    r(f'v_lshl_add_u32 v{vOr}, v{vM}, 4, v{vT1}')
    r(f's_mul_i32 s{sT}, s{S_WAVE}, 3328')
    r(f's_add_u32 s{sT}, s{sT}, {L_VS}')
    r(f'v_mul_u32_u24 v{vT0}, 40, v{vM}')
    r(f'v_add_u32 v{vVw2}, s{sT}, v{vT0}')
    r(f'v_lshl_add_u32 v{vVw}, v{vQ}, 3, v{vVw2}')
    r(f'v_lshrrev_b32 v{vT1}, 2, v0')
    r(f'v_mul_u32_u24 v{vT1}, 40, v{vT1}')
    r(f'v_add_u32 v{vVr2}, s{sT}, v{vT1}')
    r(f'v_and_b32 v{vT1}, 3, v0')
    r(f'v_lshl_add_u32 v{vVr}, v{vT1}, 3, v{vVr2}')
    r(f's_lshr_b32 s{sT}, s{S_NT}, 1')
    r(f's_mul_i32 s{sT}, s{sT}, 20')
    r(f's_mul_i32 s{sT2}, s{S_MT}, {4 * 80}')
    r(f's_add_u32 s{sT}, s{sT}, s{sT2}')
    r(f's_and_b32 s{sT2}, s{S_NT}, 1')
    r(f's_lshl_b32 s{sOm}, s{sT2}, 3')
    r(f's_add_u32 s{sOm}, s{sOm}, s{sT}')
    r(f's_lshl_b32 s{sOr}, s{S_WAVE}, 1')
    r(f's_add_u32 s{sOm}, s{sOm}, s{sOr}')
    r(f's_lshl_b32 s{sOm}, s{sOm}, 8')
    r(f's_add_u32 s{sOm}, s{sOm}, {WS_AO}')
    r(f's_lshl_b32 s{sT2}, s{sT2}, 1')
    r(f's_add_u32 s{sT}, s{sT}, s{sT2}')
    r(f's_lshr_b32 s{sT2}, s{S_WAVE}, 1')
    r(f's_add_u32 s{sT}, s{sT}, s{sT2}')
    r(f's_lshl_b32 s{sT}, s{sT}, 8')
    r(f's_and_b32 s{sT2}, s{S_WAVE}, 1')
    r(f's_lshl_b32 s{sT2}, s{sT2}, 3')
    r(f's_add_u32 s{sT}, s{sT}, s{sT2}')
    r(f's_add_u32 s{sOr}, s{sT}, {WS_AO + 16 * 256}')
    r(f's_mov_b32 s{sI}, 0')
    r(f's_mov_b32 s{sSlotR}, {2 * SLOT}')
    r(f's_lshl_b32 s{sT}, s2, 2')
    r(f's_add_u32 s{sT}, s{sT}, s{S_WAVE}')
    r(f's_lshl_b32 s{sT}, s{sT}, 10')
    r(f'buffer_load_dword v{vPoll + 3}, v{vL16}, s[{R_WO}:{R_WO+3}], s{sT} offen')
    r.each()
    for x in r.items: a(x)

    def reads(h):
        xa = vXa0 if h == 0 else vXa1
        pre = []
        if h == 0:
            pre += [f'v_add_u32 v{vWa}, s{sSlotR}, v{vWb}', f'v_add_u32 v{vXa0}, s{sSlotR}, v{vXb0}',
                    f'v_add_u32 v{vXa1}, s{sSlotR}, v{vXb1}']
        o = []
        for T in range(3):
            for hh in range(2):
                o.append([f'ds_read_b64_tr_b16 {vr(FW[h] + 4 * T + 2 * hh, 2)}, v{vWa} offset:{h * 15360 + hh * 3840 + T * 160}', None])
        o[0][1] = f'v_mad_u32_u24 v{vRa}, v{vWrK}, s{sSlotR}, v{vWr + 2 * h}'
        o[1][1] = f'v_mad_u32_u24 v{vRa + 1}, v{vWrK}, s{sSlotR}, v{vWr + 2 * h + 1}'
        o[3][1] = f'v_mad_u32_u24 v{vHa}, v{vHK}, s{sSlotR}, v{vHb0 if h == 0 else vHb1}'
        o[5][1] = f'v_add_u32 v{vOa}, s{sSlotR}, v{vOb0 if h == 0 else vOb1}'
        for hh in range(2):
            o.append([f'ds_read_b64_tr_b16 {vr(FW[h] + 12 + 2 * hh, 2)}, v{vRa + hh}', None])
        o.append([f'ds_read_b128 {vr(FX[h], 4)}, v{vHa}', None])
        for sub in range(1, 5):
            o.append([f'ds_read_b128 {vr(FX[h] + 4 * sub, 4)}, v{xa} offset:{sub * 2048}', None])
        o.append([f'ds_read_b128 {vr(FX[h] + 20, 4)}, v{vOa}', None])
        return pre, o

    def mfmas(h):
        o = []
        for sub in range(5):
            for T in range(4):
                c = vr(acc(sub, T), 4)
                o.append(f'v_mfma_f32_16x16x32_bf16 {c}, {vr(FW[h] + 4 * T, 4)}, {vr(FX[h] + 4 * sub, 4)}, {c}')
        o.append(f'v_mfma_f32_16x16x32_bf16 {vr(SQ, 4)}, {vr(FX[h], 4)}, {vr(FX[h], 4)}, {vr(SQ, 4)}')
        o.append(f'v_mfma_f32_16x16x32_bf16 {vr(SQ + 4, 4)}, {vr(FX[h] + 20, 4)}, {vr(FX[h] + 20, 4)}, {vr(SQ + 4, 4)}')
        return o

    def half(h, rd, dma, tail=()):
        rd = [list(x) for x in rd]
        dma = [(None, x) if isinstance(x, str) else x for x in dma]
        gaps = []
        free = [k for k, x in enumerate(rd) if x[1] is None]
        step = max(1, len(free) // max(len(dma), 1))
        carriers = free[::step][:len(dma)] if cfg.get('p1_spread', 1) else free[:len(dma)]
        for k, x in enumerate(rd):
            if k in carriers:
                d = dma.pop(0)
                gaps.append(x[0] + ('\n' + d[0] if d[0] else ''))
                gaps.append(d[1])
            else:
                gaps.append(x[0] + ('\n' + x[1] if x[1] else ''))
        gaps += flat([d if d[0] else d[1] for d in dma])
        mm = mfmas(h)
        tail = list(tail)
        while tail and len(gaps) < len(mm):
            gaps.append('\n'.join(tail[:3])); tail = tail[3:]
        if tail: gaps[-1] += '\n' + '\n'.join(tail)
        if len(gaps) <= len(mm):
            for k, m in enumerate(mm):
                a(m)
                if k < len(gaps): a(gaps[k])
        else:
            weave(a, mm, gaps)

    def iteration(dma0, dma1, nwait, last=False, mid=None, fetch=True):
        a('s_waitcnt lgkmcnt(0)')
        if last:
            half(0, reads(1)[1], dma0)
            a('s_waitcnt lgkmcnt(0)')
            a('s_barrier')
            half(1, [], dma1)
            return
        e = Rec()
        e(f's_mov_b32 s{sSlotW}, s{sSlotR}')
        e(f's_add_u32 s{sSlotR}, s{sSlotR}, {SLOT}')
        e(f's_cmp_eq_u32 s{sSlotR}, {3 * SLOT}')
        e(f's_cselect_b32 s{sSlotR}, 0, s{sSlotR}')
        if fetch: advance(e)
        pre, rd = reads(0)
        half(0, reads(1)[1], dma0, e.cur + pre)
        a(f's_waitcnt vmcnt({nwait}) lgkmcnt(0)')
        a('s_barrier')
        if mid: mid()
        half(1, rd, dma1)

    def repack(RF):
        vCa, vCb, vOne = vR2, vR2 + 1, vR2 + 2
        a(f's_cmp_ge_u32 s{sU}, 576')
        a('s_cbranch_scc1 L_p1_rend')
        a(f's_cmp_ge_u32 s{sU}, 384')
        a('s_cbranch_scc1 L_p1_rd')
        a.lg_reset()
        for sl in range(2):
            for bp in range(5):
                for h in range(2):
                    d = vr(RF + 20 * sl + 4 * bp + 2 * h, 2)
                    if bp < 4:
                        a(f'ds_read_b64_tr_b16 {d}, v{vRm} offset:{bp * 2560 + h * 512 + 32 * sl}', tag=(sl, bp))
                    else:
                        a(f'ds_read_b64_tr_b16 {d}, v{vRr} offset:{16 * 128 + h * 2560 + 32 * sl}', tag=(sl, bp))
        a(f'v_mov_b32 v{vCa}, 0')
        a(f'v_mov_b32 v{vCb}, 0')
        a(f'v_mov_b32 v{vOne}, 0x3f803f80')
        for sl in range(2):
            dM, dR, dS = sRd + 3 * sl, sRd + 3 * sl + 1, sRd + 3 * sl + 2
            for bp in range(5):
                a.lg_wait((sl, bp))
                a.raw(f'    buffer_store_dwordx4 {vr(RF + 20 * sl + 4 * bp, 4)}, v{vL16}, s[{R_WS}:{R_WS+3}], s{dM if bp < 4 else dR} offen {st}')
                if bp < 3: a(f's_add_u32 s{dM}, s{dM}, s{dS}')
        for n in range(20):
            for sl in range(2): a(f'v_dot2c_f32_bf16 v{vCb if sl else vCa}, v{RF + 20 * sl + n}, v{vOne}')
        a(f'v_lshlrev_b32 v{vOne}, 2, v0')
        a(f'v_permlane32_swap_b32 v{vCa}, v{vCb}')
        a(f'v_add_f32 v{vCa}, v{vCa}, v{vCb}')
        a.raw(f'    buffer_store_dword v{vCa}, v{vOne}, s[{R_WS}:{R_WS+3}], s{sRd + 6} offen {st}')
        a('s_branch L_p1_rend')
        a('L_p1_rd:')
        a.lg_reset()
        for n in range(10):
            for h in range(2):
                a(f'ds_read_b64_tr_b16 {vr(RF + 4 * n + 2 * h, 2)}, v{vRm} offset:{(n // 5) * 5120 + h * 1280 + 8 * (n % 5)}', tag=n)
        for n in range(10):
            a.lg_wait(n)
            if n % 4 == 0 and n: a(f's_add_u32 s{sRd}, s{sRd}, 4096')
            a.raw(f'    buffer_store_dwordx4 {vr(RF + 4 * n, 4)}, v{vL16}, s[{R_WS}:{R_WS+3}], s{sRd} offen offset:{(n % 4) * 1024} {st}')
        a('L_p1_rend:')
        a('s_nop 1')
        a.lg_reset()

    def pub0():
        a(f's_mov_b32 s{sT}, 0')
        publish(a, WS_F0, sT, 2, 0, 'p0')

    tag_load = f'global_load_dwordx2 {vr(vNon, 2)}, v{vNon + 2}, s[{S_DBG}:{S_DBG+1}] sc1'

    def share_tag():
        a(f's_mov_b32 s{sT}, 0')
        a('L_p1_tag:')
        a(f'v_readfirstlane_b32 s{S_NONCE}, v{vNon}')
        a(f'v_readfirstlane_b32 s{S_NONCE + 1}, v{vNon + 1}')
        a(f's_add_u32 s{sT}, s{sT}, 1')
        a(f's_cmp_lg_u32 s{S_NONCE}, 0')
        a('s_cbranch_scc1 L_p1_tagged')
        a(tag_load)
        a('s_waitcnt vmcnt(0)')
        a(f's_cmp_lt_u32 s{sT}, 0x20000')
        a('s_cbranch_scc1 L_p1_tag')
        a('L_p1_tagged:')

    wo = [x for u in range(5) for x in wo_dma(u)]
    a(tag_load)
    a('s_waitcnt vmcnt(18) lgkmcnt(0)')
    stamp(a, cfg, 2)
    pre, rd = reads(0)
    for x in pre: a(x)
    a('s_barrier')
    for x, y in rd:
        a(x)
        if y: a(y)
    late = True
    rp_tail = rp_dma()
    if cfg.get('x_noR'): rp_tail = [x[0] + '\n' + x[1].replace(f's[{R_A}:{R_A+3}]', f's[{R_X}:{R_X+3}]').replace(f's[{R_B}:{R_B+3}]', f's[{R_X}:{R_X+3}]') for x in rp_tail]
    a('L_p1_loop:')
    iteration(second_half(), first_half(), 11)
    a(f's_add_u32 s{sI}, s{sI}, 1')
    a(f's_cmp_lt_u32 s{sI}, 7')
    a('s_cbranch_scc1 L_p1_loop')
    a.check_backedge('L_p1_loop')
    stamp(a, cfg, 25)
    plan = cfg.get('p1_tail', ['RRRRR', 'RRRRR', 'WWWWWW', 'WWWWWW', 'WWWWWW'])
    order = ''.join(plan)
    assert order.count('R') == 10 and ''.join(plan[:2]).count('W') <= 10 and ''.join(plan[:4]).count('W') <= 20
    slots = [[(rp_tail if ch == 'R' else wo).pop(0) for ch in x] for x in plan]
    after_r = len(order) - 1 - order.rindex('R')
    iteration(second_half(), slots[0], 11, mid=share_tag, fetch=False)
    stamp(a, cfg, 26)
    iteration(slots[1], slots[2], len(plan[0]) + len(plan[1]), fetch=False)
    iteration(slots[3], slots[4], 0, last=True)
    wo = flat(wo)
    stamp(a, cfg, 3)

    E = Alloc(FX[0], FW[1] + 16)
    vCS = E(16, 2)
    vRS, vNM, vRstd, vRstdR, vTm, vSS = E(5), E(6, 2), E(6, 2), E(6, 2), E(5), E(5)
    VP = [E(2, 2) for _ in range(5)]
    QF = [None] + [E(4, 2) for _ in range(4)]
    sQ3 = sMul
    a.lg_reset()
    a(f'v_lshlrev_b32 v{vT0}, 2, v{vM}')
    a(f'v_add_u32 v{vT1}, {48 * 4}, v{vT0}')
    a(f'v_and_b32 v{vT2}, 3, v0')
    for sub in range(5):
        a(f'ds_bpermute_b32 v{vRS + sub}, v{vT1}, v{acc(sub, 3)}', tag='rs')
    for r_ in range(1, 4):
        a(f'v_cmp_eq_u32 vcc, {r_}, v{vT2}')
        a(f'v_cndmask_b32 v{SQ}, v{SQ}, v{SQ + r_}, vcc')
        a(f'v_cndmask_b32 v{SQ + 4}, v{SQ + 4}, v{SQ + 4 + r_}, vcc')
    a(f's_lshl_b32 s{sT}, s{S_WAVE}, 6')
    a(f'v_add_u32 v{vT0}, {L_SQ}, v{vT0}')
    a(f'v_add_u32 v{vT2}, s{sT}, v{vT0}')
    a('s_mov_b32 exec_lo, 0x00f0000f')
    a('s_mov_b32 exec_hi, 0xf0000f00')
    a(f'ds_write_b32 v{vT0}, v{SQ}', tag='sq')
    a(f'ds_write_b32 v{vT2}, v{SQ + 4} offset:64', tag='sq')
    a('s_mov_b64 exec, -1')
    for T in range(4):
        for r_ in range(4):
            a(f'v_mov_b32_dpp v{vCS + 4 * T + r_}, v{acc(0, T) + r_} row_newbcast:0 row_mask:0xf bank_mask:0xf')
    a(f's_mov_b32 s{sT}, {f32(-1.0 / 640)}')
    a(f's_mov_b32 s{sT2}, {f32(1.0 / 640)}')
    a(f's_mov_b32 s{sQ3}, 0')
    a(f's_mov_b32 s{sQ3+1}, 0xffff0000')
    nlater = len(wo)
    a(f's_waitcnt vmcnt({after_r}) lgkmcnt(0)')
    a.lg_reset()
    a('s_barrier')
    repack(FX[0] + 24)
    stamp(a, cfg, 40)
    for sub in range(5):
        a(f'ds_read_b32 v{vSS + sub}, v{vT0} offset:{64 * sub}', tag='ss')
    for sub in range(5): a(f'v_mul_f32 v{vNM + sub}, s{sT}, v{vRS + sub}')
    for sub in range(5): a(f'v_mul_f32 v{vTm + sub}, v{vNM + sub}, v{vNM + sub}')

    def bc(reg):
        return vr(reg & ~1, 2), reg & 1

    r = Rec()
    for sub, T in [(sub, T) for T in (2, 3, 1, 0) for sub in range(5) if (sub, T) != (0, 0)]:
        nm, nh = bc(vNM + sub)
        for p in range(2):
            d = vr(acc(sub, T) + 2 * p, 2)
            r(f'v_pk_fma_f32 {d}, {vr(vCS + 4 * T + 2 * p, 2)}, {nm}, {d} op_sel:[0,{nh},0] op_sel_hi:[1,{nh},1]')
    r.each()
    weave(a, r.items, wo[:5]); wo = wo[5:]
    a.lg_wait('ss')
    for sub in range(5): a(f'v_fma_f32 v{vTm + sub}, v{vSS + sub}, s{sT2}, -v{vTm + sub}')
    for sub in range(5): a(f'v_max_f32 v{vTm + sub}, 0, v{vTm + sub}')
    for sub in range(5): a(f'v_add_f32 v{vTm + sub}, {f32(1e-5)}, v{vTm + sub}')
    for sub in range(5): a(f'v_rsq_f32 v{vRstd + sub}, v{vTm + sub}')
    for sub in range(5): a(f'v_cndmask_b32 v{vRstdR + sub}, v{vRstd + sub}, 0, s[{sQ3}:{sQ3+1}]')

    def finish(sub, T):
        rs_, rh = bc((vRstdR if T == 3 else vRstd) + sub)
        for p in range(2):
            d = vr(acc(sub, T) + 2 * p, 2)
            a(f'v_pk_mul_f32 {d}, {d}, {rs_} op_sel:[0,{rh}] op_sel_hi:[1,{rh}]')
        dst = {0: QF[sub], 1: KF[sub], 2: VP[sub], 3: KF[sub] + 2}[T]
        for p in range(2):
            a(f'v_cvt_pk_bf16_f32 v{dst + p}, v{acc(sub, T) + 2 * p}, v{acc(sub, T) + 2 * p + 1}')
    stamp(a, cfg, 41)
    for sub in range(5):
        finish(sub, 2); finish(sub, 3)
        a(f'ds_write_b64 v{vVw}, {vr(VP[sub], 2)} offset:{sub * 640}', tag='vw')
    a('s_mov_b32 exec_lo, 0')
    a('s_mov_b32 exec_hi, 0xffff')
    for sub in range(5):
        a(f'ds_write_b64 v{vVw2}, {vr(KF[sub] + 2, 2)} offset:{sub * 640 + 32}', tag='vw')
    a('s_mov_b64 exec, -1')
    for sub in range(5):
        finish(sub, 1)
        if sub:
            finish(sub, 0)
            for p in range(2): a(f'v_mov_b32 v{QF[sub] + 2 + p}, 0')
        if wo: a(wo.pop(0))
    for x in wo: a(x)
    for sub in range(1, 5):
        for p in range(2): a(f'v_permlane16_swap_b32 v{KF[sub] + 2 + p}, v{QF[sub] + 2 + p}')
    A2 = Alloc(ACC, ACC + 80)
    VTM, VTR = A2(10, 2), A2(10, 2)
    SS_ = [None] + [A2(8, 4) for _ in range(4)]
    vMx, vSm, vTx, vRe, vRo = A2(4), A2(4), A2(4), A2(4), A2(4)
    a.lg_wait('vw')
    for sub in range(5):
        a(f'ds_read_b64_tr_b16 {vr(VTM + 2 * sub, 2)}, v{vVr} offset:{sub * 640}', tag='vt')
        a(f'ds_read_b64_tr_b16 {vr(VTR + 2 * sub, 2)}, v{vVr2} offset:{sub * 640 + 32}', tag='vt')
    for b in range(1, 5):
        a(f'v_mfma_f32_16x16x32_bf16 {vr(SS_[b], 4)}, {vr(KF[b - 1], 4)}, {vr(QF[b], 4)}, 0')
        a(f'v_mfma_f32_16x16x32_bf16 {vr(SS_[b] + 4, 4)}, {vr(KF[b], 4)}, {vr(QF[b], 4)}, 0')
    stamp(a, cfg, 42)
    sOdd = sMul
    a(f's_mov_b32 s{sOdd}, 0xaaaaaaaa')
    a(f's_mov_b32 s{sOdd+1}, 0xaaaaaaaa')
    a(f's_mov_b32 s{sT2}, {f32(csc)}')
    B4 = range(1, 5)
    for b in B4:
        for c in range(4):
            a(f'v_cndmask_b32 v{SS_[b] + c}, v{SS_[b] + 2 * c}, v{SS_[b] + 2 * c + 1}, s[{sOdd}:{sOdd+1}]')
    for b in B4:
        for c in range(4):
            if b == 1 and c < 2:
                a(f'v_fma_f32 v{SS_[b] + c}, v{SS_[b] + c}, s{sSc0}, v{vB0 + c}')
            else:
                a(f'v_fma_f32 v{SS_[b] + c}, v{SS_[b] + c}, s{sT2}, v{vB + c}')
    for b in B4: a(f'v_max3_f32 v{vMx + b - 1}, v{SS_[b]}, v{SS_[b] + 1}, v{SS_[b] + 2}')
    for b in B4: a(f'v_max_f32 v{vMx + b - 1}, v{vMx + b - 1}, v{SS_[b] + 3}')
    for sw in ('v_permlane16_swap_b32', 'v_permlane32_swap_b32'):
        for b in range(4): a(f'v_mov_b32 v{vTx + b}, v{vMx + b}')
        for b in range(4): a(f'{sw} v{vMx + b}, v{vTx + b}')
        for b in range(4): a(f'v_max_f32 v{vMx + b}, v{vMx + b}, v{vTx + b}')
    for b in B4:
        for c in range(4): a(f'v_sub_f32 v{SS_[b] + c}, v{SS_[b] + c}, v{vMx + b - 1}')
    for b in B4:
        for c in range(4): a(f'v_exp_f32 v{SS_[b] + c}, v{SS_[b] + c}')
    for b in B4: a(f'v_add_f32 v{vSm + b - 1}, v{SS_[b]}, v{SS_[b] + 1}')
    for c in range(2, 4):
        for b in B4: a(f'v_add_f32 v{vSm + b - 1}, v{vSm + b - 1}, v{SS_[b] + c}')
    for sw in ('v_permlane16_swap_b32', 'v_permlane32_swap_b32'):
        for b in range(4): a(f'v_mov_b32 v{vTx + b}, v{vSm + b}')
        for b in range(4): a(f'{sw} v{vSm + b}, v{vTx + b}')
        for b in range(4): a(f'v_add_f32 v{vSm + b}, v{vSm + b}, v{vTx + b}')
    for b in range(4): a(f'v_rcp_f32 v{vSm + b}, v{vSm + b}')
    for b in range(4): a(f'v_cndmask_b32 v{vRe + b}, v{vSm + b}, 0, s[{sOdd}:{sOdd+1}]')
    for b in range(4): a(f'v_cndmask_b32 v{vRo + b}, 0, v{vSm + b}, s[{sOdd}:{sOdd+1}]')
    for b in B4:
        for c in range(4): a(f'v_mul_f32 v{SS_[b] + 4 + c}, v{SS_[b] + c}, v{vRo + b - 1}')
        for c in range(4): a(f'v_mul_f32 v{SS_[b] + c}, v{SS_[b] + c}, v{vRe + b - 1}')
    for b in B4:
        for c in range(4): a(f'v_cvt_pk_bf16_f32 v{QF[b] + c}, v{SS_[b] + c}, v{SS_[b] + 4 + c}')
    stamp(a, cfg, 43)
    a(f's_waitcnt vmcnt({nlater})')
    a('s_barrier')
    pub0()
    a.lg_wait('vt')
    for b in B4:
        a(f'v_mfma_f32_16x16x32_bf16 {vr(SS_[b], 4)}, {vr(VTM + 2 * (b - 1), 4)}, {vr(QF[b], 4)}, 0')
    for b in B4:
        a(f'v_mfma_f32_16x16x32_bf16 {vr(SS_[b] + 4, 4)}, {vr(VTR + 2 * (b - 1), 4)}, {vr(QF[b], 4)}, 0')
    OM = [KF[0], KF[1]]
    ORr = [None] + [VP[b] for b in B4]
    a(f's_add_u32 s{sT}, s{sOm}, {2 * 80 * 256}')
    for pr in range(2):
        for k in range(2):
            b = 1 + 2 * pr + k
            for p in range(2):
                a(f'v_cvt_pk_bf16_f32 v{OM[pr] + 2 * k + p}, v{SS_[b] + 2 * p}, v{SS_[b] + 2 * p + 1}')
    for b in B4:
        for p in range(2):
            a(f'v_cvt_pk_bf16_f32 v{ORr[b] + p}, v{SS_[b] + 4 + 2 * p}, v{SS_[b] + 4 + 2 * p + 1}')
    for pr in range(2):
        for p in range(2): a(f'v_permlane16_swap_b32 v{OM[pr] + p}, v{OM[pr] + 2 + p}')
    if 'p1' in LOCALX: st = ''
    a(f'buffer_store_dwordx4 {vr(OM[0], 4)}, v{vOm}, s[{R_WS}:{R_WS+3}], s{sOm} offen {st}')
    a(f'buffer_store_dwordx4 {vr(OM[1], 4)}, v{vOm}, s[{R_WS}:{R_WS+3}], s{sT} offen {st}')
    for b in range(2, 5):
        a(f'v_cmp_eq_u32 vcc, {b - 1}, v{vQ}')
        for p in range(2): a(f'v_cndmask_b32 v{ORr[1] + p}, v{ORr[1] + p}, v{ORr[b] + p}, vcc')
    a(f'buffer_store_dwordx2 {vr(ORr[1], 2)}, v{vOr}, s[{R_WS}:{R_WS+3}], s{sOr} offen {st}')
    stamp(a, cfg, 4)


def exchange_addr(a, vEx, ex_base, sT):
    for i in range(4):
        a(f's_add_u32 s{sT}, s{S_WAVE}, {i}')
        a(f's_and_b32 s{sT}, s{sT}, 3')
        a(f's_mul_i32 s{sT}, s{sT}, 15360')
        a(f's_add_u32 s{sT}, s{sT}, {ex_base + max(i - 1, 0) * 5120}')
        a(f'v_add_u32 v{vEx + i}, s{sT}, v{vL16}')


def ksplit_gemm(a, nkb, tail, ACC, breg, areg, vEx, side, at_block=lambda kb: None):
    seq = [(kb, j, i) for kb in range(nkb - tail) for j in range(5) for i in range(4)]
    seq += [(kb, j, i) for i in (1, 2, 3, 0) for kb in range(nkb - tail, nkb) for j in range(5)]
    a.lg_reset()
    seen = set()
    out = []
    for n, (kb, j, i) in enumerate(seq):
        if kb not in seen:
            seen.add(kb); a.vm_wait(('A', kb)); at_block(kb)
        c = vr(ACC + (i * 5 + j) * 4, 4)
        a(f'v_mfma_f32_16x16x32_bf16 {c}, {breg(kb * 5 + j)}, {areg(kb, i)}, {c if kb or i == 0 else 0}')
        if kb == nkb - 1 and i:
            out.append((n + 8, f'ds_write_b128 v{vEx + i}, {c} offset:{j * 1024}'))
        if out and out[0][0] <= n and n % 2 == 0: a(out.pop(0)[1])
        else: side(n)
    for _, x in out: a(x)


def reduce_finish(a, ACC, TMP, vEx, fill=(), st=lambda i: None):
    a.lg_wait_all()
    st(0)
    a('s_barrier')
    st(1)
    for n in range(15):
        a(f'ds_read_b128 {vr(TMP + 4 * n, 4)}, v{vEx} offset:{n * 1024}', tag=n)
    for x in fill: a(x)
    for n in range(15):
        a.lg_wait(n)
        for k in range(4):
            d = ACC + (n % 5) * 4 + k
            a(f'v_add_f32 v{d}, v{d}, v{TMP + 4 * n + k}')
    st(2)


def unpack(a, RES, U):
    for i in range(10):
        a(f'v_lshlrev_b32 v{U + 2 * i}, 16, v{RES + i}')
        a(f'v_and_b32 v{U + 2 * i + 1}, 0xffff0000, v{RES + i}')


def row_addr(a, vD, sD, sT):
    a(f's_lshl_b32 s{sD}, s{S_MT2}, 2')
    a(f's_add_u32 s{sD}, s{sD}, s{S_WAVE}')
    a(f's_mul_i32 s{sD}, s{sD}, {16 * 1280}')
    a(f's_mul_i32 s{sT}, s{S_NT2}, 160')
    a(f's_add_u32 s{sD}, s{sD}, s{sT}')
    a(f'v_mul_u32_u24 v{vD}, 1280, v{vM}')
    a(f's_movk_i32 s{sT}, 40')
    a(f'v_mad_u32_u24 v{vD}, v{vQ}, s{sT}, v{vD}')


def a_bases(a, sA, nch, base, sT, sT2):
    for i in range(4):
        a(f's_add_u32 s{sT}, s{S_WAVE}, {i}')
        a(f's_and_b32 s{sT}, s{sT}, 3')
        a(f's_lshl_b32 s{sT2}, s{S_MT2}, 2')
        a(f's_add_u32 s{sT}, s{sT}, s{sT2}')
        a(f's_mul_i32 s{sT}, s{sT}, {nch}')
        a(f's_mul_i32 s{sT2}, s{S_WAVE}, {nch // 4}')
        a(f's_add_u32 s{sT}, s{sT}, s{sT2}')
        a(f's_lshl_b32 s{sT}, s{sT}, 8')
        a(f's_add_u32 s{sA + i}, s{sT}, {base}')


S_B3SRC, S_B3M0, S_B4 = 10, 11, 3


def b3_dma(t, tmp):
    slot = (t % 6) * STG3
    o = []
    for i in range(6):
        pre = ''
        if i % 4 == 0:
            pre = f's_add_u32 m0, s{S_B3M0}, {slot + i * 1024}\ns_add_u32 s{tmp}, s{S_B3SRC}, {t * STG3 + i * 1024}\n'
        o.append(pre + f'buffer_load_dwordx4 v{vL16}, s[{R_WS}:{R_WS+3}], s{tmp} offen offset:{(i % 4) * 1024} sc1 lds')
    return o


def b4_reg(n):
    if n < 19: return ar(180 + 4 * n, 4)
    if n < 30: return vr(180 + 4 * (n - 19), 4)
    if n < 35: return ar(160 + 4 * (n - 30), 4)
    if n < 38: return vr(B4V + 4 * (n - 35), 4)
    if n < B4_EARLY: return vr(CSL + 4 * (n - 38), 4)
    return ar(4 * (n - B4_EARLY), 4)


B4_STATE = {'next': 0}


KB4 = [0, 3, 6, 9, 1, 4, 7, 10, 2, 5, 8, 11]
S_B4T = 59
S_F3 = 22


def b4_load(n):
    src = (KB4[n // 5] * 5 + n % 5) * 1024
    return (f's_add_u32 s{S_B4T}, s{S_B4}, {src}\n'
            f'buffer_load_dwordx4 {b4_reg(n)}, v{vL16}, s[{R_WS}:{R_WS+3}], s{S_B4T} offen sc1')


def flag_read(a, sBase, off, reg, vIdx, tag):
    a(f'buffer_load_dwordx2 {vr(reg, 2)}, v{vIdx}, s[{R_WS}:{R_WS+3}], s{sBase} offen offset:{off} {LD["flag"]}', tag=tag)


def flag_check(a, sBase, off, reg, vIdx, tag):
    sC = S_T0
    a.vm_wait(tag)
    a(f's_mov_b32 s{sC}, 0')
    a(f'L_chk_{tag}:')
    a(f'v_cmp_ne_u64 vcc, s[{S_NONCE}:{S_NONCE+1}], {vr(reg, 2)}')
    a('s_cmp_eq_u64 vcc, 0')
    a(f's_cbranch_scc1 L_ok_{tag}')
    a.raw(f'    buffer_load_dwordx2 {vr(reg, 2)}, v{vIdx}, s[{R_WS}:{R_WS+3}], s{sBase} offen offset:{off} {LD["flag"]}')
    a('s_waitcnt vmcnt(0)')
    a(f's_add_u32 s{sC}, s{sC}, 1')
    a(f's_cmp_lt_u32 s{sC}, 0x10000')
    a(f's_cbranch_scc1 L_chk_{tag}')
    a(f'L_ok_{tag}:')


def phase2(a, cfg):
    st = ld = 'sc1'
    if 'p2' in LOCALX: st = ''
    V = Alloc(LOC)
    vL16b, vBm, vBr, vXr, vMain, vRem = [V() for _ in range(6)]
    vSt, vTs = V(2, 2), V(2, 2)
    vEx = V(4)
    ACC = V(80, 4)
    TMP = V(60, 4)
    RES = TMP
    assert V.n <= CSL
    AF = 100
    sT, sT2, sStg, sMain, sRem, sXr, sFl, sD, sCs, sF0 = range(S_T0 + 4, S_T0 + 14)
    sA = S_T0 + 14
    row_addr(a, vXr, sXr, sT)
    a(f'buffer_load_dwordx4 {vr(RES, 4)}, v{vXr}, s[{R_X}:{R_X+3}], s{sXr} offen')
    a(f'buffer_load_dwordx4 {vr(RES + 4, 4)}, v{vXr}, s[{R_X}:{R_X+3}], s{sXr} offen offset:16')
    a(f'buffer_load_dwordx2 {vr(RES + 8, 2)}, v{vXr}, s[{R_X}:{R_X+3}], s{sXr} offen offset:32')
    a(f's_mul_i32 s{sStg}, s{S_WAVE}, {P2_STG}')
    a(f'v_lshrrev_b32 v{vT0}, 1, v{vQ}')
    a(f'v_mul_u32_u24 v{vT0}, 20, v{vT0}')
    a(f'v_and_b32 v{vT1}, 1, v{vQ}')
    a(f'v_lshl_add_u32 v{vT0}, v{vT1}, 3, v{vT0}')
    a(f'v_lshrrev_b32 v{vT1}, 2, v{vM}')
    a(f'v_add_u32 v{vT0}, v{vT0}, v{vT1}')
    a(f'v_mul_u32_u24 v{vT0}, 160, v{vT0}')
    a(f'v_and_b32 v{vT2}, 3, v0')
    a(f'v_mul_u32_u24 v{vT2}, 40, v{vT2}')
    a(f'v_add3_u32 v{vBm}, v{vT0}, v{vT2}, s{sStg}')
    a(f'v_mul_u32_u24 v{vT0}, 40, v{vQ}')
    a(f'v_add_u32 v{vT0}, v{vT0}, v{vT1}')
    a(f'v_mul_u32_u24 v{vT0}, 160, v{vT0}')
    a(f'v_add3_u32 v{vBr}, v{vT0}, v{vT2}, s{sStg}')
    a(f'v_add_u32 v{vL16b}, 4096, v{vL16}')
    a_bases(a, sA, 80, WS_AO, sT, sT2)
    a(f's_lshl_b32 s{sMain}, s{S_MT2}, 2')
    a(f's_add_u32 s{sMain}, s{sMain}, s{S_WAVE}')
    a(f's_mul_i32 s{sMain}, s{sMain}, 80')
    a(f's_lshr_b32 s{sT}, s{S_NT2}, 1')
    a(f's_mul_i32 s{sT}, s{sT}, 20')
    a(f's_add_u32 s{sMain}, s{sMain}, s{sT}')
    a(f's_and_b32 s{sT}, s{S_NT2}, 1')
    a(f's_lshl_b32 s{sRem}, s{sT}, 1')
    a(f's_add_u32 s{sRem}, s{sRem}, s{sMain}')
    a(f's_lshl_b32 s{sRem}, s{sRem}, 8')
    a(f's_add_u32 s{sRem}, s{sRem}, {WS_AH + 16 * 256}')
    a(f's_lshl_b32 s{sT}, s{sT}, 3')
    a(f's_add_u32 s{sMain}, s{sMain}, s{sT}')
    a(f's_lshl_b32 s{sMain}, s{sMain}, 8')
    a(f's_add_u32 s{sMain}, s{sMain}, {WS_AH}')
    a(f'v_lshlrev_b32 v{vMain}, 4, v{vM}')
    a(f'v_lshrrev_b32 v{vT0}, 1, v{vQ}')
    a(f'v_lshl_add_u32 v{vRem}, v{vT0}, 8, v{vMain}')
    a(f'v_and_b32 v{vT0}, 1, v{vQ}')
    a(f'v_lshl_add_u32 v{vRem}, v{vT0}, 3, v{vRem}')
    a(f'v_lshl_add_u32 v{vMain}, v{vQ}, 9, v{vMain}')
    a(f's_lshl_b32 s{sXr}, s{S_MT2}, 1')
    a(f's_lshr_b32 s{sT2}, s{S_WAVE}, 1')
    a(f's_add_u32 s{sXr}, s{sXr}, s{sT2}')
    a(f's_lshl_b32 s{sXr}, s{sXr}, 3')
    a(f's_add_u32 s{sXr}, s{sXr}, s{S_NT2}')
    a(f's_lshl_b32 s{sXr}, s{sXr}, 8')
    a(f's_and_b32 s{sT2}, s{S_WAVE}, 1')
    a(f's_lshl_b32 s{sT2}, s{sT2}, 7')
    a(f's_add_u32 s{sXr}, s{sXr}, s{sT2}')
    a(f's_add_u32 s{sXr}, s{sXr}, {WS_HS}')
    a(f'v_lshlrev_b32 v{vXr}, 3, v{vM}')
    a(f's_mul_i32 s{S_B3SRC}, s{S_NF}, {240 * 1024}')
    a(f's_mul_i32 s{S_B3M0}, s{S_WAVE}, 6144')
    a(f's_add_u32 s{S_B3SRC}, s{S_B3SRC}, s{S_B3M0}')
    a(f's_add_u32 s{S_B3SRC}, s{S_B3SRC}, {WS_WGU}')
    a(f's_mul_i32 s{S_B4}, s{S_NT2}, 240')
    a(f's_mul_i32 s{sT}, s{S_WAVE}, 60')
    a(f's_add_u32 s{S_B4}, s{S_B4}, s{sT}')
    a(f's_lshl_b32 s{S_B4}, s{S_B4}, 10')
    a(f's_add_u32 s{S_B4}, s{S_B4}, {WS_WD}')
    a(f's_mov_b32 s{sF0}, {WS_F0}')
    a(f's_lshl_b32 s{sFl}, s{S_MT2}, 6')
    a(f's_add_u32 s{sFl}, s{sFl}, {WS_F1}')
    a(f's_mul_i32 s{sCs}, s{S_NF}, 768')
    a(f's_add_u32 s{sCs}, s{sCs}, {WS_CS}')
    exchange_addr(a, vEx, L_EX2, sT)
    a('s_waitcnt vmcnt(3)')
    a.vm_reset(); a.lg_reset()
    a('s_barrier')
    publish(a, WS_F1, S_MT, S_NT, 8, 'p1')
    stamp(a, cfg, 5)
    for kb in range(5):
        for j in range(5):
            for h in range(2):
                d = ar((kb * 5 + j) * 4 + 2 * h, 2)
                if kb < 4:
                    a(f'ds_read_b64_tr_b16 {d}, v{vBm} offset:{kb * 6400 + h * 640 + 8 * j}')
                else:
                    a(f'ds_read_b64_tr_b16 {d}, v{vBr} offset:{16 * 160 + h * 3200 + 8 * j}')
    a(f's_cmp_lg_u32 s{S_WAVE}, 3')
    a('s_cbranch_scc1 L_p2_no0')
    poll(a, sF0, 256, 'p0')
    a('L_p2_no0:')
    a('s_waitcnt vmcnt(0)')
    unpack(a, RES, ACC)
    a('s_waitcnt lgkmcnt(0)')
    a.lg_reset()
    a('s_barrier')
    w1 = cfg.get('p2_w1', 6)
    pre = [x for t in range(4) for x in b3_dma(t, sD)]
    pre += [f'buffer_load_dwordx4 {vr(CSL + 4 * g, 4)}, v{vL16}, s[{R_WS}:{R_WS+3}], s{sCs} offen {ld}\ns_add_u32 s{sCs}, s{sCs}, 12288' for g in range(8)]
    must = len(pre)
    pre += [b4_load(n) for n in range(30)]
    total = len(pre)
    for x in pre[:w1]: a(x)
    pre = pre[w1:]
    stamp(a, cfg, 6)
    poll(a, sFl, 8, 'p2')
    stamp(a, cfg, 7)
    for kb in range(5):
        for i in range(4):
            v, off = (vL16, kb * 1024) if kb < 4 else (vL16b, 0)
            a(f'buffer_load_dwordx4 {ar(AF + (i * 5 + kb) * 4, 4)}, v{v}, s[{R_WS}:{R_WS+3}], s{sA + i} offen offset:{off} {LD["data"]}', tag=('A', kb))
    gap, k1, k2, start = cfg.get('p2_k', [5, 6, 10, 20])

    def side(n):
        if n > start and n % gap == 0 and pre: a(pre.pop(0))
    ksplit_gemm(a, 5, 2, ACC, lambda n: ar(4 * n, 4), lambda kb, i: ar(AF + (i * 5 + kb) * 4, 4), vEx, side,
                lambda kb: stamp(a, cfg, 29) if kb == 0 else None)
    stamp(a, cfg, 8)
    reduce_finish(a, ACC, TMP, vEx, pre[:k1], st=lambda i: stamp(a, cfg, 30 + i))
    pre = pre[k1:]
    k2 = min(k2, len(pre))
    for i in range(10):
        a(f'v_cvt_pk_bf16_f32 v{H + i}, v{ACC + 2 * i}, v{ACC + 2 * i + 1}')
    a(f'buffer_store_dwordx4 {vr(H, 4)}, v{vMain}, s[{R_WS}:{R_WS+3}], s{sMain} offen {st}')
    a(f'buffer_store_dwordx4 {vr(H + 4, 4)}, v{vMain}, s[{R_WS}:{R_WS+3}], s{sMain} offen offset:256 {st}')
    a(f'buffer_store_dwordx2 {vr(H + 8, 2)}, v{vRem}, s[{R_WS}:{R_WS+3}], s{sRem} offen {st}')
    a(f'v_mov_b32 v{vSt}, 0')
    a(f'v_mov_b32 v{vSt + 1}, 0')
    a(f'v_mov_b32 v{vT0}, 0x3f803f80')
    for i in range(10):
        a(f'v_dot2c_f32_bf16 v{vSt}, v{H + i}, v{vT0}')
        a(f'v_dot2c_f32_bf16 v{vSt + 1}, v{H + i}, v{H + i}')
    for sw in ('v_permlane16_swap_b32', 'v_permlane32_swap_b32'):
        for k in range(2): a(f'v_mov_b32 v{vTs + k}, v{vSt + k}')
        for k in range(2): a(f'{sw} v{vSt + k}, v{vTs + k}')
        for k in range(2): a(f'v_add_f32 v{vSt + k}, v{vSt + k}, v{vTs + k}')
    a('s_mov_b64 exec, 0xffff')
    a(f'buffer_store_dwordx2 {vr(vSt, 2)}, v{vXr}, s[{R_WS}:{R_WS+3}], s{sXr} offen {st}')
    a('s_mov_b64 exec, -1')
    stamp(a, cfg, 33)
    for x in pre[:k2]: a(x)

    def finish():
        a(f's_waitcnt vmcnt({k2})')
        a.vm_reset(); a.lg_reset()
        a('s_barrier')
        publish(a, WS_F2, S_MT2, S_NT2, 8, 'p2')
        stamp(a, cfg, 9)
        issued = total - len(pre) + k2
        assert issued >= must
        B4_STATE['next'] = issued - must
        for t in range(4, B3_GAP):
            for x in b3_dma(t, sD): a(x)
    return finish


def phase3(a, cfg, finish2):
    st = '' if 'p3' in LOCALX else 'sc1'; ld = LD['data']
    V = Alloc(LOC, B4V)
    vAo, vSo, vHo, vCsr, vNM, vA1, vA3, vC = [V() for _ in range(8)]
    vLB = V(3)
    NACC = NP1 + 1
    ACC = V(16 * NACC, 4)
    NF = cfg.get('p3_nf', 6)
    WF = V(4 * NF, 4)
    EC = V(16, 4)
    EP, EO = V(8, 2), [V(4, 4), V(4, 4)]
    ST = EP
    sT, sT2, sA, sH, sSt, sFl, sD = range(S_T0 + 4, S_T0 + 11)
    a(f's_lshl_b32 s{sFl}, s{S_MT3}, 7')
    a(f's_add_u32 s{sFl}, s{sFl}, {WS_F2}')
    a(f'v_lshlrev_b32 v{vT0}, 4, v{vM}')
    a(f'v_lshrrev_b32 v{vT1}, 5, v0')
    a(f'v_lshl_add_u32 v{vT0}, v{vT1}, 8, v{vT0}')
    a(f'v_lshlrev_b32 v{vCsr}, 4, v{vT1}')
    a(f'v_add_u32 v{vCsr}, {L_CS}, v{vCsr}')
    a(f'v_and_b32 v{vT2}, 31, v0')
    a(f'v_lshlrev_b32 v{vT2}, 3, v{vT2}')
    a(f'v_lshl_add_u32 v{vSo}, v{vT1}, 10, v{vT2}')
    a(f'v_and_b32 v{vT1}, 1, v{vQ}')
    a(f's_movk_i32 s{sT}, {80 * 256}')
    a(f'v_mad_u32_u24 v{vAo}, v{vT1}, s{sT}, v{vT0}')
    a(f's_mov_b32 s{sT}, {192 * 256}')
    a(f'v_mad_u32_u24 v{vHo}, v{vT1}, s{sT}, v{vT0}')
    a(f's_lshl_b32 s{sT}, s{S_MT3}, 2')
    a(f's_add_u32 s{sT}, s{sT}, s{S_WAVE}')
    a(f's_mul_i32 s{sA}, s{sT}, {2 * 80 * 256}')
    a(f's_add_u32 s{sA}, s{sA}, {WS_AH}')
    a(f's_mul_i32 s{sH}, s{sT}, {2 * 192 * 256}')
    a(f's_mul_i32 s{sT2}, s{S_NF}, {12 * 256}')
    a(f's_add_u32 s{sH}, s{sH}, s{sT2}')
    a(f's_add_u32 s{sH}, s{sH}, {WS_AHH}')
    a(f's_lshl_b32 s{sSt}, s{sT}, 11')
    a(f's_add_u32 s{sSt}, s{sSt}, {WS_HS}')
    for k in range(3):
        a(f'v_add_u32 v{vLB + k}, {k * 2 * STG3}, v{vL16}')
    c0 = -2.0 * math.sqrt(2.0 / math.pi) * math.log2(math.e)
    finish2()
    a.lg_reset()
    seq = order3()
    pend = []
    refill = []

    def w_read(p):
        t = p // 24
        if p % 24 == 0 and t >= 2:
            a.vm_wait(('S', t), must=t >= B3_GAP)
            a('s_barrier')
            if t + 4 < 10: refill.extend((x, ('S', t + 4)) for x in b3_dma(t + 4, sD))
        addr = (t % 6) * STG3 + (p % 24) * 1024
        k = addr // (2 * STG3)
        a(f'ds_read_b128 {vr(WF + 4 * (p % NF), 4)}, v{vLB + k} offset:{addr - k * 2 * STG3}', tag=('w', p))
    stamp(a, cfg, 10)
    poll(a, sFl, 16, 'p3')
    stamp(a, cfg, 11)

    def a_load(b):
        pre = f's_add_u32 s{sA}, s{sA}, 4096\n' if b and b % 8 == 0 else ''
        return (pre + f'buffer_load_dwordx4 {ar(4 * b, 4)}, v{vAo}, s[{R_WS}:{R_WS+3}], s{sA} offen offset:{(b % 8) * 512} {ld}', ('A', b))
    up = cfg.get('p3_up', 16)
    for b in range(up): a(*a_load(b))
    a('s_barrier')
    for p in range(NF - 1): w_read(p)
    for g in range(1, 8):
        for p in range(2):
            a(f'v_pk_add_f32 {vr(CSL + 2 * p, 2)}, {vr(CSL + 2 * p, 2)}, {vr(CSL + 4 * g + 2 * p, 2)}')
    a(f'v_add_u32 v{vT0}, {L_CS}, v{vL16}')
    a(f'ds_write_b128 v{vT0}, {vr(CSL, 4)}')
    rest = [a_load(b) for b in range(up, 40)]
    for t in range(B3_GAP, 6):
        k = max(0, 24 * t // NP1 - up - cfg.get('p3_lead', -8))
        done = 40 - up - len(rest)
        pend += rest[:max(0, k - done)]; rest = rest[max(0, k - done):]
        pend += [(x, ('S', t)) for x in b3_dma(t, sD)]
    pend += rest
    pend += [(f'buffer_load_dwordx2 {vr(ST + 2 * i, 2)}, v{vSo}, s[{R_WS}:{R_WS+3}], s{sSt} offen offset:{i * 256} {ld}', 'ST') for i in range(4)]
    bq = [(b4_load(n), 'B4') for n in range(B4_STATE['next'], B4_EARLY)]
    bl = [(n - B4_EARLY, b4_load(n), 'B4') for n in range(B4_EARLY, 60)]
    print(f'phase 3: {len(bq)} down-weight fragments to fetch', file=sys.stderr)

    def prep():
        o = [('vm', 'ST')]
        for i in range(1, 4):
            o.append(f'v_add_f32 v{ST}, v{ST}, v{ST + 2 * i}')
            o.append(f'v_add_f32 v{ST + 1}, v{ST + 1}, v{ST + 2 * i + 1}')
        for k in range(2): o.append(f'v_mov_b32 v{ST + 2 + k}, v{ST + k}')
        o.append(None); o.append(None)
        for k in range(2): o.append(f'v_permlane32_swap_b32 v{ST + k}, v{ST + 2 + k}')
        for k in range(2): o.append(f'v_add_f32 v{ST + k}, v{ST + k}, v{ST + 2 + k}')
        o.append(f'v_mul_f32 v{vNM}, {f32(-1.0 / 640)}, v{ST}')
        o.append(f'v_mul_f32 v{ST + 1}, {f32(1.0 / 640)}, v{ST + 1}')
        o.append(f'v_fma_f32 v{ST + 1}, -v{vNM}, v{vNM}, v{ST + 1}')
        o.append(f'v_max_f32 v{ST + 1}, 0, v{ST + 1}')
        o.append(f'v_add_f32 v{vC}, {f32(1e-5)}, v{ST + 1}')
        o.append(f'v_rsq_f32 v{ST}, v{vC}')
        o.append(None)
        o.append(f'v_mul_f32 v{vA1}, {f32(c0)}, v{ST}')
        o.append(f'v_mul_f32 v{ST + 1}, v{ST}, v{ST}')
        o.append(f'v_mul_f32 v{vA3}, {f32(0.044715)}, v{vA1}')
        o.append(f'v_mul_f32 v{vA3}, v{vA3}, v{ST + 1}')
        return o

    def cs_reads(s):
        return [(f'ds_read_b128 {vr(EC + 4 * q, 4)}, v{vCsr} offset:{(s * 32 + 8 * q) * 4}', ('cs', s)) for q in range(4)]

    def epilogue(s, nxt):
        A = ACC + 16 * (s % NACC)
        O = EO[s % 2]
        o = [('lg', ('cs', s))]
        for i in range(16): o.append(f'v_fmac_f32 v{A + i}, v{vNM}, v{EC + i}')
        if nxt is not None: o += cs_reads(nxt)
        gi = [A + (i >> 2) * 8 + (i & 3) for i in range(8)]
        ui = [g + 4 for g in gi]
        for i in range(8): o.append(f'v_mul_f32 v{EP + i}, v{gi[i]}, v{gi[i]}')
        for i in range(8): o.append(f'v_fma_f32 v{EP + i}, v{EP + i}, v{vA3}, v{vA1}')
        for i in range(8): o.append(f'v_mul_f32 v{EP + i}, v{EP + i}, v{gi[i]}')
        for i in range(8):
            o.append(f'v_exp_f32 v{EP + i}, v{EP + i}')
            o.append(f'v_mul_f32 v{ui[i]}, v{ui[i]}, v{gi[i]}')
        for i in range(8): o.append(f'v_fma_f32 v{EP + i}, v{EP + i}, v{vC}, v{vC}')
        for i in range(8): o.append(f'v_rcp_f32 v{EP + i}, v{EP + i}')
        for i in range(8): o.append(f'v_mul_f32 v{ui[i]}, v{ui[i]}, v{EP + i}')
        for p in range(4): o.append(f'v_cvt_pk_bf16_f32 v{O + p}, v{ui[2 * p]}, v{ui[2 * p + 1]}')
        o.append((f'buffer_store_dwordx4 {vr(O, 4)}, v{vHo}, s[{R_WS}:{R_WS+3}], s{sH} offen offset:{s * 512} {st}', ('H', s)))
        o.append(('done', s))
        return o

    finished = set()

    def run(x):
        if x is None: return
        if isinstance(x, tuple):
            if x[0] == 'vm': a.vm_wait(x[1])
            elif x[0] == 'lg': a.lg_wait(x[1])
            elif x[0] == 'done': finished.add(x[1])
            else: a(x[0], tag=x[1])
        else:
            a(x)

    def cost(x):
        if x is None: return 4
        if isinstance(x, tuple) and x[0] == 'done': return 0
        t = x[0] if isinstance(x, tuple) else x
        return 8 if t.startswith(('v_exp', 'v_rcp', 'v_rsq')) else 4

    work = []
    front = []

    def is_mem(x):
        t = x[0] if isinstance(x, tuple) else x
        return cfg.get('p3_front', 1) and isinstance(t, str) and t.startswith(('ds_', 'buffer_'))
    budget = cfg.get('p3_budget', 20)
    P1END = 40 * NP1
    b4_from = cfg.get('p3_b4', 60)
    def waits(p):
        if p < 240:
            a.vm_wait(('A', seq[p][1]))
            a.lg_wait(('w', p))
    waits(0)
    stamp(a, cfg, 20)
    for p, (s, b) in enumerate(seq):
        if p == P1END: stamp(a, cfg, 12)
        if p in (30, 60, 90): stamp(a, cfg, {30: 21, 60: 22, 90: 23}[p])
        if b == 0 and s >= NACC:
            late = 0
            while s - NACC not in finished:
                run(front.pop(0) if front else work.pop(0)); late += 1
            if late: print(f'phase 3: {late} epilogue items of sub-tile {s - NACC} were late', file=sys.stderr)
        c = vr(ACC + 16 * (s % NACC), 16)
        a(f'v_mfma_f32_32x32x16_bf16 {c}, {vr(WF + 4 * (p % NF), 4)}, {ar(4 * b, 4)}, {c if b else 0}')
        waits(p + 1)
        if p + NF - 1 < 240: w_read(p + NF - 1)
        for k, pp in enumerate(cfg.get('p3_pub', [204])):
            if p == pp:
                a.vm_wait(('H', 2 * k + 1))
                a('s_barrier')
                publish(a, WS_F3 + 0x1000 * k, S_MT3, S_NF, 16, f'p3{k}')
        if p == 236:
            a(f's_lshr_b32 s{S_F3}, s{S_MT2}, 1')
            a(f's_lshl_b32 s{S_F3}, s{S_F3}, 7')
            a(f's_add_u32 s{S_F3}, s{S_F3}, {WS_F3}')
            a(f'v_lshlrev_b32 v{vPoll + 6}, 3, v{vM}')
            flag_read(a, S_F3, 0, vPoll + 4, vPoll + 6, 'f3a')
        left = budget
        for x in front[:2]: run(x)
        del front[:2]
        if p % cfg.get('p3_pace', 2) == 0 or p < cfg.get('p3_burst', 0):
            if pend or refill or bq or bl: left -= cfg.get('p3_ldcost', 0)
            if pend: a(*pend.pop(0))
            elif refill: a(*refill.pop(0))
            elif bq and p >= b4_from: a(*bq.pop(0))
            elif bl and p > 200 + bl[0][0]: a(*bl.pop(0)[1:])
        if p == P1END - 30: work += prep() + cs_reads(0)
        if b == 39 and NP1 - 1 <= s < 5:
            if s == NP1 - 1:
                for s2 in range(NP1): work += epilogue(s2, s2 + 1)
            else:
                work += epilogue(s, s + 1)
        if cfg.get('x_noepi') and p >= P1END:
            finished.update(range(6)); work = []
        while work and left >= cost(work[0]):
            x = work[0]
            if is_mem(x) or (isinstance(x, tuple) and x[0] == 'done' and front):
                front.append(work.pop(0)); continue
            if isinstance(x, tuple) and x[0] == 'lg' and front: break
            left -= cost(x); run(work.pop(0))
    for x in front: run(x)
    if cfg.get('x_nob4'):
        for x in bq: a(*x)
        bq = []
    assert not pend and not bq and not refill and not bl, (len(pend), len(bq), len(bl))
    stamp(a, cfg, 14)
    print(f'phase 3: {len(work)} epilogue items left after the last MFMA', file=sys.stderr)
    for x in work: run(x)
    for x in epilogue(5, None): run(x)


def phase4(a, cfg):
    ld = LD['data']
    vOut = vPoll + 7
    vIdx = vPoll + 6
    vEx = LOC
    ACC = LOC + 4
    vLo = [vL16, vT2, vT3]
    NR = 9
    assert ACC % 2 == 0 and ACC + 80 + 48 <= B4V

    def areg(m, i):
        k = m % NR
        return ar(56 + (k * 4 + i) * 4, 4) if k < 6 else vr(ACC + 80 + ((k - 6) * 4 + i) * 4, 4)
    sT, sT2, sOut, sF3b = range(S_T0 + 4, S_T0 + 8)
    sA = S_T0 + 8
    if len(cfg.get('p3_pub', [204])) < 2:
        a.vm_wait(('H', 3))
        a('s_barrier')
        publish(a, WS_F3 + 0x1000, S_MT3, S_NF, 16, 'p31')
    a_bases(a, sA, 192, WS_AHH, sT, sT2)
    a(f'v_add_u32 v{vT2}, 4096, v{vL16}')
    a(f'v_add_u32 v{vT3}, 8192, v{vL16}')
    a(f's_add_u32 s{sF3b}, s{S_F3}, 0x1000')

    def a_load(m, i):
        kb = KB4[m]
        return (f'buffer_load_dwordx4 {areg(m, i)}, v{vLo[kb // 4]}, s[{R_WS}:{R_WS+3}], s{sA + i} offen offset:{(kb % 4) * 1024} {ld}', ('A', m))
    loads = [a_load(m, i) for m in range(12) for i in range(4)]
    flag_check(a, S_F3, 0, vPoll + 4, vIdx, 'f3a')
    stamp(a, cfg, 16)
    first = cfg.get('p4_first', 8)
    for x in loads[:first]: a(*x)
    row_addr(a, vOut, sOut, sT)
    exchange_addr(a, vEx, 0, sT)
    a.vm_wait(('H', 5))
    a('s_barrier')
    publish(a, WS_F3 + 0x2000, S_MT3, S_NF, 16, 'p3')
    stamp(a, cfg, 15)
    for x in loads[first:16]: a(*x)
    flag_read(a, sF3b, 0, vPoll + 4, vIdx, 'f3b')
    unpack(a, H, ACC)
    stamp(a, cfg, 17)
    q = []
    ckb = cfg.get('p4_f3b', 20)
    step = cfg.get('p4_step', 4)
    rd, ck = cfg.get('p4_f3c', [70, 100])

    def side(n):
        if n == ckb:
            flag_check(a, sF3b, 0, vPoll + 4, vIdx, 'f3b')
            q.extend(loads[16:32])
        elif n == rd:
            a(f's_add_u32 s{sF3b}, s{sF3b}, 0x1000')
            flag_read(a, sF3b, 0, vPoll + 4, vIdx, 'f3c')
        elif n == ck:
            flag_check(a, sF3b, 0, vPoll + 4, vIdx, 'f3c')
            q[:0] = loads[32:]
        elif q and n % step == 1 and q[0][1][1] - NR < n // 20: a(*q.pop(0))
    def at_block(m):
        stamp(a, cfg, {0: 27, 4: 28, 8: 38}.get(m, -1))
    ksplit_gemm(a, 12, cfg.get('p4_tail', 3), ACC, b4_reg, areg, vEx, side, at_block)
    assert not q
    stamp(a, cfg, 18)
    reduce_finish(a, ACC, B4V, vEx, st=lambda i: stamp(a, cfg, 34 + i))
    for i in range(10):
        a(f'v_cvt_pk_bf16_f32 v{H + i}, v{ACC + 2 * i}, v{ACC + 2 * i + 1}')
    a(f'buffer_store_dwordx4 {vr(H, 4)}, v{vOut}, s[{R_OUT}:{R_OUT+3}], s{sOut} offen')
    a(f'buffer_store_dwordx4 {vr(H + 4, 4)}, v{vOut}, s[{R_OUT}:{R_OUT+3}], s{sOut} offen offset:16')
    a(f'buffer_store_dwordx2 {vr(H + 8, 2)}, v{vOut}, s[{R_OUT}:{R_OUT+3}], s{sOut} offen offset:32')
    stamp(a, cfg, 37)


def build(cfg):
    POLL.update(cfg.get('poll', {}))
    LOCALX.update(cfg.get('x_local', []))
    LD.update(cfg.get('x_ld', {}))
    a = Asm()
    name = NAME + '_kernel'
    kernel_head(a, name, 'L_exit', cfg.get('stamp'))
    a(f'v_and_b32 v{vM}, 15, v0')
    a(f'v_lshrrev_b32 v{vQ}, 4, v0')
    a(f'v_lshlrev_b32 v{vL16}, 4, v0')
    if cfg.get('code_pf', 1):
        a('s_getpc_b64 s[60:61]')
        a('L_pc:')
        a(f's_lshr_b32 s62, s2, 3')
        a(f's_lshl_b32 s62, s62, 2')
        a(f's_add_u32 s62, s62, s{S_WAVE}')
        a(f's_lshl_b32 s62, s62, 9')
        a(f'v_lshl_add_u32 v{vT0}, v0, 3, s62')
        a(f'v_min_u32 v{vT0}, L_exit-L_pc, v{vT0}')
        a(f'v_mov_b32 v{vT2}, s61')
        a(f'v_add_co_u32 v{vT0}, vcc, s60, v{vT0}')
        a(f'v_addc_co_u32 v{vT1}, vcc, 0, v{vT2}, vcc')
        a(f'global_load_dword v{vPoll + 3}, v[{vT0}:{vT1}], off')
    phase1(a, cfg)
    phase3(a, cfg, phase2(a, cfg))
    phase4(a, cfg)
    stamp_flush(a, cfg)
    a('L_exit:')
    a('s_endpgm')
    head = open('cdna_kernels/' + NAME + '.s.ref').read().split('; Override')[0]
    out = head + f'; stamp_ids {json.dumps(cfg.get("stamp_ids", STAMP_IDS))}\n' * bool(cfg.get('stamp')) + f'; @launch grid=(256,1,1) block=(256,1,1) lds={LDS_BYTES}\n'
    out += '.amdgcn_target "amdgcn-amd-amdhsa--gfx950"\n.text\n' + a.text()
    out += '.section .rodata,"a"\n' + descriptor(name, 512, 256, 102)
    return out


if __name__ == '__main__':
    cfg = json.loads(sys.argv[2]) if len(sys.argv) > 2 else {}
    open(sys.argv[1], 'w').write(build(cfg))
```

```python
from dsl import *
import struct

S, D, DF = 2048, 640, 1536
X_BYTES = S * D * 2
WQKV_BYTES = D * 3 * D * 2
WO_BYTES = D * D * 2
WG_BYTES = D * DF * 2
WD_BYTES = DF * D * 2
OUT_BYTES = S * D * 2

WS_WGU = 0x000000
WS_WD = 0x3C0000
WS_CS = 0x5A0000
WS_AO = 0x600000
WS_AH = 0x880000
WS_HS = 0xB00000
WS_AHH = 0xC00000
WS_FLAGS = 0x1200000
WS_BYTES = 0x1300000

S_X, S_WQ, S_WO, S_G, S_U, S_DN, S_OUT, S_DBG, S_WS = 4, 6, 8, 12, 14, 16, 18, 20, 22
R_X, R_WQ, R_WO, R_G, R_U, R_DN, R_OUT, R_WS = 24, 28, 32, 36, 40, 44, 48, 52
S_WAVE = 56
S_MT = 57
S_NT = 58
S_T0 = 60


def f32(x):
    return '0x%08x' % struct.unpack('<I', struct.pack('<f', x))[0]


def srd(a, r, p, nbytes):
    a(f's_mov_b32 s{r}, s{p}')
    a(f's_and_b32 s{r+1}, s{p+1}, 0xffff')
    a(f's_mov_b32 s{r+2}, {nbytes}')
    a(f's_mov_b32 s{r+3}, 0x20000')


def kernel_head(a, name, end_label, stampit):
    a.raw(f'.globl {name}\n.p2align 8\n.type {name},@function\n{name}:')
    if stampit: stamp(a, {'stamp': stampit}, 0)
    a('s_load_dwordx16 s[4:19], s[0:1], 0')
    a('s_load_dwordx4 s[20:23], s[0:1], 64')
    a('s_cmp_ge_u32 s2, 256')
    a(f's_cbranch_scc1 {end_label}')
    a('v_lshrrev_b32 v1, 6, v0')
    a('v_and_b32 v0, 63, v0')
    a(f'v_readfirstlane_b32 s{S_WAVE}, v1')


SRD_TABLE = {'x': (R_X, S_X, X_BYTES), 'wq': (R_WQ, S_WQ, WQKV_BYTES), 'wo': (R_WO, S_WO, WO_BYTES),
             'g': (R_G, S_G, WG_BYTES), 'u': (R_U, S_U, WG_BYTES), 'dn': (R_DN, S_DN, WD_BYTES),
             'out': (R_OUT, S_OUT, OUT_BYTES), 'ws': (R_WS, S_WS, WS_BYTES)}


def kernel_srds(a, srds):
    a('s_waitcnt lgkmcnt(0)')
    for k in srds:
        srd(a, *SRD_TABLE[k])


def map_32x8(a, mode):
    t = S_T0
    a(f's_and_b32 s{t}, s2, 7')
    a(f's_lshr_b32 s{t+1}, s2, 3')
    if mode == '4x2':
        a(f's_lshr_b32 s{S_MT}, s{t}, 1')
        a(f's_lshl_b32 s{S_MT}, s{S_MT}, 3')
        a(f's_lshr_b32 s{t+2}, s{t+1}, 2')
        a(f's_add_u32 s{S_MT}, s{S_MT}, s{t+2}')
        a(f's_and_b32 s{S_NT}, s{t}, 1')
        a(f's_lshl_b32 s{S_NT}, s{S_NT}, 2')
        a(f's_and_b32 s{t+2}, s{t+1}, 3')
        a(f's_add_u32 s{S_NT}, s{S_NT}, s{t+2}')
    elif mode == '8x1':
        a(f's_lshl_b32 s{S_MT}, s{t}, 2')
        a(f's_lshr_b32 s{t+2}, s{t+1}, 3')
        a(f's_add_u32 s{S_MT}, s{S_MT}, s{t+2}')
        a(f's_and_b32 s{S_NT}, s{t+1}, 7')
    elif mode == '2x4':
        a(f's_lshr_b32 s{S_MT}, s{t}, 2')
        a(f's_lshl_b32 s{S_MT}, s{S_MT}, 4')
        a(f's_lshr_b32 s{t+2}, s{t+1}, 1')
        a(f's_add_u32 s{S_MT}, s{S_MT}, s{t+2}')
        a(f's_and_b32 s{S_NT}, s{t}, 3')
        a(f's_lshl_b32 s{S_NT}, s{S_NT}, 1')
        a(f's_and_b32 s{t+2}, s{t+1}, 1')
        a(f's_add_u32 s{S_NT}, s{S_NT}, s{t+2}')
    else:
        raise ValueError(mode)


def descriptor(name, nvgpr, accum, nsgpr=100):
    return (f'.p2align 6\n.amdhsa_kernel {name}\n  .amdhsa_next_free_vgpr {nvgpr}\n  .amdhsa_next_free_sgpr {nsgpr}\n'
            f'  .amdhsa_accum_offset {accum}\n  .amdhsa_group_segment_fixed_size 0\n  .amdhsa_kernarg_size 80\n'
            f'  .amdhsa_user_sgpr_count 2\n  .amdhsa_user_sgpr_kernarg_segment_ptr 1\n'
            f'  .amdhsa_system_sgpr_workgroup_id_x 1\n  .amdhsa_float_denorm_mode_32 3\n.end_amdhsa_kernel\n')


class Alloc:
    def __init__(self, start, limit=256):
        self.n = start; self.limit = limit
    def __call__(self, n=1, align=1):
        if n > 1 and align == 1: align = 2
        self.n = (self.n + align - 1) // align * align
        r = self.n; self.n += n
        assert self.n <= self.limit, f'out of registers: {self.n}'
        return r


WS_STAMP = 0x1280000
S_STAMP = 84
STAMP_IDS = [0, 1, 2, 3, 4, 5, 7, 8, 9, 11, 12, 14, 15, 17, 18, 19]


def stamp(a, cfg, idx):
    ids = cfg.get('stamp_ids', STAMP_IDS)
    if cfg.get('stamp') and idx in ids:
        op = 's_memtime' if cfg.get('stamp') == 'cyc' else 's_memrealtime'
        a(f'{op} s[100:101]')
        a('s_waitcnt lgkmcnt(0)')
        a(f's_mov_b32 s{S_STAMP + ids.index(idx)}, s100')


def stamp_flush(a, cfg):
    if not cfg.get('stamp'): return
    a('s_waitcnt vmcnt(0)')
    stamp(a, cfg, 19)
    a(f's_lshl_b32 s{S_T0}, s2, 2')
    a(f's_add_u32 s{S_T0}, s{S_T0}, s{S_WAVE}')
    a(f's_lshl_b32 s{S_T0}, s{S_T0}, 6')
    a(f's_add_u32 s{S_T0}, s{S_T0}, {WS_STAMP}')
    a('v_mov_b32 v1, 0')
    a('s_mov_b64 exec, 1')
    if cfg.get('stamp_dbg'):
        for i in range(14):
            a(f's_sub_u32 s{S_T0 + 1}, s{S_STAMP + i}, s4')
            a(f's_add_u32 s{S_T0 + 1}, s{S_T0 + 1}, 1000')
            a(f'v_mov_b32 v2, s{S_T0 + 1}')
            a(f'global_atomic_umax v1, v2, s[{S_DBG}:{S_DBG+1}] offset:{8 + 4 * i} sc1')
    for i in range(16):
        a(f'v_mov_b32 v2, s{S_STAMP + i}')
        a(f'buffer_store_dword v2, v1, s[{R_WS}:{R_WS+3}], s{S_T0} offen offset:{4 * i}')
```

```python
import sys, json, math
from common import *

NAME = 'sequential_preLN__sliding_local_dilated__glu_gated_geglu__prompt'

SLOT = 40960
WIMG = 10240
L_STG = 3 * SLOT
L_ONES = L_STG + 3 * 10240
L_SQ = L_ONES + 64
L_NONCE = L_SQ + 320
L_VS = 102400
P2_STG = 25600
STG3 = 24576
L_EX2 = 4 * STG3
L_CS = L_EX2 + 61440
LDS_BYTES = 163840

WS_F1, WS_F2, WS_F0, WS_F3 = WS_FLAGS, WS_FLAGS + 0x1000, WS_FLAGS + 0x2000, WS_FLAGS + 0x3000

vM, vQ, vL16, vT0, vT1, vT2, vT3 = 1, 2, 3, 4, 5, 6, 7
vPoll = 8
H = 16
LOC = 26
S_NONCE = 4
S_MT2, S_NT2, S_MT3, S_NF = 6, 7, 8, 9
R_A, R_B = 12, 16
NP1 = 3
B4V = 168
B4_EARLY = 24 + (256 - B4V) // 4
B3_GAP = 6
CSL = 224


def bs23(k):
    return (k & ~12) | ((k & 4) << 1) | ((k & 8) >> 1)


def order3():
    o = [(s, b) for b in range(40) for s in range(NP1)]
    o += [(s, b) for s in range(NP1, 6) for b in range(40)]
    return o


def weave(a, main, fill, lead=0, span=None):
    fill = list(fill)
    n = len(main)
    span = span or (n - lead)
    done = 0
    for i, m in enumerate(main):
        a(m)
        if i >= lead:
            want = min(len(fill), ((i - lead + 1) * len(fill) + span - 1) // span)
            while done < want:
                a(fill[done]); done += 1
    while done < len(fill):
        a(fill[done]); done += 1


class Rec:
    def __init__(self): self.items = []; self.cur = []
    def __call__(self, t, tag=None): self.cur.append(t)
    def cut(self):
        if self.cur: self.items.append('\n'.join(self.cur)); self.cur = []
    def each(self):
        self.items += self.cur; self.cur = []


def xcd_map(a, dM, dN, nM, nN, mode):
    mg, ng = (int(x) for x in mode.split('x'))
    lm, ln = nM // mg, nN // ng
    t = S_T0
    a(f's_and_b32 s{t}, s2, 7')
    a(f's_lshr_b32 s{t+1}, s2, 3')
    a(f's_lshr_b32 s{dM}, s{t}, {ng.bit_length() - 1}')
    a(f's_mul_i32 s{dM}, s{dM}, {lm}')
    a(f's_lshr_b32 s{t+2}, s{t+1}, {ln.bit_length() - 1}')
    a(f's_add_u32 s{dM}, s{dM}, s{t+2}')
    a(f's_and_b32 s{dN}, s{t}, {ng - 1}')
    a(f's_mul_i32 s{dN}, s{dN}, {ln}')
    a(f's_and_b32 s{t+2}, s{t+1}, {ln - 1}')
    a(f's_add_u32 s{dN}, s{dN}, s{t+2}')


def signal(a, base, sRow, sCol, ncol, tag):
    sT = S_T0
    a('s_waitcnt vmcnt(0) lgkmcnt(0)')
    a.vm_reset(); a.lg_reset()
    a('s_barrier')


LOCALX = set()
LD = {'data': 'sc1', 'flag': 'sc1'}


def publish(a, base, sRow, sCol, ncol, tag):
    fl = '' if tag[:2] in LOCALX else 'sc1'
    sT = S_T0
    a(f's_cmp_lg_u32 s{S_WAVE}, 0')
    a(f's_cbranch_scc1 L_pub_{tag}')
    a(f's_mul_i32 s{sT}, s{sRow}, {ncol}')
    a(f's_add_u32 s{sT}, s{sT}, s{sCol}')
    a(f's_lshl_b32 s{sT}, s{sT}, 3')
    a(f's_add_u32 s{sT}, s{sT}, {base}')
    a(f'v_mov_b32 v{vPoll}, s{S_NONCE}')
    a(f'v_mov_b32 v{vPoll + 1}, s{S_NONCE + 1}')
    a(f'v_mov_b32 v{vPoll + 2}, 0')
    a('s_mov_b64 exec, 1')
    a.raw(f'    buffer_store_dwordx2 {vr(vPoll, 2)}, v{vPoll + 2}, s[{R_WS}:{R_WS+3}], s{sT} offen {fl}')
    a('s_mov_b64 exec, -1')
    a(f'L_pub_{tag}:')


POLL = {'deep': 1, 'sleep': 0, 'one': 2}


def poll(a, sBase, n, tag):
    sC, sX = S_T0, S_T0 + 2
    one = POLL.get('one') and n <= 64
    if one:
        a(f's_cmp_lg_u32 s{S_WAVE}, {POLL["one"] - 1}')
        a(f's_cbranch_scc1 L_polled_{tag}')
    a(f's_mov_b32 s{sC}, 0')
    if POLL.get('pre') and n <= 64: a(f"s_sleep {POLL['pre']}")
    if n <= 64:
        a(f'v_and_b32 v{vT0}, {n - 1}, v0')
        a(f'v_lshlrev_b32 v{vT0}, 3, v{vT0}')
        ld = lambda k: f'buffer_load_dwordx2 {vr(vPoll + 2 * k, 2)}, v{vT0}, s[{R_WS}:{R_WS+3}], s{sBase} offen {LD["flag"]}'
        if POLL['deep'] == 2:
            a(ld(0))
            a('s_sleep 5')
        a(f'L_poll_{tag}:')
        for k in range(POLL['deep']):
            a(ld(1 - k if POLL['deep'] == 2 else 0))
            a(f"s_waitcnt vmcnt({POLL['deep'] - 1})")
            a(f'v_cmp_ne_u64 vcc, s[{S_NONCE}:{S_NONCE+1}], {vr(vPoll + 2 * k, 2)}')
            a('s_cmp_eq_u64 vcc, 0')
            a(f's_cbranch_scc1 L_polled_{tag}')
            if POLL['sleep']: a(f"s_sleep {POLL['sleep']}")
    else:
        a(f'L_poll_{tag}:')
        a(f'buffer_load_dwordx4 {vr(vPoll, 4)}, v{vL16}, s[{R_WS}:{R_WS+3}], s{sBase} offen sc1')
        a(f'buffer_load_dwordx4 {vr(vPoll + 4, 4)}, v{vL16}, s[{R_WS}:{R_WS+3}], s{sBase} offen offset:1024 sc1')
        a('s_waitcnt vmcnt(0)')
        a(f'v_cmp_ne_u64 vcc, s[{S_NONCE}:{S_NONCE+1}], {vr(vPoll, 2)}')
        for k in range(1, 4):
            a(f'v_cmp_ne_u64 s[{sX}:{sX+1}], s[{S_NONCE}:{S_NONCE+1}], {vr(vPoll + 2 * k, 2)}')
            a(f's_or_b64 vcc, vcc, s[{sX}:{sX+1}]')
        a('s_cmp_eq_u64 vcc, 0')
        a(f's_cbranch_scc1 L_polled_{tag}')
    a(f's_add_u32 s{sC}, s{sC}, 1')
    a(f's_cmp_lt_u32 s{sC}, 0x10000')
    a(f's_cbranch_scc1 L_poll_{tag}')
    a(f'L_polled_{tag}:')
    if one:
        a('s_waitcnt vmcnt(0)')
        a('s_barrier')
    a.vm_reset()


def phase1(a, cfg):
    st = 'sc1'
    V = Alloc(LOC)
    vXo0, vXo1, vXo2 = V(), V(), V()
    vXb0, vXb1, vWb, vWrB, vWrK, vHb0, vHb1, vHK, vOb0, vOb1 = [V() for _ in range(10)]
    vXa0, vXa1, vWa, vHa, vOa = [V() for _ in range(5)]
    vRa = V(2)
    vR, vR2 = V(5), V(5)
    vNon = V(4, 2)
    SQ = V(8, 4)
    ACC = V(80, 4)
    FX = [V(24, 4), V(24, 4)]
    FW = [V(16, 4), V(16, 4)]
    acc = lambda sub, T: ACC + (sub * 4 + T) * 4
    KF = [V(4, 2) for _ in range(5)]
    vWo = KF[0]
    vWr = KF[2]
    vTouch = V(4, 2)
    sM0x2 = 3
    sT, sT2, sI, sSlotR, sSlotW, sStage, sXoff, sWoff, sU, sM0x, sM0w = range(S_T0 + 3, S_T0 + 14)
    sMul, sMuls, sRb, sRs0, sRs1, sRoA, sRoB, sRstr, sWo, sWoM = range(S_T0 + 14, S_T0 + 24)
    sSc0, sOm, sOr = 59, 22, 23
    vB, vB0, vOm, vOr, vVw, vVw2 = H, H + 4, H + 6, H + 7, H + 8, H + 9
    vVr, vVr2 = vPoll + 6, vPoll + 7

    xcd_map(a, S_MT, S_NT, 32, 8, cfg.get('map1', '4x2'))
    a(f'v_and_b32 v{vT1}, 7, v0')
    a(f'v_xor_b32 v{vT0}, v{vQ}, v{vT1}')
    a(f'v_lshlrev_b32 v{vT0}, 4, v{vT0}')
    a(f'v_xor_b32 v{vT3}, 64, v{vT0}')
    a(f's_lshl_b32 s{sT}, s{S_MT}, 6')
    a(f's_lshl_b32 s{sT2}, s{S_WAVE}, 4')
    a(f's_add_u32 s{sT2}, s{sT}, s{sT2}')
    a(f's_sub_u32 s{sT2}, s{sT2}, 16')
    a(f'v_lshrrev_b32 v{vT1}, 3, v0')
    a(f'v_add_u32 v{vT2}, s{sT2}, v{vT1}')
    a(f'v_max_i32 v{vXo0}, 0, v{vT2}')
    a(f'v_add_u32 v{vT2}, 8, v{vT2}')
    a(f'v_max_i32 v{vXo1}, 0, v{vT2}')
    a(f's_movk_i32 s{sI}, 1280')
    a(f'v_mad_u32_u24 v{vXo0}, v{vXo0}, s{sI}, v{vT0}')
    a(f'v_mad_u32_u24 v{vXo1}, v{vXo1}, s{sI}, v{vT3}')
    a(f's_lshl_b32 s{sT2}, s{S_WAVE}, 3')
    a(f's_add_u32 s{sT}, s{sT}, s{sT2}')
    a(f's_add_u32 s{sT}, s{sT}, 48')
    a(f'v_add_u32 v{vT2}, s{sT}, v{vT1}')
    a(f's_and_b32 s{sT}, s{S_WAVE}, 1')
    a(f's_lshl_b32 s{sT}, s{sT}, 6')
    a(f'v_xor_b32 v{vT0}, s{sT}, v{vT0}')
    a(f'v_mad_u32_u24 v{vXo2}, v{vT2}, s{sI}, v{vT0}')
    a(f's_cmp_lt_u32 s{S_WAVE}, 2')
    a(f's_cselect_b32 s{sT}, 0, 0x7ff00000')
    a(f'v_or_b32 v{vXo2}, s{sT}, v{vXo2}')
    a(f'v_cmp_le_u32 vcc, 30, v0')
    a(f'v_subrev_u32 v{vT1}, 30, v0')
    a(f'v_mov_b32 v{vT3}, 3840')
    a(f'v_cndmask_b32 v{vT1}, v0, v{vT1}, vcc')
    a(f'v_cndmask_b32 v{vT2}, 0, v{vT3}, vcc')
    a(f'v_mul_u32_u24 v{vT3}, 26, v{vT1}')
    a(f'v_lshrrev_b32 v{vT3}, 8, v{vT3}')
    a(f's_movk_i32 s{sT}, 1120')
    a(f'v_mad_u32_u24 v{vT2}, v{vT3}, s{sT}, v{vT2}')
    a(f'v_lshl_add_u32 v{vT2}, v{vT1}, 4, v{vT2}')
    a(f's_mul_i32 s{sT}, s{S_NT}, 160')
    a(f's_mul_i32 s{sT2}, s{S_WAVE}, {16 * 3840}')
    a(f's_add_u32 s{sT}, s{sT}, s{sT2}')
    a(f'v_add_u32 v{vWo}, s{sT}, v{vT2}')
    for j in range(1, 8):
        a(f'v_add_u32 v{vWo + j}, {bs23(2 * j) * 3840 - 960 * (j & 1)}, v{vWo}')
    if cfg.get('x_wlin'):
        a(f's_mul_i32 s{sT}, s{S_NT}, 307200')
        a(f's_mul_i32 s{sT2}, s{S_WAVE}, {8 * 960}')
        a(f's_add_u32 s{sT}, s{sT}, s{sT2}')
        for j in range(8):
            a(f'v_add_u32 v{vWo + j}, s{sT}, v{vL16}')
            a(f'v_add_u32 v{vWo + j}, {960 * (j & ~1)}, v{vWo + j}')
    rot = cfg.get('rot', 'all')
    if rot == 'all':
        a(f's_lshr_b32 s{sT}, s2, 3')
        a(f's_mul_i32 s{sStage}, s{sT}, 3')
        a(f's_mul_i32 s{sT}, s{sStage}, 6554')
        a(f's_lshr_b32 s{sT}, s{sT}, 16')
        a(f's_mul_i32 s{sT}, s{sT}, 10')
        a(f's_sub_u32 s{sStage}, s{sStage}, s{sT}')
    else:
        groups, step = rot
        a(f's_add_u32 s{sStage}, s{S_MT}, s{S_NT}')
        a(f's_and_b32 s{sStage}, s{sStage}, {groups - 1}')
        a(f's_mul_i32 s{sStage}, s{sStage}, {step}')
    a(f's_lshl_b32 s{sM0x}, s{S_WAVE}, 11')
    a(f's_mul_i32 s{sM0w}, s{S_WAVE}, {8 * 960}')
    a(f's_add_u32 s{sM0w}, s{sM0w}, {WIMG}')
    kernel_srds(a, ['x', 'wq'])
    stamp(a, cfg, 1)
    uid = [0]

    sDa, sDb = 0, 1

    def w_pair(k):
        return (f's_add_u32 m0, s{sDa}, {1920 * k}',
                f's_mov_b32 exec_hi, 0x0fffffff\n'
                f'buffer_load_dwordx4 v{vWo + 2 * k}, s[{R_WQ}:{R_WQ+3}], s{sWoff} offen lds\n'
                f'buffer_load_dwordx4 v{vWo + 2 * k + 1}, s[{R_WQ}:{R_WQ+3}], s{sWoff} offen offset:960 lds\n'
                f's_mov_b32 exec_hi, -1')

    def advance(e):
        e(f's_lshl_b32 s{sXoff}, s{sStage}, 7')
        e(f's_mul_i32 s{sWoff}, s{sStage}, {30720 if cfg.get("x_wlin") else 64 * 3840}')
        e(f's_add_u32 s{sDa}, s{sM0w}, s{sSlotW}')
        e(f's_add_u32 s{sDb}, s{sM0x}, s{sSlotW}')
        e(f's_add_u32 s{sStage}, s{sStage}, 1')
        e(f's_cmp_eq_u32 s{sStage}, 10')
        e(f's_cselect_b32 s{sStage}, 0, s{sStage}')

    def first_half():
        return [(f's_mov_b32 m0, s{sDb}', f'buffer_load_dwordx4 v{vXo0}, s[{R_X}:{R_X+3}], s{sXoff} offen lds'),
                (f's_add_u32 m0, s{sDb}, 1024', f'buffer_load_dwordx4 v{vXo1}, s[{R_X}:{R_X+3}], s{sXoff} offen lds'),
                (f's_add_u32 m0, s{sM0x2}, s{sSlotW}', f'buffer_load_dwordx4 v{vXo2}, s[{R_X}:{R_X+3}], s{sXoff} offen lds'),
                w_pair(0)]

    def second_half():
        return [w_pair(k) for k in range(1, 4)]

    def flat(items):
        return [x if isinstance(x, str) else x[0] + '\n' + x[1] for x in items]

    def stage_items(slot, second=True):
        e = Rec(); e(f's_mov_b32 s{sSlotW}, {slot}'); advance(e); e.cut()
        return e.items + flat(first_half() + (second_half() if second else []))

    def wo_dma(u):
        return [(f's_add_u32 m0, s{sWoM}, {(20 * u + i) * 1024}' + (f'\ns_add_u32 s{sXoff}, s{sWo}, {u * 4 * 32 * 1280}' if i == 0 else ''),
                 f'buffer_load_dwordx4 v{vR + i}, s[{R_WO}:{R_WO+3}], s{sXoff} offen lds') for i in range(5)]

    def rp_dma():
        o = []
        for i in range(5):
            for side, (R, so) in enumerate(((R_A, sRoA), (R_B, sRoB))):
                o.append((f's_add_u32 m0, s{sRb}, {side * 5120 + i * 1024}',
                          f'buffer_load_dwordx4 v{vR2 + i}, s[{R}:{R+3}], s{so} offen lds\n'
                          f's_add_u32 s{so}, s{so}, s{sRstr}'))
        return o

    a(f's_lshl_b32 s{sM0x2}, s{S_WAVE}, 10')
    a(f's_add_u32 s{sM0x2}, s{sM0x2}, 8192')
    a(f's_cmp_lt_u32 s{S_WAVE}, 2')
    a(f's_cselect_b32 s{sM0x2}, s{sM0x2}, {LDS_BYTES}')
    for x in stage_items(2 * SLOT): a(x)

    r = Rec()
    r(f'v_lshrrev_b32 v{vT0}, 1, v{vM}')
    r(f'v_xor_b32 v{vT0}, v{vT0}, v{vQ}')
    r(f'v_lshlrev_b32 v{vT0}, 4, v{vT0}')
    r(f'v_lshl_add_u32 v{vXb0}, v{vM}, 7, v{vT0}')
    r(f'v_xor_b32 v{vXb1}, 64, v{vXb0}')
    r(f's_lshl_b32 s{sT}, s{S_WAVE}, 11')
    r(f's_add_u32 s{sT}, s{sT}, 2048')
    r(f'v_add_u32 v{vOb0}, s{sT}, v{vXb0}')
    r(f'v_add_u32 v{vOb1}, s{sT}, v{vXb1}')
    r(f'v_cmp_eq_u32 vcc, 0, v{vM}')
    r(f'v_mov_b32 v{vT0}, {L_ONES}')
    r(f'v_cndmask_b32 v{vHb0}, v{vXb0}, v{vT0}, vcc')
    r(f'v_cndmask_b32 v{vHb1}, v{vXb1}, v{vT0}, vcc')
    r(f'v_cndmask_b32 v{vHK}, 1, 0, vcc')
    r(f'v_lshrrev_b32 v{vT0}, 1, v{vQ}')
    r(f'v_lshlrev_b32 v{vT0}, 4, v{vT0}')
    r(f'v_and_b32 v{vT1}, 1, v{vQ}')
    r(f'v_lshl_add_u32 v{vT0}, v{vT1}, 2, v{vT0}')
    r(f'v_lshrrev_b32 v{vT1}, 2, v{vM}')
    r(f'v_add_u32 v{vT0}, v{vT0}, v{vT1}')
    r(f'v_mul_u32_u24 v{vT0}, 480, v{vT0}')
    r(f's_mul_i32 s{sT}, s{S_WAVE}, 40')
    r(f's_add_u32 s{sT}, s{sT}, {WIMG}')
    r(f'v_add_u32 v{vT0}, s{sT}, v{vT0}')
    r(f'v_and_b32 v{vT1}, 3, v0')
    r(f'v_lshl_add_u32 v{vWb}, v{vT1}, 3, v{vT0}')
    r(f'v_add_u32 v{vWrB}, {160 + 32}, v{vT0}')
    r(f'v_add_u32 v{vT2}, 32, v{vT0}')
    r(f'v_cmp_eq_u32 vcc, 1, v{vT1}')
    r(f'v_cndmask_b32 v{vWrB}, v{vWrB}, v{vT2}, vcc')
    r(f'v_add_u32 v{vT2}, {320 + 32}, v{vT0}')
    r(f'v_cmp_eq_u32 vcc, 2, v{vT1}')
    r(f'v_cndmask_b32 v{vWrB}, v{vWrB}, v{vT2}, vcc')
    r(f'v_mov_b32 v{vT2}, {L_ONES}')
    r(f'v_cmp_eq_u32 vcc, 3, v{vT1}')
    r(f'v_cndmask_b32 v{vWrB}, v{vWrB}, v{vT2}, vcc')
    r(f'v_cndmask_b32 v{vWrK}, 1, 0, vcc')
    for k in range(4):
        r(f's_mov_b32 s{sT}, {(k >> 1) * 15360 + (k & 1) * 3840}')
        r(f'v_mad_u32_u24 v{vWr + k}, v{vWrK}, s{sT}, v{vWrB}')
    r(f'v_mov_b32 v{vT0}, 0x3f803f80')
    r(f'v_lshlrev_b32 v{vT1}, 2, v{vM}')
    r(f'v_add_u32 v{vT1}, {L_ONES}, v{vT1}')
    r(f'ds_write_b32 v{vT1}, v{vT0}')
    for k in ('wo', 'g', 'u', 'dn', 'out', 'ws'):
        srd(r, *SRD_TABLE[k])
    if cfg.get('tlb', 0):
        r(f'v_lshlrev_b32 v{vT3}, 19, v0')
        for R in (R_WS, R_G, R_U, R_DN, R_OUT):
            r(f'buffer_load_dword v{vPoll + 3}, v{vT3}, s[{R}:{R+3}], 0 offen')
    r.each()
    r(f'v_mov_b32 v{vNon + 2}, 0')
    r(f's_or_b32 s{sT}, s2, s{S_WAVE}')
    r(f's_cmp_lg_u32 s{sT}, 0')
    r('s_cbranch_scc1 L_p1_notag')
    r(f's_memrealtime s[{sMul}:{sMul+1}]')
    r('s_waitcnt lgkmcnt(0)')
    r(f's_or_b32 s{sMul}, s{sMul}, 1')
    r(f'v_mov_b32 v{vNon}, s{sMul}')
    r(f'v_mov_b32 v{vNon + 1}, s{sMul+1}')
    r('s_mov_b64 exec, 1')
    r(f'global_store_dwordx2 v{vNon + 2}, {vr(vNon, 2)}, s[{S_DBG}:{S_DBG+1}] sc1')
    r('s_mov_b64 exec, -1')
    r('L_p1_notag:')
    r.cut()
    xcd_map(r, S_MT2, S_NT2, 32, 8, cfg.get('map2', '4x2'))
    xcd_map(r, S_MT3, S_NF, 16, 16, cfg.get('map3', '4x2'))
    r(f's_movk_i32 s{sT}, 6554')
    r(f's_movk_i32 s{sT2}, 1120')
    for i in range(5):
        r(f'v_add_u32 v{vT0}, {64 * i}, v0')
        r(f'v_mul_u32_u24 v{vT1}, s{sT}, v{vT0}')
        r(f'v_lshrrev_b32 v{vT1}, 16, v{vT1}')
        r(f'v_lshlrev_b32 v{vT0}, 4, v{vT0}')
        r(f'v_mad_u32_u24 v{vR + i}, v{vT1}, s{sT2}, v{vT0}')
    r(f's_mul_i32 s{sWo}, s{S_WAVE}, {32 * 1280}')
    r(f's_mul_i32 s{sT}, s{S_NT2}, 160')
    r(f's_add_u32 s{sWo}, s{sWo}, s{sT}')
    r(f's_mul_i32 s{sWoM}, s{S_WAVE}, 5120')
    r(f's_lshl_b32 s{sU}, s2, 1')
    r(f's_add_u32 s{sU}, s{sU}, s{S_WAVE}')
    r(f's_add_u32 s{sT}, s2, 512')
    r.each()
    r(f's_cmp_lt_u32 s{S_WAVE}, 2')
    r(f's_cselect_b32 s{sU}, s{sU}, s{sT}')
    r(f's_cmp_eq_u32 s{S_WAVE}, 3')
    r(f's_cselect_b32 s{sU}, 1000, s{sU}')
    r(f's_mul_i32 s{sRb}, s{S_WAVE}, 10240')
    r(f's_add_u32 s{sRb}, s{sRb}, {L_STG}')
    r(f's_cmp_ge_u32 s{sU}, 384')
    r('s_cbranch_scc1 L_p1_udown')
    r(f's_mul_i32 s{sRs0}, s{sU}, 1366')
    r(f's_lshr_b32 s{sRs0}, s{sRs0}, 16')
    r(f's_mul_i32 s{sT}, s{sRs0}, 48')
    r(f's_sub_u32 s{sRs1}, s{sU}, s{sT}')
    r(f'v_lshrrev_b32 v{vT0}, 2, v0')
    r(f'v_mul_u32_u24 v{vT0}, 3072, v{vT0}')
    r(f'v_and_b32 v{vT1}, 3, v0')
    for i in range(5): r(f'v_lshl_add_u32 v{vR2 + i}, v{vT1}, 4, v{vT0}')
    r(f's_mul_i32 s{sRoA}, s{sRs0}, {80 * 3072}')
    r(f's_lshl_b32 s{sT2}, s{sRs1}, 6')
    r(f's_add_u32 s{sRoA}, s{sRoA}, s{sT2}')
    r(f's_mov_b32 s{sRoB}, s{sRoA}')
    r(f's_mov_b32 s{sRstr}, {16 * 3072}')
    r(f's_mov_b64 s[{R_A}:{R_A+1}], s[{R_G}:{R_G+1}]')
    r(f's_mov_b64 s[{R_B}:{R_B+1}], s[{R_U}:{R_U+1}]')
    r('s_branch L_p1_uset')
    r('L_p1_udown:')
    r(f's_sub_u32 s{sT}, s{sU}, 384')
    r(f's_lshr_b32 s{sRs0}, s{sT}, 3')
    r(f's_and_b32 s{sRs1}, s{sT}, 7')
    for i in range(5): r(f'v_mov_b32 v{vR2 + i}, v{vR + i}')
    r(f's_mul_i32 s{sRoA}, s{sRs0}, {64 * 1280}')
    r(f's_mul_i32 s{sT2}, s{sRs1}, 160')
    r(f's_add_u32 s{sRoA}, s{sRoA}, s{sT2}')
    r(f's_add_u32 s{sRoB}, s{sRoA}, {32 * 1280}')
    r(f's_mov_b32 s{sRstr}, 0')
    r(f's_mov_b64 s[{R_A}:{R_A+1}], s[{R_DN}:{R_DN+1}]')
    r(f's_mov_b64 s[{R_B}:{R_B+1}], s[{R_DN}:{R_DN+1}]')
    r('L_p1_uset:')
    r(f's_cmp_lt_u32 s{sU}, 576')
    r(f's_cselect_b32 s{R_A+2}, {WG_BYTES}, 0')
    r(f's_cselect_b32 s{R_B+2}, {WG_BYTES}, 0')
    r(f's_cselect_b32 s{sRb}, s{sRb}, 0x30000')
    r(f's_mov_b32 s{R_A+3}, 0x20000')
    r(f's_mov_b32 s{R_B+3}, 0x20000')
    r.cut()
    weave(a, r.items, stage_items(0) + stage_items(SLOT, False))
    r = Rec()
    for i in range(88): r(f'v_mov_b32 v{SQ + i}, 0')
    LOG2E = math.log2(math.e)
    csc = (20 ** -0.5) * LOG2E
    r(f'v_lshlrev_b32 v{vT0}, 2, v{vQ}')
    r(f'v_sub_u32 v{vT0}, v{vM}, v{vT0}')
    r(f'v_and_b32 v{vT0}, -2, v{vT0}')
    r(f'v_mov_b32 v{vT2}, {f32(-1e30)}')
    r.each()
    r(f's_cmp_eq_u32 s{S_MT}, 0')
    r(f's_cselect_b32 s{sT}, {f32(-1e9 * LOG2E)}, 0')
    r(f's_cselect_b32 s{sSc0}, 0, {f32(csc)}')
    r.cut()
    r(f'v_mov_b32 v{vT3}, s{sT}')
    for blk in range(2):
        for c in range(2):
            r(f'v_add_u32 v{vT1}, {16 - 16 * blk - 2 * c}, v{vT0}')
            r(f'v_cmp_gt_u32 vcc, 16, v{vT1}')
            r(f'v_cndmask_b32 v{vB + 2 * blk + c}, v{vT2}, 0, vcc')
            if blk == 0: r(f'v_cndmask_b32 v{vB0 + c}, v{vT2}, v{vT3}, vcc')
    r(f'v_and_b32 v{vT0}, 1, v{vQ}')
    r(f'v_mul_u32_u24 v{vT0}, {80 * 256}, v{vT0}')
    r(f'v_lshrrev_b32 v{vT1}, 1, v{vQ}')
    r(f'v_lshl_add_u32 v{vT0}, v{vT1}, 8, v{vT0}')
    r(f'v_lshl_add_u32 v{vOm}, v{vM}, 4, v{vT0}')
    r(f'v_mul_u32_u24 v{vT1}, {80 * 256}, v{vQ}')
    r(f'v_lshl_add_u32 v{vOr}, v{vM}, 4, v{vT1}')
    r(f's_mul_i32 s{sT}, s{S_WAVE}, 3328')
    r(f's_add_u32 s{sT}, s{sT}, {L_VS}')
    r(f'v_mul_u32_u24 v{vT0}, 40, v{vM}')
    r(f'v_add_u32 v{vVw2}, s{sT}, v{vT0}')
    r(f'v_lshl_add_u32 v{vVw}, v{vQ}, 3, v{vVw2}')
    r(f'v_lshrrev_b32 v{vT1}, 2, v0')
    r(f'v_mul_u32_u24 v{vT1}, 40, v{vT1}')
    r(f'v_add_u32 v{vVr2}, s{sT}, v{vT1}')
    r(f'v_and_b32 v{vT1}, 3, v0')
    r(f'v_lshl_add_u32 v{vVr}, v{vT1}, 3, v{vVr2}')
    r(f's_lshr_b32 s{sT}, s{S_NT}, 1')
    r(f's_mul_i32 s{sT}, s{sT}, 20')
    r(f's_mul_i32 s{sT2}, s{S_MT}, {4 * 80}')
    r(f's_add_u32 s{sT}, s{sT}, s{sT2}')
    r(f's_and_b32 s{sT2}, s{S_NT}, 1')
    r(f's_lshl_b32 s{sOm}, s{sT2}, 3')
    r(f's_add_u32 s{sOm}, s{sOm}, s{sT}')
    r(f's_lshl_b32 s{sOr}, s{S_WAVE}, 1')
    r(f's_add_u32 s{sOm}, s{sOm}, s{sOr}')
    r(f's_lshl_b32 s{sOm}, s{sOm}, 8')
    r(f's_add_u32 s{sOm}, s{sOm}, {WS_AO}')
    r(f's_lshl_b32 s{sT2}, s{sT2}, 1')
    r(f's_add_u32 s{sT}, s{sT}, s{sT2}')
    r(f's_lshr_b32 s{sT2}, s{S_WAVE}, 1')
    r(f's_add_u32 s{sT}, s{sT}, s{sT2}')
    r(f's_lshl_b32 s{sT}, s{sT}, 8')
    r(f's_and_b32 s{sT2}, s{S_WAVE}, 1')
    r(f's_lshl_b32 s{sT2}, s{sT2}, 3')
    r(f's_add_u32 s{sT}, s{sT}, s{sT2}')
    r(f's_add_u32 s{sOr}, s{sT}, {WS_AO + 16 * 256}')
    r(f's_mov_b32 s{sI}, 0')
    r(f's_mov_b32 s{sSlotR}, {2 * SLOT}')
    r(f's_lshl_b32 s{sT}, s2, 2')
    r(f's_add_u32 s{sT}, s{sT}, s{S_WAVE}')
    r(f's_lshl_b32 s{sT}, s{sT}, 10')
    r(f'buffer_load_dwordx4 {vr(vTouch, 4)}, v{vL16}, s[{R_WO}:{R_WO+3}], s{sT} offen')
    r.each()
    for x in r.items: a(x)

    def reads(h):
        xa = vXa0 if h == 0 else vXa1
        pre = []
        if h == 0:
            pre += [f'v_add_u32 v{vWa}, s{sSlotR}, v{vWb}', f'v_add_u32 v{vXa0}, s{sSlotR}, v{vXb0}',
                    f'v_add_u32 v{vXa1}, s{sSlotR}, v{vXb1}']
        o = []
        for T in range(3):
            for hh in range(2):
                o.append([f'ds_read_b64_tr_b16 {vr(FW[h] + 4 * T + 2 * hh, 2)}, v{vWa} offset:{h * 15360 + hh * 3840 + T * 160}', None])
        o[0][1] = f'v_mad_u32_u24 v{vRa}, v{vWrK}, s{sSlotR}, v{vWr + 2 * h}'
        o[1][1] = f'v_mad_u32_u24 v{vRa + 1}, v{vWrK}, s{sSlotR}, v{vWr + 2 * h + 1}'
        o[3][1] = f'v_mad_u32_u24 v{vHa}, v{vHK}, s{sSlotR}, v{vHb0 if h == 0 else vHb1}'
        o[5][1] = f'v_add_u32 v{vOa}, s{sSlotR}, v{vOb0 if h == 0 else vOb1}'
        for hh in range(2):
            o.append([f'ds_read_b64_tr_b16 {vr(FW[h] + 12 + 2 * hh, 2)}, v{vRa + hh}', None])
        o.append([f'ds_read_b128 {vr(FX[h], 4)}, v{vHa}', None])
        for sub in range(1, 5):
            o.append([f'ds_read_b128 {vr(FX[h] + 4 * sub, 4)}, v{xa} offset:{sub * 2048}', None])
        o.append([f'ds_read_b128 {vr(FX[h] + 20, 4)}, v{vOa}', None])
        return pre, o

    def mfmas(h):
        o = []
        for sub in range(5):
            for T in range(4):
                c = vr(acc(sub, T), 4)
                o.append(f'v_mfma_f32_16x16x32_bf16 {c}, {vr(FW[h] + 4 * T, 4)}, {vr(FX[h] + 4 * sub, 4)}, {c}')
        o.append(f'v_mfma_f32_16x16x32_bf16 {vr(SQ, 4)}, {vr(FX[h], 4)}, {vr(FX[h], 4)}, {vr(SQ, 4)}')
        o.append(f'v_mfma_f32_16x16x32_bf16 {vr(SQ + 4, 4)}, {vr(FX[h] + 20, 4)}, {vr(FX[h] + 20, 4)}, {vr(SQ + 4, 4)}')
        return o

    def half(h, rd, dma, tail=()):
        rd = [list(x) for x in rd]
        dma = [(None, x) if isinstance(x, str) else x for x in dma]
        gaps = []
        free = [k for k, x in enumerate(rd) if x[1] is None]
        step = max(1, len(free) // max(len(dma), 1))
        carriers = free[::step][:len(dma)] if cfg.get('p1_spread', 1) else free[:len(dma)]
        for k, x in enumerate(rd):
            if k in carriers:
                d = dma.pop(0)
                gaps.append(x[0] + ('\n' + d[0] if d[0] else ''))
                gaps.append(d[1])
            else:
                gaps.append(x[0] + ('\n' + x[1] if x[1] else ''))
        gaps += flat([d if d[0] else d[1] for d in dma])
        mm = mfmas(h)
        tail = list(tail)
        while tail and len(gaps) < len(mm):
            gaps.append('\n'.join(tail[:3])); tail = tail[3:]
        if tail: gaps[-1] += '\n' + '\n'.join(tail)
        if len(gaps) <= len(mm):
            for k, m in enumerate(mm):
                a(m)
                if k < len(gaps): a(gaps[k])
        else:
            weave(a, mm, gaps)

    def iteration(dma0, dma1, nwait, last=False, mid=None, fetch=True):
        a('s_waitcnt lgkmcnt(0)')
        if last:
            half(0, reads(1)[1], dma0)
            a('s_waitcnt lgkmcnt(0)')
            a('s_barrier')
            half(1, [], dma1)
            return
        e = Rec()
        e(f's_mov_b32 s{sSlotW}, s{sSlotR}')
        e(f's_add_u32 s{sSlotR}, s{sSlotR}, {SLOT}')
        e(f's_cmp_eq_u32 s{sSlotR}, {3 * SLOT}')
        e(f's_cselect_b32 s{sSlotR}, 0, s{sSlotR}')
        if fetch: advance(e)
        pre, rd = reads(0)
        half(0, reads(1)[1], dma0, e.cur + pre)
        a(f's_waitcnt vmcnt({nwait}) lgkmcnt(0)')
        a('s_barrier')
        if mid: mid()
        half(1, rd, dma1)

    def repack():
        RF = KF[0]
        vCa, vCb, vOne = vR2, vR2 + 1, vR2 + 2
        a(f's_mov_b64 s[{R_A}:{R_A+1}], s[{R_WS}:{R_WS+1}]')
        a(f's_mov_b64 s[{R_B}:{R_B+1}], s[{R_WS}:{R_WS+1}]')
        a(f's_mov_b32 s{R_B+2}, 0')
        a(f's_cmp_lt_u32 s{sU}, 576')
        a(f's_cselect_b32 s{R_A+2}, {WS_BYTES}, 0')
        a(f's_cselect_b32 s{sRb}, s{sRb}, 0')
        a(f's_cmp_ge_u32 s{sU}, 384')
        a('s_cbranch_scc1 L_p1_rd')
        a(f'v_lshrrev_b32 v{vT0}, 1, v0')
        a(f'v_and_b32 v{vT0}, 1, v{vT0}')
        a(f'v_mul_u32_u24 v{vT0}, 5120, v{vT0}')
        a(f'v_and_b32 v{vT1}, 1, v0')
        a(f'v_lshl_add_u32 v{vT0}, v{vT1}, 3, v{vT0}')
        a(f'v_and_b32 v{vT1}, 1, v{vQ}')
        a(f'v_lshl_add_u32 v{vT0}, v{vT1}, 4, v{vT0}')
        a(f'v_lshrrev_b32 v{vT1}, 2, v{vM}')
        a(f'v_lshl_add_u32 v{vT0}, v{vT1}, 6, v{vT0}')
        a(f'v_add_u32 v{vT0}, s{sRb}, v{vT0}')
        a(f'v_lshrrev_b32 v{vT1}, 5, v0')
        a(f'v_lshl_add_u32 v{vT2}, v{vT1}, 9, v{vT0}')
        a(f'v_mul_u32_u24 v{vT1}, {40 * 64}, v{vT1}')
        a(f'v_add_u32 v{vT0}, v{vT1}, v{vT0}')
        a(f'v_mov_b32 v{vCa}, 0')
        a(f'v_mov_b32 v{vCb}, 0')
        a(f'v_mov_b32 v{vOne}, 0x3f803f80')
        sNf, sSp, sB0, sB1 = sRoA, sRoB, sRstr, sMuls
        for sl in range(2):
            a.lg_reset()
            for bp in range(5):
                for h in range(2):
                    if bp < 4:
                        a(f'ds_read_b64_tr_b16 {vr(RF + 4 * bp + 2 * h, 2)}, v{vT2} offset:{bp * 1280 + h * 256 + 32 * sl}', tag=bp)
                    else:
                        a(f'ds_read_b64_tr_b16 {vr(RF + 4 * bp + 2 * h, 2)}, v{vT0} offset:{16 * 64 + h * 1280 + 32 * sl}', tag=bp)
            if sl == 0:
                a(f's_mul_i32 s{sNf}, s{sRs1}, 21846')
                a(f's_lshr_b32 s{sNf}, s{sNf}, 16')
                a(f's_mul_i32 s{sT2}, s{sNf}, 3')
                a(f's_sub_u32 s{sSp}, s{sRs1}, s{sT2}')
                a(f's_lshl_b32 s{sSp}, s{sSp}, 1')
                a(f's_mul_i32 s{sNf}, s{sNf}, 240')
                a(f's_lshr_b32 s{sB0}, s{sRs0}, 1')
                a(f's_mul_i32 s{sB0}, s{sB0}, 10')
                a(f's_and_b32 s{sT}, s{sRs0}, 1')
                a(f's_add_u32 s{sB1}, s{sB0}, s{sT}')
                a(f's_add_u32 s{sB1}, s{sB1}, 8')
                a(f's_lshl_b32 s{sT}, s{sT}, 2')
                a(f's_add_u32 s{sB0}, s{sB0}, s{sT}')
            else:
                a(f's_add_u32 s{sSp}, s{sSp}, 1')
            a(f's_mul_i32 s{sT}, s{sSp}, 40')
            a(f's_cmp_lt_u32 s{sSp}, {NP1}')
            a(f's_cselect_b32 s{sT}, s{sSp}, s{sT}')
            a(f's_cselect_b32 s{sMul}, {NP1}, 1')
            a(f's_add_u32 s{sT}, s{sT}, s{sNf}')
            a(f's_mul_i32 s{sT2}, s{sB0}, s{sMul}')
            a(f's_add_u32 s{sT2}, s{sT2}, s{sT}')
            a(f's_lshl_b32 s{sT2}, s{sT2}, 10')
            a(f's_mul_i32 s{sDa}, s{sB1}, s{sMul}')
            a(f's_add_u32 s{sT}, s{sDa}, s{sT}')
            a(f's_lshl_b32 s{sT}, s{sT}, 10')
            a(f's_lshl_b32 s{sMul}, s{sMul}, 10')
            for bp in range(5):
                a.lg_wait(bp)
                a(f'buffer_store_dwordx4 {vr(RF + 4 * bp, 4)}, v{vL16}, s[{R_A}:{R_A+3}], s{sT2 if bp < 4 else sT} offen {st}')
                if bp < 3: a(f's_add_u32 s{sT2}, s{sT2}, s{sMul}')
            for n in range(20): a(f'v_dot2c_f32_bf16 v{vCb if sl else vCa}, v{RF + n}, v{vOne}')
        a(f's_mul_i32 s{sT}, s{sRs0}, {3072 * 4}')
        a(f's_lshl_b32 s{sT2}, s{sRs1}, 8')
        a(f's_add_u32 s{sT}, s{sT}, s{sT2}')
        a(f's_add_u32 s{sT}, s{sT}, {WS_CS}')
        a(f'v_permlane32_swap_b32 v{vCa}, v{vCb}')
        a(f'v_lshlrev_b32 v{vT0}, 2, v0')
        a(f'v_add_f32 v{vCa}, v{vCa}, v{vCb}')
        a(f'buffer_store_dword v{vCa}, v{vT0}, s[{R_A}:{R_A+3}], s{sT} offen {st}')
        a('s_branch L_p1_rend')
        a('L_p1_rd:')
        a(f'v_lshrrev_b32 v{vT0}, 1, v{vQ}')
        a(f'v_lshlrev_b32 v{vT0}, 4, v{vT0}')
        a(f'v_and_b32 v{vT1}, 1, v{vQ}')
        a(f'v_lshl_add_u32 v{vT0}, v{vT1}, 2, v{vT0}')
        a(f'v_lshrrev_b32 v{vT1}, 2, v{vM}')
        a(f'v_add_u32 v{vT0}, v{vT0}, v{vT1}')
        a(f'v_mul_u32_u24 v{vT0}, 160, v{vT0}')
        a(f'v_and_b32 v{vT1}, 3, v0')
        a(f'v_mul_u32_u24 v{vT1}, 40, v{vT1}')
        a(f'v_add3_u32 v{vT0}, v{vT0}, v{vT1}, s{sRb}')
        a(f's_mul_i32 s{sT}, s{sRs1}, 240')
        a(f's_mul_i32 s{sT2}, s{sRs0}, 10')
        a(f's_add_u32 s{sT}, s{sT}, s{sT2}')
        a(f's_lshl_b32 s{sT}, s{sT}, 10')
        a(f's_add_u32 s{sT}, s{sT}, {WS_WD}')
        for kb in range(2):
            a.lg_reset()
            for j in range(5):
                for h in range(2):
                    a(f'ds_read_b64_tr_b16 {vr(RF + 4 * j + 2 * h, 2)}, v{vT0} offset:{kb * 5120 + h * 1280 + 8 * j}', tag=j)
            for j in range(5):
                n = kb * 5 + j
                a.lg_wait(j)
                if n % 4 == 0 and n: a(f's_add_u32 s{sT}, s{sT}, 4096')
                a(f'buffer_store_dwordx4 {vr(RF + 4 * j, 4)}, v{vL16}, s[{R_A}:{R_A+3}], s{sT} offen offset:{(n % 4) * 1024} {st}')
        a(f'buffer_store_dword v{vT0}, v{vL16}, s[{R_B}:{R_B+3}], 0 offen')
        a('L_p1_rend:')

    def pub0():
        a(f's_mov_b32 s{sT}, 0')
        publish(a, WS_F0, sT, 2, 0, 'p0')

    tag_load = f'global_load_dwordx2 {vr(vNon, 2)}, v{vNon + 2}, s[{S_DBG}:{S_DBG+1}] sc1'

    def share_tag():
        a(f's_mov_b32 s{sT}, 0')
        a('L_p1_tag:')
        a(f'v_readfirstlane_b32 s{S_NONCE}, v{vNon}')
        a(f'v_readfirstlane_b32 s{S_NONCE + 1}, v{vNon + 1}')
        a(f's_add_u32 s{sT}, s{sT}, 1')
        a(f's_cmp_lg_u32 s{S_NONCE}, 0')
        a('s_cbranch_scc1 L_p1_tagged')
        a(tag_load)
        a('s_waitcnt vmcnt(0)')
        a(f's_cmp_lt_u32 s{sT}, 0x20000')
        a('s_cbranch_scc1 L_p1_tag')
        a('L_p1_tagged:')

    wo = [x for u in range(5) for x in wo_dma(u)]
    a(tag_load)
    a('s_waitcnt vmcnt(18) lgkmcnt(0)')
    stamp(a, cfg, 2)
    pre, rd = reads(0)
    for x in pre: a(x)
    a('s_barrier')
    for x, y in rd:
        a(x)
        if y: a(y)
    late = True
    rp_tail = rp_dma()
    if cfg.get('x_noR'): rp_tail = [x[0] + '\n' + x[1].replace(f's[{R_A}:{R_A+3}]', f's[{R_X}:{R_X+3}]').replace(f's[{R_B}:{R_B+3}]', f's[{R_X}:{R_X+3}]') for x in rp_tail]
    a('L_p1_loop:')
    iteration(second_half(), first_half(), 11)
    a(f's_add_u32 s{sI}, s{sI}, 1')
    a(f's_cmp_lt_u32 s{sI}, 7')
    a('s_cbranch_scc1 L_p1_loop')
    a.check_backedge('L_p1_loop')
    stamp(a, cfg, 25)
    n0, n1, n2, n3, n4 = cfg.get('p1_wo', [2, 4, 4, 5, 5])
    assert n0 + n1 <= 10 and n0 + n1 + n2 + n3 <= 20
    c = [0, n0, n0 + n1, n0 + n1 + n2, n0 + n1 + n2 + n3, n0 + n1 + n2 + n3 + n4]
    iteration(second_half(), rp_tail + wo[c[0]:c[1]], 11, mid=share_tag, fetch=False)
    stamp(a, cfg, 26)
    iteration(wo[c[1]:c[2]], wo[c[2]:c[3]], 10 + c[2], fetch=False)
    iteration(wo[c[3]:c[4]], wo[c[4]:c[5]], 0, last=True)
    wo = flat(wo[c[5]:])
    stamp(a, cfg, 3)

    E = Alloc(FX[0], FW[1] + 16)
    vCS = E(16, 2)
    vRS, vNM, vRstd, vRstdR, vTm, vSS = E(5), E(6, 2), E(6, 2), E(6, 2), E(5), E(5)
    VP = [E(2, 2) for _ in range(5)]
    QF = [None] + [E(4, 2) for _ in range(4)]
    sQ3 = sMul
    a.lg_reset()
    a(f'v_lshlrev_b32 v{vT0}, 2, v{vM}')
    a(f'v_add_u32 v{vT1}, {48 * 4}, v{vT0}')
    a(f'v_and_b32 v{vT2}, 3, v0')
    for sub in range(5):
        a(f'ds_bpermute_b32 v{vRS + sub}, v{vT1}, v{acc(sub, 3)}', tag='rs')
    for r_ in range(1, 4):
        a(f'v_cmp_eq_u32 vcc, {r_}, v{vT2}')
        a(f'v_cndmask_b32 v{SQ}, v{SQ}, v{SQ + r_}, vcc')
        a(f'v_cndmask_b32 v{SQ + 4}, v{SQ + 4}, v{SQ + 4 + r_}, vcc')
    a(f's_lshl_b32 s{sT}, s{S_WAVE}, 6')
    a(f'v_add_u32 v{vT0}, {L_SQ}, v{vT0}')
    a(f'v_add_u32 v{vT2}, s{sT}, v{vT0}')
    a('s_mov_b32 exec_lo, 0x00f0000f')
    a('s_mov_b32 exec_hi, 0xf0000f00')
    a(f'ds_write_b32 v{vT0}, v{SQ}', tag='sq')
    a(f'ds_write_b32 v{vT2}, v{SQ + 4} offset:64', tag='sq')
    a('s_mov_b64 exec, -1')
    for T in range(4):
        for r_ in range(4):
            a(f'v_mov_b32_dpp v{vCS + 4 * T + r_}, v{acc(0, T) + r_} row_newbcast:0 row_mask:0xf bank_mask:0xf')
    a(f's_mov_b32 s{sT}, {f32(-1.0 / 640)}')
    a(f's_mov_b32 s{sT2}, {f32(1.0 / 640)}')
    a(f's_mov_b32 s{sQ3}, 0')
    a(f's_mov_b32 s{sQ3+1}, 0xffff0000')
    if late:
        a(f's_waitcnt vmcnt({c[5]})')
        keep = list(a.lg)
        repack()
        a.lg = keep
        a(f'v_lshlrev_b32 v{vT0}, 2, v{vM}')
        a(f'v_add_u32 v{vT0}, {L_SQ}, v{vT0}')
        a(f's_mov_b32 s{sT}, {f32(-1.0 / 640)}')
        a(f's_mov_b32 s{sT2}, {f32(1.0 / 640)}')
        a(f's_mov_b32 s{sQ3}, 0')
        a(f's_mov_b32 s{sQ3+1}, 0xffff0000')
        a('s_waitcnt lgkmcnt(0)')
        a.lg_reset()
        nlater = len(wo)
    a.lg_wait('sq')
    a('s_barrier')
    stamp(a, cfg, 40)
    for sub in range(5):
        a(f'ds_read_b32 v{vSS + sub}, v{vT0} offset:{64 * sub}', tag='ss')
    for sub in range(5): a(f'v_mul_f32 v{vNM + sub}, s{sT}, v{vRS + sub}')
    for sub in range(5): a(f'v_mul_f32 v{vTm + sub}, v{vNM + sub}, v{vNM + sub}')

    def bc(reg):
        return vr(reg & ~1, 2), reg & 1

    r = Rec()
    for sub, T in [(sub, T) for T in (2, 3, 1, 0) for sub in range(5) if (sub, T) != (0, 0)]:
        nm, nh = bc(vNM + sub)
        for p in range(2):
            d = vr(acc(sub, T) + 2 * p, 2)
            r(f'v_pk_fma_f32 {d}, {vr(vCS + 4 * T + 2 * p, 2)}, {nm}, {d} op_sel:[0,{nh},0] op_sel_hi:[1,{nh},1]')
    r.each()
    weave(a, r.items, wo[:5]); wo = wo[5:]
    a.lg_wait('ss')
    for sub in range(5): a(f'v_fma_f32 v{vTm + sub}, v{vSS + sub}, s{sT2}, -v{vTm + sub}')
    for sub in range(5): a(f'v_max_f32 v{vTm + sub}, 0, v{vTm + sub}')
    for sub in range(5): a(f'v_add_f32 v{vTm + sub}, {f32(1e-5)}, v{vTm + sub}')
    for sub in range(5): a(f'v_rsq_f32 v{vRstd + sub}, v{vTm + sub}')
    for sub in range(5): a(f'v_cndmask_b32 v{vRstdR + sub}, v{vRstd + sub}, 0, s[{sQ3}:{sQ3+1}]')

    def finish(sub, T):
        rs_, rh = bc((vRstdR if T == 3 else vRstd) + sub)
        for p in range(2):
            d = vr(acc(sub, T) + 2 * p, 2)
            a(f'v_pk_mul_f32 {d}, {d}, {rs_} op_sel:[0,{rh}] op_sel_hi:[1,{rh}]')
        dst = {0: QF[sub], 1: KF[sub], 2: VP[sub], 3: KF[sub] + 2}[T]
        for p in range(2):
            a(f'v_cvt_pk_bf16_f32 v{dst + p}, v{acc(sub, T) + 2 * p}, v{acc(sub, T) + 2 * p + 1}')
    stamp(a, cfg, 41)
    for sub in range(5):
        finish(sub, 2); finish(sub, 3)
        a(f'ds_write_b64 v{vVw}, {vr(VP[sub], 2)} offset:{sub * 640}', tag='vw')
    a('s_mov_b32 exec_lo, 0')
    a('s_mov_b32 exec_hi, 0xffff')
    for sub in range(5):
        a(f'ds_write_b64 v{vVw2}, {vr(KF[sub] + 2, 2)} offset:{sub * 640 + 32}', tag='vw')
    a('s_mov_b64 exec, -1')
    for sub in range(5):
        finish(sub, 1)
        if sub:
            finish(sub, 0)
            for p in range(2): a(f'v_mov_b32 v{QF[sub] + 2 + p}, 0')
        if wo: a(wo.pop(0))
    for x in wo: a(x)
    for sub in range(1, 5):
        for p in range(2): a(f'v_permlane16_swap_b32 v{KF[sub] + 2 + p}, v{QF[sub] + 2 + p}')
    A2 = Alloc(ACC, ACC + 80)
    VTM, VTR = A2(10, 2), A2(10, 2)
    SS_ = [None] + [A2(8, 4) for _ in range(4)]
    vMx, vSm, vTx, vRe, vRo = A2(4), A2(4), A2(4), A2(4), A2(4)
    a.lg_wait('vw')
    for sub in range(5):
        a(f'ds_read_b64_tr_b16 {vr(VTM + 2 * sub, 2)}, v{vVr} offset:{sub * 640}', tag='vt')
        a(f'ds_read_b64_tr_b16 {vr(VTR + 2 * sub, 2)}, v{vVr2} offset:{sub * 640 + 32}', tag='vt')
    for b in range(1, 5):
        a(f'v_mfma_f32_16x16x32_bf16 {vr(SS_[b], 4)}, {vr(KF[b - 1], 4)}, {vr(QF[b], 4)}, 0')
        a(f'v_mfma_f32_16x16x32_bf16 {vr(SS_[b] + 4, 4)}, {vr(KF[b], 4)}, {vr(QF[b], 4)}, 0')
    stamp(a, cfg, 42)
    sOdd = sMul
    a(f's_mov_b32 s{sOdd}, 0xaaaaaaaa')
    a(f's_mov_b32 s{sOdd+1}, 0xaaaaaaaa')
    a(f's_mov_b32 s{sT2}, {f32(csc)}')
    B4 = range(1, 5)
    for b in B4:
        for c in range(4):
            a(f'v_cndmask_b32 v{SS_[b] + c}, v{SS_[b] + 2 * c}, v{SS_[b] + 2 * c + 1}, s[{sOdd}:{sOdd+1}]')
    for b in B4:
        for c in range(4):
            if b == 1 and c < 2:
                a(f'v_fma_f32 v{SS_[b] + c}, v{SS_[b] + c}, s{sSc0}, v{vB0 + c}')
            else:
                a(f'v_fma_f32 v{SS_[b] + c}, v{SS_[b] + c}, s{sT2}, v{vB + c}')
    for b in B4: a(f'v_max3_f32 v{vMx + b - 1}, v{SS_[b]}, v{SS_[b] + 1}, v{SS_[b] + 2}')
    for b in B4: a(f'v_max_f32 v{vMx + b - 1}, v{vMx + b - 1}, v{SS_[b] + 3}')
    for sw in ('v_permlane16_swap_b32', 'v_permlane32_swap_b32'):
        for b in range(4): a(f'v_mov_b32 v{vTx + b}, v{vMx + b}')
        for b in range(4): a(f'{sw} v{vMx + b}, v{vTx + b}')
        for b in range(4): a(f'v_max_f32 v{vMx + b}, v{vMx + b}, v{vTx + b}')
    for b in B4:
        for c in range(4): a(f'v_sub_f32 v{SS_[b] + c}, v{SS_[b] + c}, v{vMx + b - 1}')
    for b in B4:
        for c in range(4): a(f'v_exp_f32 v{SS_[b] + c}, v{SS_[b] + c}')
    for b in B4: a(f'v_add_f32 v{vSm + b - 1}, v{SS_[b]}, v{SS_[b] + 1}')
    for c in range(2, 4):
        for b in B4: a(f'v_add_f32 v{vSm + b - 1}, v{vSm + b - 1}, v{SS_[b] + c}')
    for sw in ('v_permlane16_swap_b32', 'v_permlane32_swap_b32'):
        for b in range(4): a(f'v_mov_b32 v{vTx + b}, v{vSm + b}')
        for b in range(4): a(f'{sw} v{vSm + b}, v{vTx + b}')
        for b in range(4): a(f'v_add_f32 v{vSm + b}, v{vSm + b}, v{vTx + b}')
    for b in range(4): a(f'v_rcp_f32 v{vSm + b}, v{vSm + b}')
    for b in range(4): a(f'v_cndmask_b32 v{vRe + b}, v{vSm + b}, 0, s[{sOdd}:{sOdd+1}]')
    for b in range(4): a(f'v_cndmask_b32 v{vRo + b}, 0, v{vSm + b}, s[{sOdd}:{sOdd+1}]')
    for b in B4:
        for c in range(4): a(f'v_mul_f32 v{SS_[b] + 4 + c}, v{SS_[b] + c}, v{vRo + b - 1}')
        for c in range(4): a(f'v_mul_f32 v{SS_[b] + c}, v{SS_[b] + c}, v{vRe + b - 1}')
    for b in B4:
        for c in range(4): a(f'v_cvt_pk_bf16_f32 v{QF[b] + c}, v{SS_[b] + c}, v{SS_[b] + 4 + c}')
    stamp(a, cfg, 43)
    if late:
        a(f's_waitcnt vmcnt({nlater})')
        a('s_barrier')
        pub0()
    a.lg_wait('vt')
    for b in B4:
        a(f'v_mfma_f32_16x16x32_bf16 {vr(SS_[b], 4)}, {vr(VTM + 2 * (b - 1), 4)}, {vr(QF[b], 4)}, 0')
    for b in B4:
        a(f'v_mfma_f32_16x16x32_bf16 {vr(SS_[b] + 4, 4)}, {vr(VTR + 2 * (b - 1), 4)}, {vr(QF[b], 4)}, 0')
    OM = [KF[0], KF[1]]
    ORr = [None] + [VP[b] for b in B4]
    a(f's_add_u32 s{sT}, s{sOm}, {2 * 80 * 256}')
    for pr in range(2):
        for k in range(2):
            b = 1 + 2 * pr + k
            for p in range(2):
                a(f'v_cvt_pk_bf16_f32 v{OM[pr] + 2 * k + p}, v{SS_[b] + 2 * p}, v{SS_[b] + 2 * p + 1}')
    for b in B4:
        for p in range(2):
            a(f'v_cvt_pk_bf16_f32 v{ORr[b] + p}, v{SS_[b] + 4 + 2 * p}, v{SS_[b] + 4 + 2 * p + 1}')
    for pr in range(2):
        for p in range(2): a(f'v_permlane16_swap_b32 v{OM[pr] + p}, v{OM[pr] + 2 + p}')
    if 'p1' in LOCALX: st = ''
    a(f'buffer_store_dwordx4 {vr(OM[0], 4)}, v{vOm}, s[{R_WS}:{R_WS+3}], s{sOm} offen {st}')
    a(f'buffer_store_dwordx4 {vr(OM[1], 4)}, v{vOm}, s[{R_WS}:{R_WS+3}], s{sT} offen {st}')
    for b in range(2, 5):
        a(f'v_cmp_eq_u32 vcc, {b - 1}, v{vQ}')
        for p in range(2): a(f'v_cndmask_b32 v{ORr[1] + p}, v{ORr[1] + p}, v{ORr[b] + p}, vcc')
    a(f'buffer_store_dwordx2 {vr(ORr[1], 2)}, v{vOr}, s[{R_WS}:{R_WS+3}], s{sOr} offen {st}')
    stamp(a, cfg, 4)


def exchange_addr(a, vEx, ex_base, sT):
    for i in range(4):
        a(f's_add_u32 s{sT}, s{S_WAVE}, {i}')
        a(f's_and_b32 s{sT}, s{sT}, 3')
        a(f's_mul_i32 s{sT}, s{sT}, 15360')
        a(f's_add_u32 s{sT}, s{sT}, {ex_base + max(i - 1, 0) * 5120}')
        a(f'v_add_u32 v{vEx + i}, s{sT}, v{vL16}')


def ksplit_gemm(a, nkb, tail, ACC, breg, areg, vEx, side, at_block=lambda kb: None):
    seq = [(kb, j, i) for kb in range(nkb - tail) for j in range(5) for i in range(4)]
    seq += [(kb, j, i) for i in (1, 2, 3, 0) for kb in range(nkb - tail, nkb) for j in range(5)]
    a.lg_reset()
    seen = set()
    out = []
    for n, (kb, j, i) in enumerate(seq):
        if kb not in seen:
            seen.add(kb); a.vm_wait(('A', kb)); at_block(kb)
        c = vr(ACC + (i * 5 + j) * 4, 4)
        a(f'v_mfma_f32_16x16x32_bf16 {c}, {breg(kb * 5 + j)}, {areg(kb, i)}, {c if kb or i == 0 else 0}')
        if kb == nkb - 1 and i:
            out.append((n + 8, f'ds_write_b128 v{vEx + i}, {c} offset:{j * 1024}'))
        if out and out[0][0] <= n and n % 2 == 0: a(out.pop(0)[1])
        else: side(n)
    for _, x in out: a(x)


def reduce_finish(a, ACC, TMP, vEx, fill=(), st=lambda i: None):
    a.lg_wait_all()
    st(0)
    a('s_barrier')
    st(1)
    for n in range(15):
        a(f'ds_read_b128 {vr(TMP + 4 * n, 4)}, v{vEx} offset:{n * 1024}', tag=n)
    for x in fill: a(x)
    for n in range(15):
        a.lg_wait(n)
        for k in range(4):
            d = ACC + (n % 5) * 4 + k
            a(f'v_add_f32 v{d}, v{d}, v{TMP + 4 * n + k}')
    st(2)


def unpack(a, RES, U):
    for i in range(10):
        a(f'v_lshlrev_b32 v{U + 2 * i}, 16, v{RES + i}')
        a(f'v_and_b32 v{U + 2 * i + 1}, 0xffff0000, v{RES + i}')


def row_addr(a, vD, sD, sT):
    a(f's_lshl_b32 s{sD}, s{S_MT2}, 2')
    a(f's_add_u32 s{sD}, s{sD}, s{S_WAVE}')
    a(f's_mul_i32 s{sD}, s{sD}, {16 * 1280}')
    a(f's_mul_i32 s{sT}, s{S_NT2}, 160')
    a(f's_add_u32 s{sD}, s{sD}, s{sT}')
    a(f'v_mul_u32_u24 v{vD}, 1280, v{vM}')
    a(f's_movk_i32 s{sT}, 40')
    a(f'v_mad_u32_u24 v{vD}, v{vQ}, s{sT}, v{vD}')


def a_bases(a, sA, nch, base, sT, sT2):
    for i in range(4):
        a(f's_add_u32 s{sT}, s{S_WAVE}, {i}')
        a(f's_and_b32 s{sT}, s{sT}, 3')
        a(f's_lshl_b32 s{sT2}, s{S_MT2}, 2')
        a(f's_add_u32 s{sT}, s{sT}, s{sT2}')
        a(f's_mul_i32 s{sT}, s{sT}, {nch}')
        a(f's_mul_i32 s{sT2}, s{S_WAVE}, {nch // 4}')
        a(f's_add_u32 s{sT}, s{sT}, s{sT2}')
        a(f's_lshl_b32 s{sT}, s{sT}, 8')
        a(f's_add_u32 s{sA + i}, s{sT}, {base}')


S_B3SRC, S_B3M0, S_B4 = 10, 11, 3


def b3_dma(t, tmp):
    slot = (t % 6) * STG3
    o = []
    for i in range(6):
        pre = ''
        if i % 4 == 0:
            pre = f's_add_u32 m0, s{S_B3M0}, {slot + i * 1024}\ns_add_u32 s{tmp}, s{S_B3SRC}, {t * STG3 + i * 1024}\n'
        o.append(pre + f'buffer_load_dwordx4 v{vL16}, s[{R_WS}:{R_WS+3}], s{tmp} offen offset:{(i % 4) * 1024} sc1 lds')
    return o


def b4_reg(n):
    if n < 19: return ar(180 + 4 * n, 4)
    if n < 30: return vr(180 + 4 * (n - 19), 4)
    if n < 35: return ar(160 + 4 * (n - 30), 4)
    if n < 38: return vr(B4V + 4 * (n - 35), 4)
    if n < B4_EARLY: return vr(CSL + 4 * (n - 38), 4)
    return ar(4 * (n - B4_EARLY), 4)


B4_STATE = {'next': 0}


KB4 = [0, 3, 6, 9, 1, 4, 7, 10, 2, 5, 8, 11]
S_B4T = 59
S_F3 = 22


def b4_load(n):
    src = (KB4[n // 5] * 5 + n % 5) * 1024
    return (f's_add_u32 s{S_B4T}, s{S_B4}, {src}\n'
            f'buffer_load_dwordx4 {b4_reg(n)}, v{vL16}, s[{R_WS}:{R_WS+3}], s{S_B4T} offen sc1')


def flag_read(a, sBase, off, reg, vIdx, tag):
    a(f'buffer_load_dwordx2 {vr(reg, 2)}, v{vIdx}, s[{R_WS}:{R_WS+3}], s{sBase} offen offset:{off} {LD["flag"]}', tag=tag)


def flag_check(a, sBase, off, reg, vIdx, tag):
    sC = S_T0
    a.vm_wait(tag)
    a(f's_mov_b32 s{sC}, 0')
    a(f'L_chk_{tag}:')
    a(f'v_cmp_ne_u64 vcc, s[{S_NONCE}:{S_NONCE+1}], {vr(reg, 2)}')
    a('s_cmp_eq_u64 vcc, 0')
    a(f's_cbranch_scc1 L_ok_{tag}')
    a.raw(f'    buffer_load_dwordx2 {vr(reg, 2)}, v{vIdx}, s[{R_WS}:{R_WS+3}], s{sBase} offen offset:{off} {LD["flag"]}')
    a('s_waitcnt vmcnt(0)')
    a(f's_add_u32 s{sC}, s{sC}, 1')
    a(f's_cmp_lt_u32 s{sC}, 0x10000')
    a(f's_cbranch_scc1 L_chk_{tag}')
    a(f'L_ok_{tag}:')


def phase2(a, cfg):
    st = ld = 'sc1'
    if 'p2' in LOCALX: st = ''
    V = Alloc(LOC)
    vL16b, vBm, vBr, vXr, vMain, vRem = [V() for _ in range(6)]
    vSt, vTs = V(2, 2), V(2, 2)
    vEx = V(4)
    ACC = V(80, 4)
    TMP = V(60, 4)
    RES = TMP
    assert V.n <= CSL
    AF = 100
    sT, sT2, sStg, sMain, sRem, sXr, sFl, sD, sCs, sF0 = range(S_T0 + 4, S_T0 + 14)
    sA = S_T0 + 14
    row_addr(a, vXr, sXr, sT)
    a(f'buffer_load_dwordx4 {vr(RES, 4)}, v{vXr}, s[{R_X}:{R_X+3}], s{sXr} offen')
    a(f'buffer_load_dwordx4 {vr(RES + 4, 4)}, v{vXr}, s[{R_X}:{R_X+3}], s{sXr} offen offset:16')
    a(f'buffer_load_dwordx2 {vr(RES + 8, 2)}, v{vXr}, s[{R_X}:{R_X+3}], s{sXr} offen offset:32')
    a(f's_mul_i32 s{sStg}, s{S_WAVE}, {P2_STG}')
    a(f'v_lshrrev_b32 v{vT0}, 1, v{vQ}')
    a(f'v_mul_u32_u24 v{vT0}, 20, v{vT0}')
    a(f'v_and_b32 v{vT1}, 1, v{vQ}')
    a(f'v_lshl_add_u32 v{vT0}, v{vT1}, 3, v{vT0}')
    a(f'v_lshrrev_b32 v{vT1}, 2, v{vM}')
    a(f'v_add_u32 v{vT0}, v{vT0}, v{vT1}')
    a(f'v_mul_u32_u24 v{vT0}, 160, v{vT0}')
    a(f'v_and_b32 v{vT2}, 3, v0')
    a(f'v_mul_u32_u24 v{vT2}, 40, v{vT2}')
    a(f'v_add3_u32 v{vBm}, v{vT0}, v{vT2}, s{sStg}')
    a(f'v_mul_u32_u24 v{vT0}, 40, v{vQ}')
    a(f'v_add_u32 v{vT0}, v{vT0}, v{vT1}')
    a(f'v_mul_u32_u24 v{vT0}, 160, v{vT0}')
    a(f'v_add3_u32 v{vBr}, v{vT0}, v{vT2}, s{sStg}')
    a(f'v_add_u32 v{vL16b}, 4096, v{vL16}')
    a_bases(a, sA, 80, WS_AO, sT, sT2)
    a(f's_lshl_b32 s{sMain}, s{S_MT2}, 2')
    a(f's_add_u32 s{sMain}, s{sMain}, s{S_WAVE}')
    a(f's_mul_i32 s{sMain}, s{sMain}, 80')
    a(f's_lshr_b32 s{sT}, s{S_NT2}, 1')
    a(f's_mul_i32 s{sT}, s{sT}, 20')
    a(f's_add_u32 s{sMain}, s{sMain}, s{sT}')
    a(f's_and_b32 s{sT}, s{S_NT2}, 1')
    a(f's_lshl_b32 s{sRem}, s{sT}, 1')
    a(f's_add_u32 s{sRem}, s{sRem}, s{sMain}')
    a(f's_lshl_b32 s{sRem}, s{sRem}, 8')
    a(f's_add_u32 s{sRem}, s{sRem}, {WS_AH + 16 * 256}')
    a(f's_lshl_b32 s{sT}, s{sT}, 3')
    a(f's_add_u32 s{sMain}, s{sMain}, s{sT}')
    a(f's_lshl_b32 s{sMain}, s{sMain}, 8')
    a(f's_add_u32 s{sMain}, s{sMain}, {WS_AH}')
    a(f'v_lshlrev_b32 v{vMain}, 4, v{vM}')
    a(f'v_lshrrev_b32 v{vT0}, 1, v{vQ}')
    a(f'v_lshl_add_u32 v{vRem}, v{vT0}, 8, v{vMain}')
    a(f'v_and_b32 v{vT0}, 1, v{vQ}')
    a(f'v_lshl_add_u32 v{vRem}, v{vT0}, 3, v{vRem}')
    a(f'v_lshl_add_u32 v{vMain}, v{vQ}, 9, v{vMain}')
    a(f's_lshl_b32 s{sXr}, s{S_MT2}, 1')
    a(f's_lshr_b32 s{sT2}, s{S_WAVE}, 1')
    a(f's_add_u32 s{sXr}, s{sXr}, s{sT2}')
    a(f's_lshl_b32 s{sXr}, s{sXr}, 3')
    a(f's_add_u32 s{sXr}, s{sXr}, s{S_NT2}')
    a(f's_lshl_b32 s{sXr}, s{sXr}, 8')
    a(f's_and_b32 s{sT2}, s{S_WAVE}, 1')
    a(f's_lshl_b32 s{sT2}, s{sT2}, 7')
    a(f's_add_u32 s{sXr}, s{sXr}, s{sT2}')
    a(f's_add_u32 s{sXr}, s{sXr}, {WS_HS}')
    a(f'v_lshlrev_b32 v{vXr}, 3, v{vM}')
    a(f's_mul_i32 s{S_B3SRC}, s{S_NF}, {240 * 1024}')
    a(f's_mul_i32 s{S_B3M0}, s{S_WAVE}, 6144')
    a(f's_add_u32 s{S_B3SRC}, s{S_B3SRC}, s{S_B3M0}')
    a(f's_add_u32 s{S_B3SRC}, s{S_B3SRC}, {WS_WGU}')
    a(f's_mul_i32 s{S_B4}, s{S_NT2}, 240')
    a(f's_mul_i32 s{sT}, s{S_WAVE}, 60')
    a(f's_add_u32 s{S_B4}, s{S_B4}, s{sT}')
    a(f's_lshl_b32 s{S_B4}, s{S_B4}, 10')
    a(f's_add_u32 s{S_B4}, s{S_B4}, {WS_WD}')
    a(f's_mov_b32 s{sF0}, {WS_F0}')
    a(f's_lshl_b32 s{sFl}, s{S_MT2}, 6')
    a(f's_add_u32 s{sFl}, s{sFl}, {WS_F1}')
    a(f's_mul_i32 s{sCs}, s{S_NF}, 768')
    a(f's_add_u32 s{sCs}, s{sCs}, {WS_CS}')
    exchange_addr(a, vEx, L_EX2, sT)
    a('s_waitcnt vmcnt(3)')
    a.vm_reset(); a.lg_reset()
    a('s_barrier')
    publish(a, WS_F1, S_MT, S_NT, 8, 'p1')
    stamp(a, cfg, 5)
    for kb in range(5):
        for j in range(5):
            for h in range(2):
                d = ar((kb * 5 + j) * 4 + 2 * h, 2)
                if kb < 4:
                    a(f'ds_read_b64_tr_b16 {d}, v{vBm} offset:{kb * 6400 + h * 640 + 8 * j}')
                else:
                    a(f'ds_read_b64_tr_b16 {d}, v{vBr} offset:{16 * 160 + h * 3200 + 8 * j}')
    a(f's_cmp_lg_u32 s{S_WAVE}, 3')
    a('s_cbranch_scc1 L_p2_no0')
    poll(a, sF0, 256, 'p0')
    a('L_p2_no0:')
    a('s_waitcnt vmcnt(0)')
    unpack(a, RES, ACC)
    a('s_waitcnt lgkmcnt(0)')
    a.lg_reset()
    a('s_barrier')
    w1 = cfg.get('p2_w1', 6)
    pre = [x for t in range(4) for x in b3_dma(t, sD)]
    pre += [f'buffer_load_dwordx4 {vr(CSL + 4 * g, 4)}, v{vL16}, s[{R_WS}:{R_WS+3}], s{sCs} offen {ld}\ns_add_u32 s{sCs}, s{sCs}, 12288' for g in range(8)]
    must = len(pre)
    pre += [b4_load(n) for n in range(30)]
    total = len(pre)
    for x in pre[:w1]: a(x)
    pre = pre[w1:]
    stamp(a, cfg, 6)
    poll(a, sFl, 8, 'p2')
    stamp(a, cfg, 7)
    for kb in range(5):
        for i in range(4):
            v, off = (vL16, kb * 1024) if kb < 4 else (vL16b, 0)
            a(f'buffer_load_dwordx4 {ar(AF + (i * 5 + kb) * 4, 4)}, v{v}, s[{R_WS}:{R_WS+3}], s{sA + i} offen offset:{off} {LD["data"]}', tag=('A', kb))
    gap, k1, k2, start = cfg.get('p2_k', [5, 6, 10, 20])

    def side(n):
        if n > start and n % gap == 0 and pre: a(pre.pop(0))
    ksplit_gemm(a, 5, 2, ACC, lambda n: ar(4 * n, 4), lambda kb, i: ar(AF + (i * 5 + kb) * 4, 4), vEx, side,
                lambda kb: stamp(a, cfg, 29) if kb == 0 else None)
    stamp(a, cfg, 8)
    reduce_finish(a, ACC, TMP, vEx, pre[:k1], st=lambda i: stamp(a, cfg, 30 + i))
    pre = pre[k1:]
    k2 = min(k2, len(pre))
    for i in range(10):
        a(f'v_cvt_pk_bf16_f32 v{H + i}, v{ACC + 2 * i}, v{ACC + 2 * i + 1}')
    a(f'buffer_store_dwordx4 {vr(H, 4)}, v{vMain}, s[{R_WS}:{R_WS+3}], s{sMain} offen {st}')
    a(f'buffer_store_dwordx4 {vr(H + 4, 4)}, v{vMain}, s[{R_WS}:{R_WS+3}], s{sMain} offen offset:256 {st}')
    a(f'buffer_store_dwordx2 {vr(H + 8, 2)}, v{vRem}, s[{R_WS}:{R_WS+3}], s{sRem} offen {st}')
    a(f'v_mov_b32 v{vSt}, 0')
    a(f'v_mov_b32 v{vSt + 1}, 0')
    a(f'v_mov_b32 v{vT0}, 0x3f803f80')
    for i in range(10):
        a(f'v_dot2c_f32_bf16 v{vSt}, v{H + i}, v{vT0}')
        a(f'v_dot2c_f32_bf16 v{vSt + 1}, v{H + i}, v{H + i}')
    for sw in ('v_permlane16_swap_b32', 'v_permlane32_swap_b32'):
        for k in range(2): a(f'v_mov_b32 v{vTs + k}, v{vSt + k}')
        for k in range(2): a(f'{sw} v{vSt + k}, v{vTs + k}')
        for k in range(2): a(f'v_add_f32 v{vSt + k}, v{vSt + k}, v{vTs + k}')
    a('s_mov_b64 exec, 0xffff')
    a(f'buffer_store_dwordx2 {vr(vSt, 2)}, v{vXr}, s[{R_WS}:{R_WS+3}], s{sXr} offen {st}')
    a('s_mov_b64 exec, -1')
    stamp(a, cfg, 33)
    for x in pre[:k2]: a(x)

    def finish():
        a(f's_waitcnt vmcnt({k2})')
        a.vm_reset(); a.lg_reset()
        a('s_barrier')
        publish(a, WS_F2, S_MT2, S_NT2, 8, 'p2')
        stamp(a, cfg, 9)
        issued = total - len(pre) + k2
        assert issued >= must
        B4_STATE['next'] = issued - must
        for t in range(4, B3_GAP):
            for x in b3_dma(t, sD): a(x)
    return finish


def phase3(a, cfg, finish2):
    st = '' if 'p3' in LOCALX else 'sc1'; ld = LD['data']
    V = Alloc(LOC, B4V)
    vAo, vSo, vHo, vCsr, vNM, vA1, vA3, vC = [V() for _ in range(8)]
    vLB = V(3)
    NACC = NP1 + 1
    ACC = V(16 * NACC, 4)
    NF = cfg.get('p3_nf', 6)
    WF = V(4 * NF, 4)
    EC = V(16, 4)
    EP, EO = V(8, 2), [V(4, 4), V(4, 4)]
    ST = EP
    sT, sT2, sA, sH, sSt, sFl, sD = range(S_T0 + 4, S_T0 + 11)
    a(f's_lshl_b32 s{sFl}, s{S_MT3}, 7')
    a(f's_add_u32 s{sFl}, s{sFl}, {WS_F2}')
    a(f'v_lshlrev_b32 v{vT0}, 4, v{vM}')
    a(f'v_lshrrev_b32 v{vT1}, 5, v0')
    a(f'v_lshl_add_u32 v{vT0}, v{vT1}, 8, v{vT0}')
    a(f'v_lshlrev_b32 v{vCsr}, 4, v{vT1}')
    a(f'v_add_u32 v{vCsr}, {L_CS}, v{vCsr}')
    a(f'v_and_b32 v{vT2}, 31, v0')
    a(f'v_lshlrev_b32 v{vT2}, 3, v{vT2}')
    a(f'v_lshl_add_u32 v{vSo}, v{vT1}, 10, v{vT2}')
    a(f'v_and_b32 v{vT1}, 1, v{vQ}')
    a(f's_movk_i32 s{sT}, {80 * 256}')
    a(f'v_mad_u32_u24 v{vAo}, v{vT1}, s{sT}, v{vT0}')
    a(f's_mov_b32 s{sT}, {192 * 256}')
    a(f'v_mad_u32_u24 v{vHo}, v{vT1}, s{sT}, v{vT0}')
    a(f's_lshl_b32 s{sT}, s{S_MT3}, 2')
    a(f's_add_u32 s{sT}, s{sT}, s{S_WAVE}')
    a(f's_mul_i32 s{sA}, s{sT}, {2 * 80 * 256}')
    a(f's_add_u32 s{sA}, s{sA}, {WS_AH}')
    a(f's_mul_i32 s{sH}, s{sT}, {2 * 192 * 256}')
    a(f's_mul_i32 s{sT2}, s{S_NF}, {12 * 256}')
    a(f's_add_u32 s{sH}, s{sH}, s{sT2}')
    a(f's_add_u32 s{sH}, s{sH}, {WS_AHH}')
    a(f's_lshl_b32 s{sSt}, s{sT}, 11')
    a(f's_add_u32 s{sSt}, s{sSt}, {WS_HS}')
    for k in range(3):
        a(f'v_add_u32 v{vLB + k}, {k * 2 * STG3}, v{vL16}')
    c0 = -2.0 * math.sqrt(2.0 / math.pi) * math.log2(math.e)
    finish2()
    a.lg_reset()
    seq = order3()
    pend = []
    refill = []

    def w_read(p):
        t = p // 24
        if p % 24 == 0 and t >= 2:
            a.vm_wait(('S', t), must=t >= B3_GAP)
            a('s_barrier')
            if t + 4 < 10: refill.extend((x, ('S', t + 4)) for x in b3_dma(t + 4, sD))
        addr = (t % 6) * STG3 + (p % 24) * 1024
        k = addr // (2 * STG3)
        a(f'ds_read_b128 {vr(WF + 4 * (p % NF), 4)}, v{vLB + k} offset:{addr - k * 2 * STG3}', tag=('w', p))
    stamp(a, cfg, 10)
    poll(a, sFl, 16, 'p3')
    stamp(a, cfg, 11)

    def a_load(b):
        pre = f's_add_u32 s{sA}, s{sA}, 4096\n' if b and b % 8 == 0 else ''
        return (pre + f'buffer_load_dwordx4 {ar(4 * b, 4)}, v{vAo}, s[{R_WS}:{R_WS+3}], s{sA} offen offset:{(b % 8) * 512} {ld}', ('A', b))
    up = cfg.get('p3_up', 16)
    for b in range(up): a(*a_load(b))
    a('s_barrier')
    for p in range(NF - 1): w_read(p)
    for g in range(1, 8):
        for p in range(2):
            a(f'v_pk_add_f32 {vr(CSL + 2 * p, 2)}, {vr(CSL + 2 * p, 2)}, {vr(CSL + 4 * g + 2 * p, 2)}')
    a(f'v_add_u32 v{vT0}, {L_CS}, v{vL16}')
    a(f'ds_write_b128 v{vT0}, {vr(CSL, 4)}')
    rest = [a_load(b) for b in range(up, 40)]
    for t in range(B3_GAP, 6):
        k = max(0, 24 * t // NP1 - up - cfg.get('p3_lead', -8))
        done = 40 - up - len(rest)
        pend += rest[:max(0, k - done)]; rest = rest[max(0, k - done):]
        pend += [(x, ('S', t)) for x in b3_dma(t, sD)]
    pend += rest
    pend += [(f'buffer_load_dwordx2 {vr(ST + 2 * i, 2)}, v{vSo}, s[{R_WS}:{R_WS+3}], s{sSt} offen offset:{i * 256} {ld}', 'ST') for i in range(4)]
    bq = [(b4_load(n), 'B4') for n in range(B4_STATE['next'], B4_EARLY)]
    bl = [(n - B4_EARLY, b4_load(n), 'B4') for n in range(B4_EARLY, 60)]
    print(f'phase 3: {len(bq)} down-weight fragments to fetch', file=sys.stderr)

    def prep():
        o = [('vm', 'ST')]
        for i in range(1, 4):
            o.append(f'v_add_f32 v{ST}, v{ST}, v{ST + 2 * i}')
            o.append(f'v_add_f32 v{ST + 1}, v{ST + 1}, v{ST + 2 * i + 1}')
        for k in range(2): o.append(f'v_mov_b32 v{ST + 2 + k}, v{ST + k}')
        o.append(None); o.append(None)
        for k in range(2): o.append(f'v_permlane32_swap_b32 v{ST + k}, v{ST + 2 + k}')
        for k in range(2): o.append(f'v_add_f32 v{ST + k}, v{ST + k}, v{ST + 2 + k}')
        o.append(f'v_mul_f32 v{vNM}, {f32(-1.0 / 640)}, v{ST}')
        o.append(f'v_mul_f32 v{ST + 1}, {f32(1.0 / 640)}, v{ST + 1}')
        o.append(f'v_fma_f32 v{ST + 1}, -v{vNM}, v{vNM}, v{ST + 1}')
        o.append(f'v_max_f32 v{ST + 1}, 0, v{ST + 1}')
        o.append(f'v_add_f32 v{vC}, {f32(1e-5)}, v{ST + 1}')
        o.append(f'v_rsq_f32 v{ST}, v{vC}')
        o.append(None)
        o.append(f'v_mul_f32 v{vA1}, {f32(c0)}, v{ST}')
        o.append(f'v_mul_f32 v{ST + 1}, v{ST}, v{ST}')
        o.append(f'v_mul_f32 v{vA3}, {f32(0.044715)}, v{vA1}')
        o.append(f'v_mul_f32 v{vA3}, v{vA3}, v{ST + 1}')
        return o

    def cs_reads(s):
        return [(f'ds_read_b128 {vr(EC + 4 * q, 4)}, v{vCsr} offset:{(s * 32 + 8 * q) * 4}', ('cs', s)) for q in range(4)]

    def epilogue(s, nxt):
        A = ACC + 16 * (s % NACC)
        O = EO[s % 2]
        o = [('lg', ('cs', s))]
        for i in range(16): o.append(f'v_fmac_f32 v{A + i}, v{vNM}, v{EC + i}')
        if nxt is not None: o += cs_reads(nxt)
        gi = [A + (i >> 2) * 8 + (i & 3) for i in range(8)]
        ui = [g + 4 for g in gi]
        for i in range(8): o.append(f'v_mul_f32 v{EP + i}, v{gi[i]}, v{gi[i]}')
        for i in range(8): o.append(f'v_fma_f32 v{EP + i}, v{EP + i}, v{vA3}, v{vA1}')
        for i in range(8): o.append(f'v_mul_f32 v{EP + i}, v{EP + i}, v{gi[i]}')
        for i in range(8):
            o.append(f'v_exp_f32 v{EP + i}, v{EP + i}')
            o.append(f'v_mul_f32 v{ui[i]}, v{ui[i]}, v{gi[i]}')
        for i in range(8): o.append(f'v_fma_f32 v{EP + i}, v{EP + i}, v{vC}, v{vC}')
        for i in range(8): o.append(f'v_rcp_f32 v{EP + i}, v{EP + i}')
        for i in range(8): o.append(f'v_mul_f32 v{ui[i]}, v{ui[i]}, v{EP + i}')
        for p in range(4): o.append(f'v_cvt_pk_bf16_f32 v{O + p}, v{ui[2 * p]}, v{ui[2 * p + 1]}')
        o.append((f'buffer_store_dwordx4 {vr(O, 4)}, v{vHo}, s[{R_WS}:{R_WS+3}], s{sH} offen offset:{s * 512} {st}', ('H', s)))
        o.append(('done', s))
        return o

    finished = set()

    def run(x):
        if x is None: return
        if isinstance(x, tuple):
            if x[0] == 'vm': a.vm_wait(x[1])
            elif x[0] == 'lg': a.lg_wait(x[1])
            elif x[0] == 'done': finished.add(x[1])
            else: a(x[0], tag=x[1])
        else:
            a(x)

    def cost(x):
        if x is None: return 4
        if isinstance(x, tuple) and x[0] == 'done': return 0
        t = x[0] if isinstance(x, tuple) else x
        return 8 if t.startswith(('v_exp', 'v_rcp', 'v_rsq')) else 4

    work = []
    front = []

    def is_mem(x):
        t = x[0] if isinstance(x, tuple) else x
        return cfg.get('p3_front', 1) and isinstance(t, str) and t.startswith(('ds_', 'buffer_'))
    budget = cfg.get('p3_budget', 20)
    P1END = 40 * NP1
    b4_from = cfg.get('p3_b4', 60)
    def waits(p):
        if p < 240:
            a.vm_wait(('A', seq[p][1]))
            a.lg_wait(('w', p))
    waits(0)
    stamp(a, cfg, 20)
    for p, (s, b) in enumerate(seq):
        if p == P1END: stamp(a, cfg, 12)
        if p in (30, 60, 90): stamp(a, cfg, {30: 21, 60: 22, 90: 23}[p])
        if b == 0 and s >= NACC:
            late = 0
            while s - NACC not in finished:
                run(front.pop(0) if front else work.pop(0)); late += 1
            if late: print(f'phase 3: {late} epilogue items of sub-tile {s - NACC} were late', file=sys.stderr)
        c = vr(ACC + 16 * (s % NACC), 16)
        a(f'v_mfma_f32_32x32x16_bf16 {c}, {vr(WF + 4 * (p % NF), 4)}, {ar(4 * b, 4)}, {c if b else 0}')
        waits(p + 1)
        if p + NF - 1 < 240: w_read(p + NF - 1)
        for k, pp in enumerate(cfg.get('p3_pub', [204])):
            if p == pp:
                a.vm_wait(('H', 2 * k + 1))
                a('s_barrier')
                publish(a, WS_F3 + 0x1000 * k, S_MT3, S_NF, 16, f'p3{k}')
        if p == 236:
            a(f's_lshr_b32 s{S_F3}, s{S_MT2}, 1')
            a(f's_lshl_b32 s{S_F3}, s{S_F3}, 7')
            a(f's_add_u32 s{S_F3}, s{S_F3}, {WS_F3}')
            a(f'v_lshlrev_b32 v{vPoll + 6}, 3, v{vM}')
            flag_read(a, S_F3, 0, vPoll + 4, vPoll + 6, 'f3a')
        left = budget
        for x in front[:2]: run(x)
        del front[:2]
        if p % cfg.get('p3_pace', 2) == 0 or p < cfg.get('p3_burst', 0):
            if pend or refill or bq or bl: left -= cfg.get('p3_ldcost', 0)
            if pend: a(*pend.pop(0))
            elif refill: a(*refill.pop(0))
            elif bq and p >= b4_from: a(*bq.pop(0))
            elif bl and p > 200 + bl[0][0]: a(*bl.pop(0)[1:])
        if p == P1END - 30: work += prep() + cs_reads(0)
        if b == 39 and NP1 - 1 <= s < 5:
            if s == NP1 - 1:
                for s2 in range(NP1): work += epilogue(s2, s2 + 1)
            else:
                work += epilogue(s, s + 1)
        if cfg.get('x_noepi') and p >= P1END:
            finished.update(range(6)); work = []
        while work and left >= cost(work[0]):
            x = work[0]
            if is_mem(x) or (isinstance(x, tuple) and x[0] == 'done' and front):
                front.append(work.pop(0)); continue
            if isinstance(x, tuple) and x[0] == 'lg' and front: break
            left -= cost(x); run(work.pop(0))
    for x in front: run(x)
    if cfg.get('x_nob4'):
        for x in bq: a(*x)
        bq = []
    assert not pend and not bq and not refill and not bl, (len(pend), len(bq), len(bl))
    stamp(a, cfg, 14)
    print(f'phase 3: {len(work)} epilogue items left after the last MFMA', file=sys.stderr)
    for x in work: run(x)
    for x in epilogue(5, None): run(x)


def phase4(a, cfg):
    ld = LD['data']
    vOut = vPoll + 7
    vIdx = vPoll + 6
    vEx = LOC
    ACC = LOC + 4
    vLo = [vL16, vT2, vT3]
    NR = 9
    assert ACC % 2 == 0 and ACC + 80 + 48 <= B4V

    def areg(m, i):
        k = m % NR
        return ar(56 + (k * 4 + i) * 4, 4) if k < 6 else vr(ACC + 80 + ((k - 6) * 4 + i) * 4, 4)
    sT, sT2, sOut, sF3b = range(S_T0 + 4, S_T0 + 8)
    sA = S_T0 + 8
    if len(cfg.get('p3_pub', [204])) < 2:
        a.vm_wait(('H', 3))
        a('s_barrier')
        publish(a, WS_F3 + 0x1000, S_MT3, S_NF, 16, 'p31')
    a_bases(a, sA, 192, WS_AHH, sT, sT2)
    a(f'v_add_u32 v{vT2}, 4096, v{vL16}')
    a(f'v_add_u32 v{vT3}, 8192, v{vL16}')
    a(f's_add_u32 s{sF3b}, s{S_F3}, 0x1000')

    def a_load(m, i):
        kb = KB4[m]
        return (f'buffer_load_dwordx4 {areg(m, i)}, v{vLo[kb // 4]}, s[{R_WS}:{R_WS+3}], s{sA + i} offen offset:{(kb % 4) * 1024} {ld}', ('A', m))
    loads = [a_load(m, i) for m in range(12) for i in range(4)]
    flag_check(a, S_F3, 0, vPoll + 4, vIdx, 'f3a')
    stamp(a, cfg, 16)
    first = cfg.get('p4_first', 8)
    for x in loads[:first]: a(*x)
    row_addr(a, vOut, sOut, sT)
    exchange_addr(a, vEx, 0, sT)
    a.vm_wait(('H', 5))
    a('s_barrier')
    publish(a, WS_F3 + 0x2000, S_MT3, S_NF, 16, 'p3')
    stamp(a, cfg, 15)
    for x in loads[first:16]: a(*x)
    flag_read(a, sF3b, 0, vPoll + 4, vIdx, 'f3b')
    unpack(a, H, ACC)
    stamp(a, cfg, 17)
    q = []
    ckb = cfg.get('p4_f3b', 20)
    step = cfg.get('p4_step', 4)
    rd, ck = cfg.get('p4_f3c', [70, 100])

    def side(n):
        if n == ckb:
            flag_check(a, sF3b, 0, vPoll + 4, vIdx, 'f3b')
            q.extend(loads[16:32])
        elif n == rd:
            a(f's_add_u32 s{sF3b}, s{sF3b}, 0x1000')
            flag_read(a, sF3b, 0, vPoll + 4, vIdx, 'f3c')
        elif n == ck:
            flag_check(a, sF3b, 0, vPoll + 4, vIdx, 'f3c')
            q[:0] = loads[32:]
        elif q and n % step == 1 and q[0][1][1] - NR < n // 20: a(*q.pop(0))
    def at_block(m):
        stamp(a, cfg, {0: 27, 4: 28, 8: 38}.get(m, -1))
    ksplit_gemm(a, 12, cfg.get('p4_tail', 3), ACC, b4_reg, areg, vEx, side, at_block)
    assert not q
    stamp(a, cfg, 18)
    reduce_finish(a, ACC, B4V, vEx, st=lambda i: stamp(a, cfg, 34 + i))
    for i in range(10):
        a(f'v_cvt_pk_bf16_f32 v{H + i}, v{ACC + 2 * i}, v{ACC + 2 * i + 1}')
    a(f'buffer_store_dwordx4 {vr(H, 4)}, v{vOut}, s[{R_OUT}:{R_OUT+3}], s{sOut} offen')
    a(f'buffer_store_dwordx4 {vr(H + 4, 4)}, v{vOut}, s[{R_OUT}:{R_OUT+3}], s{sOut} offen offset:16')
    a(f'buffer_store_dwordx2 {vr(H + 8, 2)}, v{vOut}, s[{R_OUT}:{R_OUT+3}], s{sOut} offen offset:32')
    stamp(a, cfg, 37)


def build(cfg):
    POLL.update(cfg.get('poll', {}))
    LOCALX.update(cfg.get('x_local', []))
    LD.update(cfg.get('x_ld', {}))
    a = Asm()
    name = NAME + '_kernel'
    kernel_head(a, name, 'L_exit', cfg.get('stamp'))
    a(f'v_and_b32 v{vM}, 15, v0')
    a(f'v_lshrrev_b32 v{vQ}, 4, v0')
    a(f'v_lshlrev_b32 v{vL16}, 4, v0')
    if cfg.get('code_pf', 1):
        a('s_getpc_b64 s[60:61]')
        a('L_pc:')
        a(f's_lshr_b32 s62, s2, 3')
        a(f's_lshl_b32 s62, s62, 2')
        a(f's_add_u32 s62, s62, s{S_WAVE}')
        a(f's_lshl_b32 s62, s62, 9')
        a(f'v_lshl_add_u32 v{vT0}, v0, 3, s62')
        a(f'v_min_u32 v{vT0}, L_exit-L_pc, v{vT0}')
        a(f'v_mov_b32 v{vT2}, s61')
        a(f'v_add_co_u32 v{vT0}, vcc, s60, v{vT0}')
        a(f'v_addc_co_u32 v{vT1}, vcc, 0, v{vT2}, vcc')
        a(f'global_load_dword v{vPoll + 3}, v[{vT0}:{vT1}], off')
    phase1(a, cfg)
    phase3(a, cfg, phase2(a, cfg))
    phase4(a, cfg)
    stamp_flush(a, cfg)
    a('L_exit:')
    a('s_endpgm')
    head = open('cdna_kernels/' + NAME + '.s.ref').read().split('; Override')[0]
    out = head + f'; stamp_ids {json.dumps(cfg.get("stamp_ids", STAMP_IDS))}\n' * bool(cfg.get('stamp')) + f'; @launch grid=(256,1,1) block=(256,1,1) lds={LDS_BYTES}\n'
    out += '.amdgcn_target "amdgcn-amd-amdhsa--gfx950"\n.text\n' + a.text()
    out += '.section .rodata,"a"\n' + descriptor(name, 512, 256, 102)
    return out


if __name__ == '__main__':
    cfg = json.loads(sys.argv[2]) if len(sys.argv) > 2 else {}
    open(sys.argv[1], 'w').write(build(cfg))
```
